```python
import torch

def _softmax(x, axis=-1):
    return torch.softmax(x, dim=axis)

def _gelu(x):
    return torch.nn.functional.gelu(x, approximate='tanh')

def _silu(x):
    return torch.nn.functional.silu(x)

def _sigmoid(x):
    return torch.sigmoid(x)

def _layernorm(x, axis=-1, eps=1e-05):
    m = x.mean(dim=axis, keepdim=True)
    v = x.var(dim=axis, keepdim=True, unbiased=False)
    return (x - m) / torch.sqrt(v + eps)

def _scatter_add(tgt, idx, src, axis=0):
    return tgt.clone().index_add_(axis, idx, src)

def _segment_sum(src, seg, n):
    out = torch.zeros((n,) + src.shape[1:], dtype=src.dtype)
    return out.index_add_(0, seg, src)

def _pad(x, pw):
    flat = tuple((v for pair in reversed(pw) for v in pair))
    return torch.nn.functional.pad(x, flat)
kernel_name = 'gated_mix__linear_attn_block__mixer_gmlp__prompt'

def setup_inputs():

    _w = lambda a: (lambda t: t.to(torch.bfloat16) if t.is_floating_point() else t)(torch.as_tensor(a))

    def _A_setup():
        B, S, D = (1, 2048, 512)
        return {'x': _w((lambda *s: torch.randn(*s, dtype=torch.bfloat16) * 0.05)(B, S, D)), 'wqkv': _w((lambda *s: torch.randn(*s, dtype=torch.bfloat16) * 1.6)(D, 3 * D)), 'wo': _w((lambda *s: torch.randn(*s, dtype=torch.bfloat16) * 0.2)(D, D))}
    _A_in = _A_setup()

    def _B_setup():
        B, S, D, F = (1, 2048, 512, 1376)
        Fh = F // 2
        return {'x': _w((lambda *s: torch.randn(*s, dtype=torch.bfloat16) * 0.05)(B, S, D)), 'w_in': _w((lambda *s: torch.randn(*s, dtype=torch.bfloat16) * 0.4)(D, 2 * Fh)), 'w_sp': _w(0.01 * (lambda *s: torch.randn(*s, dtype=torch.bfloat16) * 0.4)(S, S)), 'b_sp': _w(1.0 + 0.01 * (lambda *s: torch.randn(*s, dtype=torch.bfloat16) * 0.05)(S)), 'w_out': _w((lambda *s: torch.randn(*s, dtype=torch.bfloat16) * 0.05)(Fh, D))}
    _B_in = _B_setup()
    return {'A_x': _A_in['x'], 'A_wqkv': _A_in['wqkv'], 'A_wo': _A_in['wo'], 'B_x': _B_in['x'], 'B_w_in': _B_in['w_in'], 'B_w_sp': _B_in['w_sp'], 'B_b_sp': _B_in['b_sp'], 'B_w_out': _B_in['w_out'], 'gate_w': _w((lambda *s: torch.randn(*s, dtype=torch.bfloat16) * 0.05)(512) * 16.0)}

def reference(A_x, A_wqkv, A_wo, B_x, B_w_in, B_w_sp, B_b_sp, B_w_out, gate_w):

    def _A_ref(x, wqkv, wo):
        B, S, D = x.shape
        H = 32
        Dh = D // H
        qkv = (lambda x, *d: x.permute(*d))((x @ wqkv).reshape(B, S, 3, H, Dh), 2, 0, 3, 1, 4)
        q, k, v = (qkv[0], qkv[1], qkv[2])
        phi = lambda t: torch.where(t > 0, t + 1, torch.exp(t)) + 1e-06
        pq, pk = (phi(q), phi(k))
        kv = torch.einsum('bhsd,bhse->bhde', pk, v)
        z = torch.einsum('bhsd->bhd', pk)
        num = torch.einsum('bhqd,bhde->bhqe', pq, kv)
        den = torch.einsum('bhqd,bhd->bhq', pq, z)[..., None] + 1e-06
        o = num / den
        return (lambda x, *d: x.permute(*d))(o, 0, 2, 1, 3).reshape(B, S, D) @ wo

    def _B_ref(x, w_in, w_sp, b_sp, w_out):
        B, S, D = x.shape
        F = w_in.shape[-1]
        Fh = F // 2
        z = _gelu(torch.einsum('bsd,df->bsf', x, w_in))
        z1 = z[..., :Fh].clone()
        z2 = _layernorm(z[..., Fh:], axis=-1)
        g = torch.einsum('ts,bsf->btf', w_sp, z2) + b_sp[None, :, None]
        return torch.einsum('bsf,fd->bsd', z1 * g, w_out)
    x = A_x
    g = _sigmoid((x * gate_w).sum(-1, keepdims=True))
    a = _A_ref(x, A_wqkv, A_wo)
    b = _B_ref(x, B_w_in, B_w_sp, B_b_sp, B_w_out)
    return g * a + (1 - g) * b
```

```python
import re

def v(n, c=1):
    return f'v{n}' if c == 1 else f'v[{n}:{n+c-1}]'
def a(n, c=1):
    return f'a{n}' if c == 1 else f'a[{n}:{n+c-1}]'
def s(n, c=1):
    return f's{n}' if c == 1 else f's[{n}:{n+c-1}]'

_REG = re.compile(r'^(-|\|)?(abs\()?([vas])(\d+|\[(\d+):(\d+)\])')
def regs_of(op):
    op = op.strip()
    if op.startswith('-'): op = op[1:]
    if op.startswith('abs('): op = op[4:]
    op = op.strip('|)')
    if op == 'vcc': return {('s', 'vcc')}
    if op == 'exec': return {('s', 'exec')}
    if op == 'm0': return {('s', 'm0')}
    m = re.match(r'^([vas])(\d+)$', op)
    if m: return {(m.group(1), int(m.group(2)))}
    m = re.match(r'^([vas])\[(\d+):(\d+)\]$', op)
    if m: return {(m.group(1), i) for i in range(int(m.group(2)), int(m.group(3)) + 1)}
    return set()

TRANS = ('v_exp_f32', 'v_log_f32', 'v_rcp_f32', 'v_rsq_f32', 'v_sqrt_f32', 'v_sin_f32', 'v_cos_f32')

class Ins:
    def __init__(self, text):
        self.text = text
        t = text.split(';')[0].split('//')[0].strip()
        self.is_label = t.endswith(':')
        self.empty = (t == '' or t.startswith('.'))
        self.mn = ''
        self.ops = []
        self.mods = ''
        if self.is_label or self.empty: return
        parts = t.split(None, 1)
        self.mn = parts[0]
        rest = parts[1] if len(parts) > 1 else ''
        ops = []; cur = ''; depth = 0
        for ch in rest:
            if ch == '[': depth += 1
            if ch == ']': depth -= 1
            if ch == ',' and depth == 0:
                ops.append(cur.strip()); cur = ''
            else:
                cur += ch
        if cur.strip(): ops.append(cur.strip())
        if ops:
            last = ops[-1].split()
            ops[-1] = last[0]
            self.mods = ' '.join(last[1:])
        self.ops = ops
        self.classify()
    def classify(self):
        mn = self.mn; ops = self.ops
        self.kind = 'other'
        self.w = set(); self.r = set()
        self.passes = 0
        R = regs_of
        if mn.startswith('v_mfma'):
            self.kind = 'mfma'
            self.w = R(ops[0]); self.ra = R(ops[1]); self.rb = R(ops[2]); self.rc = R(ops[3])
            self.r = self.ra | self.rb | self.rc
            self.passes = 8 if '32x32' in mn else 4
        elif mn.startswith('v_'):
            self.kind = 'valu'
            self.dpp = any(k in self.mods for k in ('row_', 'quad_perm', 'wave_')) or any(k in ops[-1] for k in ('row_', 'quad_perm'))
            self.trans = mn.replace('_e32', '').replace('_e64', '') in TRANS
            if mn.startswith('v_cmp'):
                self.w = R(ops[0]);
                for o in ops[1:]: self.r |= R(o)
            elif mn.startswith('v_permlane') and 'swap' in mn:
                self.w = R(ops[0]) | R(ops[1]); self.r = set(self.w)
            elif mn.startswith(('v_add_co', 'v_sub_co', 'v_addc_co', 'v_subb_co')):
                self.w = R(ops[0]) | R(ops[1])
                for o in ops[2:]: self.r |= R(o)
            else:
                self.w = R(ops[0])
                for o in ops[1:]: self.r |= R(o)
                if mn.startswith(('v_fmac', 'v_pk_fmac', 'v_dot2c', 'v_mac')): self.r |= self.w
                if mn.startswith('v_cndmask') and len(ops) == 3: self.r |= {('s', 'vcc')}
                if self.dpp: self.r |= self.w
                if mn.startswith('v_writelane'): self.r |= self.w
        elif mn.startswith('ds_'):
            self.kind = 'ds'
            if mn.startswith('ds_read') or mn.startswith('ds_bpermute') or mn.startswith('ds_swizzle') or mn.startswith('ds_permute'):
                self.w = R(ops[0])
                for o in ops[1:]: self.r |= R(o)
            else:
                for o in ops: self.r |= R(o)
        elif mn.startswith(('buffer_', 'global_')):
            self.kind = 'vmem'
            lds = (' lds' in (' ' + self.mods)) or mn.startswith('global_load_lds')
            self.lds = lds
            if mn in ('buffer_inv', 'buffer_wbl2'):
                pass
            elif 'load' in mn and not lds:
                self.w = R(ops[0])
                for o in ops[1:]: self.r |= R(o)
            elif 'atomic' in mn and 'sc0' in self.mods:
                self.w = R(ops[0])
                for o in ops: self.r |= R(o)
            else:
                for o in ops: self.r |= R(o)
            self.wide_store = ('store' in mn and ('x4' in mn or 'x3' in mn))
            if mn.startswith('buffer_store'): self.sdata = R(ops[0])
            elif mn.startswith('global_store'): self.sdata = R(ops[1])
            else: self.sdata = set()
            if lds: self.r |= {('s', 'm0')}
        elif mn.startswith('s_'):
            self.kind = 'salu'
            if mn.startswith(('s_cmp', 's_cbranch', 's_branch', 's_waitcnt', 's_barrier', 's_nop', 's_sleep', 's_endpgm', 's_setprio', 's_setpc')):
                for o in ops: self.r |= R(o)
            else:
                if ops: self.w = R(ops[0])
                for o in ops[1:]: self.r |= R(o)
                if 'saveexec' in mn: self.w |= {('s', 'exec')}
    def states(self):
        if self.mn == 's_nop': return int(self.ops[0], 0) + 1
        return 1

def need(p, c):
    n = 0
    pk, ck = p.kind, c.kind
    vw = {x for x in p.w if x[0] in 'va'}
    sw = {x for x in p.w if x[0] == 's'}
    if pk == 'valu':
        if ck == 'mfma' and (vw & c.r): n = max(n, 2)
        if ck == 'valu':
            if p.trans and not c.trans and (vw & c.r): n = max(n, 1)
            if p.trans and c.trans and (vw & c.r): n = max(n, 1)
            if c.dpp and (vw & c.r): n = max(n, 2)
            if c.mn.startswith(('v_readlane', 'v_readfirstlane')) and (vw & c.r): n = max(n, 1)
            if c.mn.startswith('v_permlane') and (vw & c.r): n = max(n, 2)
            if sw & c.r:
                n = max(n, 4 if c.mn.startswith(('v_readlane', 'v_writelane')) else 2)
            if ('s', 'exec') in sw: n = max(n, 4)
        if ck == 'vmem' and (sw & c.r): n = max(n, 5)
        if ck == 'salu' and (sw & c.r): n = max(n, 4)
        if ck == 'salu' and c.mn.startswith('s_cbranch_vcc') and ('s', 'vcc') in sw: n = max(n, 5)
        if ck == 'mfma' and ('s', 'exec') in sw: n = max(n, 4)
    if pk == 'mfma':
        P = p.passes
        raw = {4: 8, 8: 12}[P]
        if ck == 'mfma':
            if p.w & (c.ra | c.rb): n = max(n, raw)
            if p.w & c.rc:
                if c.rc == p.w and c.passes == P: pass
                else: n = max(n, {4: 6, 8: 10}[P])
            elif p.w & c.w: n = max(n, raw)
        elif ck in ('valu', 'ds', 'vmem'):
            if p.w & (c.r | c.w): n = max(n, raw)
            if ck == 'valu' and (p.rc & c.w): n = max(n, {4: 3, 8: 7}[P])
    if pk == 'vmem':
        if getattr(p, 'wide_store', False) and (p.sdata & c.w):
            n = max(n, 2 if ck == 'valu' else 1)
    if pk == 'salu':
        if ('s', 'm0') in p.w and ck == 'vmem' and getattr(c, 'lds', False): n = max(n, 1)
        if ('s', 'm0') in p.w and ck == 'ds' and 'addtid' in c.mn: n = max(n, 1)
    return n

class Asm:
    def __init__(self):
        self.L = []
        self.uid = 0
    def __call__(self, s=''):
        for l in s.split('\n'):
            self.L.append(l)
    def label(self, base='L'):
        self.uid += 1
        return f'{base}_{self.uid}'
    def text(self, hazards=True):
        if not hazards:
            return '\n'.join(self.L) + '\n'
        out = []
        hist = []
        nins = 0
        for l in self.L:
            I = Ins(l)
            if I.empty:
                out.append(l); continue
            if I.is_label:
                out.append(l)
                continue
            dist = 0; req = 0
            for p in reversed(hist):
                nd = need(p, I)
                if nd - dist > req: req = nd - dist
                dist += p.states()
                if dist >= 20: break
            while req > 0:
                k = min(req, 16)
                out.append(f's_nop {k-1}')
                hist.append(Ins(f's_nop {k-1}'))
                req -= k; nins += 1
            out.append(l)
            hist.append(I)
            if len(hist) > 40: hist = hist[-30:]
            if I.mn in ('s_branch', 's_endpgm', 's_setpc_b64'):
                hist = []
        self.nops_inserted = nins
        return '\n'.join(out) + '\n'

def kernel_header(A, name):
    A(f'.globl {name}')
    A('.p2align 8')
    A(f'.type {name},@function')
    A(f'{name}:')

def kernel_desc(name, vgpr, sgpr=102, accum=None, wgy=False):
    if accum is None:
        accum = min(256, (vgpr + 3) // 4 * 4)
    t = f'''.amdhsa_kernel {name}
  .amdhsa_next_free_vgpr {vgpr}
  .amdhsa_next_free_sgpr {sgpr}
  .amdhsa_accum_offset {accum}
  .amdhsa_group_segment_fixed_size 0
  .amdhsa_kernarg_size 96
  .amdhsa_user_sgpr_count 2
  .amdhsa_user_sgpr_kernarg_segment_ptr 1
  .amdhsa_system_sgpr_workgroup_id_x 1
'''
    if wgy:
        t += '  .amdhsa_system_sgpr_workgroup_id_y 1\n'
    t += '  .amdhsa_float_denorm_mode_32 3\n'
    t += '.end_amdhsa_kernel\n'
    return t
```

```python
import sys, struct
from asmgen import *
from layout import *

UNIT = 16384
NU = 8
SCR = NU * UNIT
LDS_BYTES = 163840

P_X, P_WQKV, P_WO, P_BX, P_WIN, P_WSP, P_BSP, P_WOUT = 16, 18, 20, 22, 24, 26, 28, 30
P_GW, P_OUT, P_DBG, P_WS = 32, 34, 36, 38
SRD_X, SRD_WB, SRD_WS, SRD_WSP, SRD_M = 40, 44, 48, 52, 56
S_A, S_B, S_C, S_D, S_E, S_F = 60, 61, 62, 63, 64, 65
S_SOFF = 66
S_POLL = 67
S_EX = 68
S_K1, S_K2, S_K3, S_K4 = 70, 71, 72, 73
S_LW = 74
S_LW1 = 75
S_PAIR = 76

def f2u(x): return struct.unpack('<I', struct.pack('<f', x))[0]
LOG2E = 1.4426950408889634
GK = -2.0 * 0.7978845608028654 * LOG2E
GC = 0.044715

PROF = 0x1000000
PROF_ON = False
_stamp_names = []
def stamp(A, name):
    if not PROF_ON: return
    idx = len(_stamp_names); _stamp_names.append(name)
    A('s_waitcnt lgkmcnt(0)')
    A('s_memtime s[84:85]')
    A('s_waitcnt lgkmcnt(0)')
    A(f'v_writelane_b32 v127, s84, {idx}')
def stamp_flush(A):
    if not PROF_ON: return
    A('s_waitcnt vmcnt(0)')
    A('s_lshl_b32 s84, s2, 3'); A('s_add_u32 s84, s84, s6'); A('s_lshl_b32 s84, s84, 8')
    A('v_lshlrev_b32 v126, 2, v0')
    A(f's_mov_b32 s88, s38'); A('s_and_b32 s89, s39, 0xffff'); A('s_mov_b32 s90, 0x2000000'); A('s_mov_b32 s91, 0x00020000')
    A(f's_add_u32 s84, s84, {PROF}')
    A('buffer_store_dword v127, v126, s[88:91], s84 offen')

class VM:
    def __init__(self): self.q = []
    def issue(self, tag, n=1): self.q += [tag] * n
    def wait_n(self, tag):
        idx = max(i for i, t in enumerate(self.q) if t == tag)
        return len(self.q) - 1 - idx
    def has(self, tag): return tag in self.q

def srd(A, d, p, nbytes):
    A(f's_mov_b32 s{d}, s{p}')
    A(f's_and_b32 s{d+1}, s{p+1}, 0xffff')
    A(f's_mov_b32 s{d+2}, {hex(nbytes)}')
    A(f's_mov_b32 s{d+3}, 0x00020000')
def SR(d): return f's[{d}:{d+3}]'
SRD_DBG = 92
CNT_SRD = [SRD_WS]

def setup(A, name, nwg=256):
    A(f's_cmp_ge_u32 s2, {nwg}')
    A(f's_cbranch_scc1 {name}_exit')
    A('s_load_dwordx16 s[16:31], s[0:1], 0')
    A('s_load_dwordx8 s[32:39], s[0:1], 64')
    A('v_lshrrev_b32 v1, 6, v0')
    A('v_and_b32 v0, 63, v0')
    A('v_readfirstlane_b32 s6, v1')
    A('s_and_b32 s7, s6, 3')
    A('s_lshr_b32 s8, s6, 2')
    A(f's_lshl_b32 s{S_LW}, s6, 11')
    A(f's_lshl_b32 s{S_LW1}, s6, 10')

def pipeline(A, blocks):
    n = len(blocks)
    b0 = blocks[0]
    if b0.get('pre'): b0['pre']()
    for r in b0['reads']: A(r)
    for x in b0.get('extra', []): x()
    for i in range(n):
        A('s_waitcnt lgkmcnt(0)')
        nxt = blocks[i+1] if i+1 < n else None
        fill = []
        if nxt is not None:
            if nxt.get('pre'): nxt['pre']()
            fill = [(lambda r=r: A(r)) for r in nxt['reads']]
            ex = list(nxt.get('extra', []))
        else:
            ex = []
        m = blocks[i]['mfmas']
        slots = [[] for _ in m]
        k = 0
        for j in range(len(m)):
            for _ in range(2):
                if k < len(fill): slots[j].append(fill[k]); k += 1
        while k < len(fill): slots[-1].append(fill[k]); k += 1
        if ex:
            step = max(1, len(m) // len(ex))
            for e_i, e in enumerate(ex):
                slots[min(len(m)-1, e_i*step + step//2)].append(e)
        for j, t in enumerate(m):
            A(t)
            for f in slots[j]: f()
        if blocks[i].get('post'): blocks[i]['post']()

V_ACC0 = 4
V_ACC1 = 36
V_BF = 60
V_XD = 92
V_B0D = 94
V_B1D = 96
V_WD = 98
V_XR = 100
V_B0R = 102
V_B1R = 106
V_TA = 109
V_T = 115
V_ID = 124

def gelu_block(A, base, n, tmp, c1v):
    npairs = n // 2
    G = 4
    for p0 in range(0, npairs, G):
        ps = list(range(p0, min(p0 + G, npairs)))
        T = lambda p: tmp + 2 * (p - p0)
        X = lambda p: base + 2 * p
        for p in ps: A(f'v_pk_mul_f32 {v(T(p),2)}, {v(X(p),2)}, {v(X(p),2)}')
        for p in ps: A(f'v_pk_fma_f32 {v(T(p),2)}, {v(T(p),2)}, {s(S_PAIR,2)}, {v(c1v,2)}')
        for p in ps: A(f'v_pk_mul_f32 {v(T(p),2)}, {v(T(p),2)}, {v(X(p),2)}')
        for p in ps:
            A(f'v_exp_f32 {v(T(p))}, {v(T(p))}')
            A(f'v_exp_f32 {v(T(p)+1)}, {v(T(p)+1)}')
        for p in ps: A(f'v_pk_add_f32 {v(T(p),2)}, {v(T(p),2)}, {s(S_PAIR+2,2)}')
        for p in ps:
            A(f'v_rcp_f32 {v(T(p))}, {v(T(p))}')
            A(f'v_rcp_f32 {v(T(p)+1)}, {v(T(p)+1)}')
        for p in ps: A(f'v_pk_mul_f32 {v(X(p),2)}, {v(X(p),2)}, {v(T(p),2)}')

def gelu_consts(A, c1v):
    A(f's_mov_b32 s{S_PAIR}, {hex(f2u(GK*GC))}'); A(f's_mov_b32 s{S_PAIR+1}, {hex(f2u(GK*GC))}')
    A(f's_mov_b32 s{S_PAIR+2}, 1.0'); A(f's_mov_b32 s{S_PAIR+3}, 1.0')
    A(f'v_mov_b32 {v(c1v)}, {hex(f2u(GK))}'); A(f'v_mov_b32 {v(c1v+1)}, {hex(f2u(GK))}')

def phi_block(A, base, n, tmp):
    npairs = n // 2
    G = 4
    for p0 in range(0, npairs, G):
        ps = list(range(p0, min(p0 + G, npairs)))
        T = lambda p: tmp + 2 * (p - p0)
        X = lambda p: base + 2 * p
        for p in ps: A(f'v_pk_mul_f32 {v(T(p),2)}, {v(X(p),2)}, {s(S_PAIR,2)}')
        for p in ps:
            A(f'v_exp_f32 {v(T(p))}, {v(T(p))} clamp')
            A(f'v_exp_f32 {v(T(p)+1)}, {v(T(p)+1)} clamp')
        for p in ps:
            A(f'v_max_f32 {v(X(p))}, 0, {v(X(p))}')
            A(f'v_max_f32 {v(X(p)+1)}, 0, {v(X(p)+1)}')
        for p in ps: A(f'v_pk_add_f32 {v(T(p),2)}, {v(T(p),2)}, {s(S_PAIR+2,2)}')
        for p in ps: A(f'v_pk_add_f32 {v(X(p),2)}, {v(X(p),2)}, {v(T(p),2)}')

def phi_consts(A):
    A(f's_mov_b32 s{S_PAIR}, {hex(f2u(LOG2E))}'); A(f's_mov_b32 s{S_PAIR+1}, {hex(f2u(LOG2E))}')
    A(f's_mov_b32 s{S_PAIR+2}, {hex(f2u(1e-6))}'); A(f's_mov_b32 s{S_PAIR+3}, {hex(f2u(1e-6))}')

def XF(tb2, ks): return (tb2 * 16 + ks) * 4

def p1_x_addr(A):
    T0, T1, T2, T3 = V_T, V_T+1, V_T+2, V_T+3
    A(f'v_lshrrev_b32 {v(T0)}, 3, v0')
    A(f'v_and_b32 {v(T1)}, 7, v0')
    A(f'v_lshrrev_b32 {v(T2)}, 4, v0')
    A(f'v_and_b32 {v(T3)}, 15, v0')
    A(f's_lshl_b32 s{S_A}, s9, 17')
    A(f's_lshl_b32 s{S_B}, s6, 14')
    A(f's_add_u32 s{S_A}, s{S_A}, s{S_B}')
    A(f'v_xor_b32 {v(V_XD)}, {v(T1)}, {v(T2)}')
    A(f'v_lshlrev_b32 {v(V_XD)}, 4, {v(V_XD)}')
    A(f'v_lshl_add_u32 {v(V_XD)}, {v(T0)}, 10, {v(V_XD)}')
    A(f'v_add_u32 {v(V_XD)}, s{S_A}, {v(V_XD)}')
    A(f'v_xor_b32 {v(V_XD+1)}, 64, {v(V_XD)}')
    A(f'v_add_u32 {v(V_XD+1)}, {8192-1024}, {v(V_XD+1)}')

def p1_b_dma_addr(A, typ):
    T0, T1, T2, T3, T4, T5 = V_T, V_T+1, V_T+2, V_T+3, V_T+4, V_T+5
    A(f's_and_b32 s{S_C}, s6, 1'); A(f's_lshl_b32 s{S_C}, s{S_C}, 2')
    A(f'v_lshrrev_b32 {v(T4)}, 1, {v(T3)}')
    A(f'v_xor_b32 {v(T4)}, {v(T4)}, {v(T2)}')
    A(f'v_xor_b32 {v(T4)}, s{S_C}, {v(T4)}')
    A(f'v_and_b32 {v(T5)}, 1, v0')
    if typ == 'qkv':
        A(f'v_lshlrev_b32 {v(V_B0D)}, 5, {v(T4)}')
        A(f'v_lshl_add_u32 {v(V_B0D)}, {v(T5)}, 4, {v(V_B0D)}')
        A(f'v_lshrrev_b32 {v(T4)}, 2, {v(T4)}')
        A(f'v_mad_u32_u24 {v(V_B0D)}, {v(T4)}, s{S_K3}, {v(V_B0D)}')
        A(f'v_mad_u32_u24 {v(V_B0D)}, {v(T2)}, s{S_K4}, {v(V_B0D)}')
        A(f's_mul_i32 s{S_B}, s6, {8*3072}')
        A(f's_lshl_b32 s{S_D}, s10, 7')
        A(f's_add_u32 s{S_B}, s{S_B}, s{S_D}')
        A(f's_add_u32 s{S_D}, s{S_B}, 1024')
        A(f'v_add_u32 {v(V_B0D)}, s{S_D}, {v(V_B0D)}')
        A(f'v_add_u32 {v(V_B0D+1)}, {4*3072-1024}, {v(V_B0D)}')
        A(f's_lshr_b32 s{S_C}, s{S_C}, 1')
        A(f'v_lshrrev_b32 {v(T4)}, 1, {v(T1)}')
        A(f'v_and_b32 {v(V_B1D)}, 1, {v(T2)}')
        A(f'v_xor_b32 {v(T4)}, {v(T4)}, {v(V_B1D)}')
        A(f'v_xor_b32 {v(T4)}, s{S_C}, {v(T4)}')
        A(f'v_lshlrev_b32 {v(T4)}, 5, {v(T4)}')
        A(f'v_lshl_add_u32 {v(T4)}, {v(T5)}, 4, {v(T4)}')
        A(f'v_mad_u32_u24 {v(T4)}, {v(T0)}, s{S_K4}, {v(T4)}')
        A(f'v_add_u32 {v(V_B1D)}, s{S_B}, {v(T4)}')
    else:
        A(f'v_lshlrev_b32 {v(T4)}, 5, {v(T4)}')
        A(f'v_lshl_add_u32 {v(T4)}, {v(T5)}, 4, {v(T4)}')
        A(f's_mul_i32 s{S_B}, s6, {8*2752}')
        A(f'v_mul_u32_u24 {v(T5)}, 2752, {v(T2)}')
        for (sc, VD) in ((11, V_B0D), (12, V_B1D)):
            A(f's_add_u32 s{S_D}, s{S_B}, s{sc}')
            A(f'v_add_u32 {v(VD)}, s{S_D}, {v(T5)}')
            A(f'v_add_u32 {v(VD+1)}, {4*2752}, {v(VD)}')
            A(f'v_and_b32 {v(VD)}, 0xffffff80, {v(VD)}')
            A(f'v_and_b32 {v(VD+1)}, 0xffffff80, {v(VD+1)}')
            A(f'v_add_u32 {v(VD)}, {v(VD)}, {v(T4)}')
            A(f'v_add_u32 {v(VD+1)}, {v(VD+1)}, {v(T4)}')
            A(f'v_subrev_u32 {v(VD+1)}, 1024, {v(VD+1)}')

def p1_read_addr(A, typ):
    T0, T1, T2, T3, T4, T5 = V_T, V_T+1, V_T+2, V_T+3, V_T+4, V_T+5
    A(f'v_lshrrev_b32 {v(T4)}, 1, {v(T3)}')
    A(f'v_xor_b32 {v(T4)}, {v(T4)}, {v(T2)}')
    A(f'v_lshlrev_b32 {v(T4)}, 4, {v(T4)}')
    A(f'v_lshl_add_u32 {v(T4)}, {v(T3)}, 7, {v(T4)}')
    A(f's_lshl_b32 s{S_B}, s7, 12')
    A(f'v_add_u32 {v(V_XR)}, s{S_B}, {v(T4)}')
    A(f'v_xor_b32 {v(V_XR+1)}, 64, {v(V_XR)}')
    RI, KEY, INR = V_TA, V_TA+1, V_TA+2
    A(f'v_lshrrev_b32 {v(RI)}, 2, {v(T3)}')
    A(f'v_and_b32 {v(KEY)}, 1, {v(T2)}')
    A(f'v_lshl_or_b32 {v(KEY)}, {v(KEY)}, 2, {v(RI)}')
    A(f'v_and_b32 {v(INR)}, 3, {v(T3)}')
    A(f'v_lshlrev_b32 {v(INR)}, 3, {v(INR)}')
    A(f'v_lshl_add_u32 {v(RI)}, {v(T2)}, 3, {v(RI)}')
    if typ == 'qkv':
        A(f'v_lshl_add_u32 {v(T5)}, {v(RI)}, 8, {v(INR)}')
        A(f's_lshl_b32 s{S_B}, s8, 1')
        A(f'v_xor_b32 {v(T4)}, s{S_B}, {v(KEY)}')
        for bi in range(4):
            x = [0, 1, 4, 5][bi]
            if x: A(f'v_xor_b32 {v(V_B0R+bi)}, {x}, {v(T4)}')
            else: A(f'v_mov_b32 {v(V_B0R+bi)}, {v(T4)}')
            A(f'v_lshl_add_u32 {v(V_B0R+bi)}, {v(V_B0R+bi)}, 5, {v(T5)}')
        A(f'v_lshrrev_b32 {v(T5)}, 3, {v(T3)}')
        A(f'v_and_b32 {v(T4)}, 1, {v(T2)}')
        A(f'v_lshl_or_b32 {v(T5)}, {v(T4)}, 1, {v(T5)}')
        A(f'v_xor_b32 {v(T5)}, s{S_B}, {v(T5)}')
        A(f'v_lshl_add_u32 {v(T4)}, {v(RI)}, 7, {v(INR)}')
        A(f'v_lshl_add_u32 {v(V_B1R)}, {v(T5)}, 5, {v(T4)}')
        A(f'v_xor_b32 {v(V_B1R+1)}, 32, {v(V_B1R)}')
    else:
        A(f'v_lshl_add_u32 {v(T1)}, {v(RI)}, 8, {v(INR)}')
        A(f'v_mul_u32_u24 {v(T0)}, 2752, {v(RI)}')
        A(f's_mul_i32 s{S_B}, s8, 3')
        for (sc, VR) in ((11, V_B0R), (12, V_B1R)):
            A(f'v_add_u32 {v(T4)}, s{sc}, {v(T0)}')
            A(f'v_bfe_u32 {v(T4)}, {v(T4)}, 5, 2')
            A(f'v_add_u32 {v(T4)}, s{S_B}, {v(T4)}')
            for bi in range(3):
                A(f'v_add_u32 {v(T5)}, {bi}, {v(T4)}')
                A(f'v_and_b32 {v(T5)}, 7, {v(T5)}')
                A(f'v_xor_b32 {v(T5)}, {v(T5)}, {v(KEY)}')
                A(f'v_lshl_add_u32 {v(VR+bi)}, {v(T5)}, 5, {v(T1)}')

def p1_units(typ):
    U = []
    for c in range(8):
        U.append(('x', c)); U.append(('b0', c))
    for c in range(8):
        U.append(('b1', c))
    return U

def unit_addr(n): return (n % NU) * UNIT

def p1_issue_list(A, typ, vm, n, U):
    kind, c = U[n]
    base = unit_addr(n)
    rowbytes = 3072 if typ == 'qkv' else 2752
    if kind == 'x': VD, srd_, soff, cnt, lw = V_XD, SRD_X, c*128, 2, S_LW
    elif kind == 'b0': VD, srd_, soff, cnt, lw = V_B0D, SRD_WB, c*64*rowbytes, 2, S_LW
    elif typ == 'win': VD, srd_, soff, cnt, lw = V_B1D, SRD_WB, c*64*rowbytes, 2, S_LW
    else: VD, srd_, soff, cnt, lw = V_B1D, SRD_WB, c*64*rowbytes, 1, S_LW1
    out = []
    for e in range(cnt):
        def f(e=e):
            A(f's_add_u32 m0, s{lw}, {base}')
            A(f's_mov_b32 s{S_SOFF}, {soff}')
            A(f'buffer_load_dwordx4 {v(VD+e)}, {SR(srd_)}, s{S_SOFF} offen offset:{e*1024} lds')
            vm.issue(n)
        out.append(f)
    return out

def p1_blocks(A, typ, grp, vm, U, state, sync_at):
    nblk = {('qkv',0):4, ('qkv',1):2, ('win',0):3, ('win',1):3}[(typ, grp)]
    rowb = 128 if (typ, grp) == ('qkv', 1) else 256
    VR = V_B0R if grp == 0 else V_B1R
    ACC = V_ACC0 if grp == 0 else V_ACC1
    swapped = not (typ == 'qkv' and grp == 0)
    blocks = []
    for c in range(8):
        need = [2*c, 2*c+1] if grp == 0 else [16 + c]
        bbase = unit_addr(need[-1]); xb = unit_addr(need[0])
        hiB = (bbase + 16384 > 65536); hiX = (xb + 16384 > 65536)
        for kk in range(2):
            ks = 2*c + kk
            blk = dict(reads=[], mfmas=[], extra=[])
            if kk == 0:
                def pre(c=c, need=need, bbase=bbase, xb=xb, hiB=hiB, hiX=hiX, blk=blk):
                    if c in sync_at:
                        lastneed = sync_at[c]
                        A(f's_waitcnt vmcnt({vm.wait_n(lastneed + (16 if grp else 0) if grp else 2*lastneed+1)})')
                        A('s_barrier')
                    if hiB:
                        for bi in range(nblk): A(f'v_add_u32 {v(V_TA+bi)}, {bbase}, {v(VR+bi)}')
                    if grp == 0 and hiX:
                        for k in range(2): A(f'v_add_u32 {v(V_TA+4+k)}, {xb}, {v(V_XR+k)}')
                blk['pre'] = pre
                if c in sync_at:
                    freed_upto = need[0] - 1
                    lim = state.get('limit', len(U))
                    def extras(freed_upto=freed_upto):
                        pass
                    todo = []
                    while state['issued'] < min(len(U), lim) and state['issued'] - NU <= freed_upto and len(todo) < state.get('maxper', 99):
                        todo.append(state['issued']); state['issued'] += 1
                    for n in todo: blk['extra'] += p1_issue_list(A, typ, vm, n, U) if False else [('unit', n)]
            baddr = [((V_TA+bi, 0) if hiB else (VR+bi, bbase)) for bi in range(nblk)]
            if grp == 0:
                xa = (V_TA+4+kk, 0) if hiX else (V_XR+kk, xb)
                for tb2 in range(2):
                    blk['reads'].append(f'ds_read_b128 {a(XF(tb2,ks),4)}, {v(xa[0])} offset:{xa[1] + tb2*2048}')
            for bi in range(nblk):
                r0 = V_BF + kk*16 + bi*4
                off = baddr[bi][1] + kk*32*rowb
                blk['reads'].append(f'ds_read_b64_tr_b16 {v(r0,2)}, {v(baddr[bi][0])} offset:{off}')
                blk['reads'].append(f'ds_read_b64_tr_b16 {v(r0+2,2)}, {v(baddr[bi][0])} offset:{off + 4*rowb}')
            for bi in range(nblk):
                for tb2 in range(2):
                    acc = ACC + (bi*2 + tb2)*4
                    cin = '0' if ks == 0 else v(acc,4)
                    xf = a(XF(tb2,ks),4); bf = v(V_BF + kk*16 + bi*4, 4)
                    blk['mfmas'].append(f'v_mfma_f32_16x16x32_bf16 {v(acc,4)}, {bf}, {xf}, {cin}' if swapped
                                        else f'v_mfma_f32_16x16x32_bf16 {v(acc,4)}, {xf}, {bf}, {cin}')
            blocks.append(blk)
    for blk in blocks:
        ex = []
        for e in blk['extra']:
            ex += p1_issue_list(A, typ, vm, e[1], U)
        blk['extra'] = ex
    return blocks

def ws_store(A, n, data, vaddr, soff, flags, off=0):
    nm = {1: 'dword', 2: 'dwordx2', 4: 'dwordx4'}[n]
    A(f'buffer_store_{nm} {v(data,n)}, {v(vaddr)}, {SR(SRD_WS)}, {soff} offen offset:{off} {flags}')

def p1_qkv_epi0(A, vm, SF):
    phi_consts(A)
    phi_block(A, V_ACC0, 16, V_BF)
    stamp(A, 'e0gelu')
    PK = V_BF + 8; PV = V_BF + 16; ONE = V_BF + 24; D = V_ACC1
    for hh in range(2):
        for tb2 in range(2):
            k = V_ACC0 + (hh*2+tb2)*4; vv = V_ACC0 + ((2+hh)*2+tb2)*4
            A(f'v_cvt_pk_bf16_f32 {v(PK+hh*4+tb2*2)}, {v(k)}, {v(k+1)}')
            A(f'v_cvt_pk_bf16_f32 {v(PK+hh*4+tb2*2+1)}, {v(k+2)}, {v(k+3)}')
            A(f'v_cvt_pk_bf16_f32 {v(PV+hh*4+tb2*2)}, {v(vv)}, {v(vv+1)}')
            A(f'v_cvt_pk_bf16_f32 {v(PV+hh*4+tb2*2+1)}, {v(vv+2)}, {v(vv+3)}')
    for i in range(4): A(f'v_mov_b32 {v(ONE+i)}, 0x3f803f80')
    for hh in range(2):
        A(f'v_mfma_f32_16x16x32_bf16 {v(D+hh*8,4)}, {v(PK+hh*4,4)}, {v(PV+hh*4,4)}, 0')
        A(f'v_mfma_f32_16x16x32_bf16 {v(D+hh*8+4,4)}, {v(PK+hh*4,4)}, {v(ONE,4)}, 0')
    T = V_T
    A(f's_lshl_b32 s{S_A}, s8, 13'); A(f's_lshl_b32 s{S_B}, s7, 10')
    A(f's_add_u32 s{S_A}, s{S_A}, s{S_B}'); A(f's_add_u32 s{S_A}, s{S_A}, {SCR}')
    A(f'v_lshlrev_b32 {v(T)}, 4, v0')
    A(f'v_add_u32 {v(T+1)}, s{S_A}, {v(T)}')
    for hh in range(2):
        A(f'ds_write_b128 {v(T+1)}, {v(D+hh*8,4)} offset:{hh*4096}')
    A(f's_lshl_b32 s{S_A}, s9, 2'); A(f's_add_u32 s{S_A}, s{S_A}, s7'); A(f's_lshl_b32 s{S_A}, s{S_A}, 5')
    A(f's_lshl_b32 s{S_B}, s10, 2'); A(f's_add_u32 s{S_A}, s{S_A}, s{S_B}')
    A(f's_lshl_b32 s{S_B}, s8, 1'); A(f's_add_u32 s{S_A}, s{S_A}, s{S_B}')
    A(f's_lshl_b32 s{S_A}, s{S_A}, 6'); A(f's_add_u32 s{S_A}, s{S_A}, {KZ}')
    A(f'v_and_b32 {v(T+2)}, 0x30, v0')
    A(f's_mov_b64 s[{S_EX}:{S_EX+1}], exec')
    A(f's_mov_b32 exec_lo, 0x00010001'); A(f's_mov_b32 exec_hi, 0x00010001')
    for hh in range(2):
        A(f'buffer_store_dwordx4 {v(D+hh*8+4,4)}, {v(T+2)}, {SR(SRD_WS)}, s{S_A} offen offset:{hh*64} {SF}')
    vm.issue('kz', 2)
    A(f's_mov_b64 exec, s[{S_EX}:{S_EX+1}]')
    A('s_waitcnt lgkmcnt(0)')

def p1_qkv_epi0b(A, vm, SF):
    T = V_T
    A(f's_lshl_b32 s{S_A}, s7, 12'); A(f's_lshl_b32 s{S_B}, s8, 3'); A(f's_add_u32 s{S_A}, s{S_A}, s{S_B}')
    A(f's_add_u32 s{S_A}, s{S_A}, {SCR}')
    A(f'v_lshlrev_b32 {v(T)}, 4, v0')
    A(f'v_add_u32 {v(T+1)}, s{S_A}, {v(T)}')
    R = V_ACC0
    for i in range(4): A(f'ds_read_b64 {v(R+2*i,2)}, {v(T+1)} offset:{i*1024}')
    A('s_waitcnt lgkmcnt(0)')
    A(f'v_pk_add_f32 {v(R,2)}, {v(R,2)}, {v(R+2,2)}')
    A(f'v_pk_add_f32 {v(R+4,2)}, {v(R+4,2)}, {v(R+6,2)}')
    A(f'v_pk_add_f32 {v(R,2)}, {v(R,2)}, {v(R+4,2)}')
    A(f's_lshl_b32 s{S_A}, s9, 5'); A(f's_lshl_b32 s{S_C}, s10, 2'); A(f's_add_u32 s{S_A}, s{S_A}, s{S_C}')
    A(f's_add_u32 s{S_A}, s{S_A}, s7'); A(f's_lshl_b32 s{S_A}, s{S_A}, 10'); A(f's_add_u32 s{S_A}, s{S_A}, {KVP}')
    A(f's_add_u32 s{S_A}, s{S_A}, s{S_B}')
    ws_store(A, 2, R, T, f's{S_A}', SF)
    vm.issue('kvp', 1)

def p1_qkv_epi1(A, vm, SF):
    T = V_T
    A(f'v_lshlrev_b32 {v(T)}, 3, v0')
    A(f's_lshl_b32 s{S_A}, s10, 2'); A(f's_lshl_b32 s{S_B}, s8, 1'); A(f's_add_u32 s{S_A}, s{S_A}, s{S_B}')
    A(f's_lshl_b32 s{S_A}, s{S_A}, 7')
    A(f's_lshl_b32 s{S_B}, s9, 3'); A(f's_add_u32 s{S_A}, s{S_A}, s{S_B}')
    A(f's_lshl_b32 s{S_B}, s7, 1'); A(f's_add_u32 s{S_A}, s{S_A}, s{S_B}')
    A(f's_lshl_b32 s{S_A}, s{S_A}, 9'); A(f's_add_u32 s{S_A}, s{S_A}, {QO}')
    for hh in range(2):
        for tb2 in range(2):
            q = V_ACC1 + (hh*2+tb2)*4
            P = V_BF + (hh*2+tb2)*2
            A(f'v_cvt_pk_bf16_f32 {v(P)}, {v(q)}, {v(q+1)}')
            A(f'v_cvt_pk_bf16_f32 {v(P+1)}, {v(q+2)}, {v(q+3)}')
        A(f's_add_u32 s{S_B}, s{S_A}, {hh*128*512}')
        for tb2 in range(2):
            ws_store(A, 2, V_BF + (hh*2+tb2)*2, T, f's{S_B}', SF, off=tb2*512)
    vm.issue('q', 4)

def p1_win_epi0(A, vm, SF):
    c1v = V_BF + 30
    gelu_consts(A, c1v)
    gelu_block(A, V_ACC0, 24, V_BF, c1v)
    stamp(A, 'e0gelu')
    ST = V_BF + 8
    P1 = [ST, ST+2]; P2 = [ST+4, ST+6]
    for i in range(8): A(f'v_mov_b32 {v(ST+i)}, 0')
    for bi in range(3):
        L = A.label('st')
        A(f's_cmp_le_u32 s13, {bi}'); A(f's_cbranch_scc1 {L}')
        for tb2 in range(2):
            z = V_ACC0 + (bi*2+tb2)*4
            for h in range(2):
                A(f'v_pk_add_f32 {v(P1[tb2],2)}, {v(P1[tb2],2)}, {v(z+2*h,2)}')
                A(f'v_pk_fma_f32 {v(P2[tb2],2)}, {v(z+2*h,2)}, {v(z+2*h,2)}, {v(P2[tb2],2)}')
        A(f'{L}:')
    a0, a1, b0, b1 = ST+8, ST+9, ST+10, ST+11
    A(f'v_add_f32 {v(a0)}, {v(P1[0])}, {v(P1[0]+1)}')
    A(f'v_add_f32 {v(a1)}, {v(P1[1])}, {v(P1[1]+1)}')
    A(f'v_add_f32 {v(b0)}, {v(P2[0])}, {v(P2[0]+1)}')
    A(f'v_add_f32 {v(b1)}, {v(P2[1])}, {v(P2[1]+1)}')
    A(f'v_permlane32_swap_b32 {v(a0)}, {v(a1)}')
    A(f'v_permlane32_swap_b32 {v(b0)}, {v(b1)}')
    A(f'v_add_f32 {v(a0)}, {v(a0)}, {v(a1)}')
    A(f'v_add_f32 {v(b0)}, {v(b0)}, {v(b1)}')
    A(f'v_permlane16_swap_b32 {v(a0)}, {v(b0)}')
    A(f'v_add_f32 {v(a0)}, {v(a0)}, {v(b0)}')
    T = V_T
    A(f'v_lshlrev_b32 {v(T)}, 2, v0')
    A(f's_lshl_b32 s{S_A}, s7, 8'); A(f's_add_u32 s{S_A}, s{S_A}, {SCR}')
    A(f'v_add_u32 {v(T+1)}, s{S_A}, {v(T)}')
    A(f'v_mov_b32 {v(T+6)}, {v(a0)}')
    L = A.label('w1')
    A('s_cmp_eq_u32 s8, 0'); A(f's_cbranch_scc1 {L}')
    A(f'ds_write_b32 {v(T+1)}, {v(a0)}')
    A('s_waitcnt lgkmcnt(0)')
    A(f'{L}:')

def p1_win_epi0b(A, vm, SF):
    T = V_T
    L = A.label('w0')
    A('s_cmp_lg_u32 s8, 0'); A(f's_cbranch_scc1 {L}')
    A(f'ds_read_b32 {v(T+2)}, {v(T+1)}')
    A(f's_lshl_b32 s{S_A}, s9, 2'); A(f's_add_u32 s{S_A}, s{S_A}, s7'); A(f's_lshl_b32 s{S_A}, s{S_A}, 3')
    A(f's_add_u32 s{S_A}, s{S_A}, s14'); A(f's_lshl_b32 s{S_A}, s{S_A}, 8'); A(f's_add_u32 s{S_A}, s{S_A}, {STATS}')
    A('s_waitcnt lgkmcnt(0)')
    A(f'v_add_f32 {v(T+2)}, {v(T+2)}, {v(T+6)}')
    ws_store(A, 1, T+2, T, f's{S_A}', 'sc1')
    A(f'{L}:')

def signal(A, soff_sgpr, tmp, srd_=None):
    srd_ = srd_ or CNT_SRD[0]
    A(f's_mov_b64 s[{S_EX}:{S_EX+1}], exec')
    A('s_mov_b64 exec, 1')
    A(f'v_mov_b32 {v(tmp)}, 1')
    A(f'v_mov_b32 {v(tmp+1)}, 0')
    A(f'buffer_atomic_add {v(tmp)}, {v(tmp+1)}, {SR(srd_)}, s{soff_sgpr} offen sc1')
    A(f's_mov_b64 exec, s[{S_EX}:{S_EX+1}]')

def poll(A, soff_sgpr, target, tmp, name, srd_=None):
    srd_ = srd_ or CNT_SRD[0]
    A(f'v_mov_b32 {v(tmp+1)}, 0')
    A(f's_mov_b32 s{S_F}, 0')
    L = A.label(name); LO = A.label(name + 'ok')
    A(f'{L}:')
    A(f'buffer_load_dword {v(tmp)}, {v(tmp+1)}, {SR(srd_)}, s{soff_sgpr} offen sc1')
    A('s_waitcnt vmcnt(0)')
    A(f'v_readfirstlane_b32 s{S_E}, {v(tmp)}')
    A(f's_add_u32 s{S_F}, s{S_F}, 1')
    A(f's_cmp_ge_u32 s{S_E}, {target}')
    A(f's_cbranch_scc1 {LO}')
    A(f's_cmp_lt_u32 s{S_F}, 200000')
    A(f's_cbranch_scc0 {LO}')
    A('s_sleep 1')
    A(f's_branch {L}')
    A(f'{LO}:')

def p1_win_epi1(A, vm, SF, cfg):
    T = V_T
    A(f'v_lshlrev_b32 {v(T)}, 3, v0')
    A(f's_lshl_b32 s{S_A}, s9, 3'); A(f's_lshl_b32 s{S_B}, s7, 1'); A(f's_add_u32 s{S_A}, s{S_A}, s{S_B}')
    A(f's_mul_i32 s{S_A}, s{S_A}, 43')
    A(f's_mul_i32 s{S_B}, s8, 3'); A(f's_add_u32 s{S_A}, s{S_A}, s{S_B}')
    A(f's_add_u32 s{S_A}, s{S_A}, s{S_K1}')
    A(f's_lshl_b32 s{S_A}, s{S_A}, 9'); A(f's_add_u32 s{S_A}, s{S_A}, {Z1}')
    for bi in range(3):
        L = A.label('z1')
        A(f's_cmp_le_u32 s13, {bi}'); A(f's_cbranch_scc1 {L}')
        for tb2 in range(2):
            z = V_ACC1 + (bi*2+tb2)*4
            P = V_BF + (bi*2+tb2)*2
            A(f'v_cvt_pk_bf16_f32 {v(P)}, {v(z)}, {v(z+1)}')
            A(f'v_cvt_pk_bf16_f32 {v(P+1)}, {v(z+2)}, {v(z+3)}')
        for tb2 in range(2):
            P = V_BF + (bi*2+tb2)*2
            A(f's_add_u32 s{S_B}, s{S_A}, {bi*512 + tb2*43*512}')
            ws_store(A, 2, P, T, f's{S_B}', SF)
        A(f'{L}:')
    stamp(A, 'e1z1')
    L = A.label('gate')
    A('s_cmp_lg_u32 s14, 7'); A(f's_cbranch_scc1 {L}')
    A('s_cmp_eq_u32 s8, 0'); A(f's_cbranch_scc1 {L}')
    srd(A, SRD_M, P_GW, 1024)
    A(f'v_and_b32 {v(T+1)}, 0x30, v0')
    G = V_BF
    for half in range(2):
        for k in range(8):
            A(f'buffer_load_dwordx4 {v(G+4*k,4)}, {v(T+1)}, {SR(SRD_M)}, 0 offen offset:{(half*8+k)*64}')
        A('s_waitcnt vmcnt(0)')
        for k in range(8):
            ks = half*8 + k
            for tb2 in range(2):
                acc = V_ACC1 + tb2*4
                cin = '0' if ks == 0 else v(acc,4)
                A(f'v_mfma_f32_16x16x32_bf16 {v(acc,4)}, {a(XF(tb2,ks),4)}, {v(G+4*k,4)}, {cin}')
    for i in range(8): A(f'v_mul_f32 {v(V_ACC1+i)}, {hex(f2u(-LOG2E))}, {v(V_ACC1+i)}')
    for i in range(8): A(f'v_exp_f32 {v(V_ACC1+i)}, {v(V_ACC1+i)}')
    for i in range(8): A(f'v_add_f32 {v(V_ACC1+i)}, 1.0, {v(V_ACC1+i)}')
    for i in range(8): A(f'v_rcp_f32 {v(V_ACC1+i)}, {v(V_ACC1+i)}')
    A(f's_lshl_b32 s{S_A}, s9, 9'); A(f's_lshl_b32 s{S_B}, s7, 7'); A(f's_add_u32 s{S_A}, s{S_A}, s{S_B}')
    A(f's_add_u32 s{S_A}, s{S_A}, {GATE}')
    A(f's_mov_b64 s[{S_EX}:{S_EX+1}], exec')
    A(f's_mov_b32 exec_lo, 0x00010001'); A(f's_mov_b32 exec_hi, 0x00010001')
    for tb2 in range(2):
        A(f'buffer_store_dwordx4 {v(V_ACC1+4*tb2,4)}, {v(T+1)}, {SR(SRD_WS)}, s{S_A} offen offset:{tb2*64} {SF}')
    A(f's_mov_b64 exec, s[{S_EX}:{S_EX+1}]')
    A(f'{L}:')
    A(f's_lshl_b32 s{S_POLL}, s9, {cfg["cnt_shift"]}'); A(f's_add_u32 s{S_POLL}, s{S_POLL}, {cfg["cnt_stats"]}')
    poll(A, S_POLL, 32, T+2, 'pst')
    stamp(A, 'e1poll')
    ST = V_BF
    A(f'v_lshlrev_b32 {v(T+2)}, 2, v0')
    A(f's_lshl_b32 s{S_A}, s9, 2'); A(f's_add_u32 s{S_A}, s{S_A}, s7'); A(f's_lshl_b32 s{S_A}, s{S_A}, 11')
    A(f's_add_u32 s{S_A}, s{S_A}, {STATS}')
    for p in range(8):
        A(f'buffer_load_dword {v(ST+p)}, {v(T+2)}, {SR(SRD_WS)}, s{S_A} offen offset:{p*256} sc1')
    A(f'v_and_b32 {v(T+3)}, 15, v0'); A(f'v_lshrrev_b32 {v(T+4)}, 4, v0')
    A(f'v_lshlrev_b32 {v(T+4)}, 2, {v(T+4)}')
    A(f'v_sub_u32 {v(T+3)}, {v(T+3)}, {v(T+4)}')
    A(f'v_mov_b32 {v(T+4)}, 0x3f80')
    A(f'v_mov_b32 {v(T+5)}, 0x3f800000')
    for half in range(2):
        A(f'v_cmp_eq_u32 vcc, {2*half}, {v(T+3)}')
        A(f'v_cndmask_b32 {v(V_ID+half)}, 0, {v(T+4)}, vcc')
        A(f'v_cmp_eq_u32 vcc, {2*half+1}, {v(T+3)}')
        A(f'v_cndmask_b32 {v(V_ID+half)}, {v(V_ID+half)}, {v(T+5)}, vcc')
    A('s_waitcnt vmcnt(0)')
    stamp(A, 'e1ld')
    for (x, y) in ((0,1),(2,3),(4,5),(6,7),(0,2),(4,6),(0,4)):
        A(f'v_add_f32 {v(ST+x)}, {v(ST+x)}, {v(ST+y)}')
    A(f'v_mul_f32 {v(ST)}, {hex(f2u(1.0/688.0))}, {v(ST)}')
    A(f'v_mov_b32 {v(ST+1)}, {v(ST)}')
    A(f'v_permlane16_swap_b32 {v(ST)}, {v(ST+1)}')
    A(f'v_fma_f32 {v(ST+1)}, -{v(ST)}, {v(ST)}, {v(ST+1)}')
    A(f'v_add_f32 {v(ST+1)}, {hex(f2u(1e-5))}, {v(ST+1)}')
    A(f'v_rsq_f32 {v(ST+1)}, {v(ST+1)}')
    A(f'v_mul_f32 {v(ST)}, {v(ST)}, {v(ST+1)}')
    A(f'v_mov_b32 {v(ST+2)}, {v(ST)}'); A(f'v_mov_b32 {v(ST+3)}, {v(ST+1)}')
    A(f'v_permlane32_swap_b32 {v(ST)}, {v(ST+2)}')
    A(f'v_permlane32_swap_b32 {v(ST+1)}, {v(ST+3)}')
    RS = [ST+4, ST+6]; MS = [ST+8, ST+10]
    for tb2 in range(2):
        for h in range(2):
            A(f'v_mov_b32 {v(RS[tb2]+h)}, {v(ST+1+2*tb2)}')
            A(f'v_mov_b32 {v(MS[tb2]+h)}, {v(ST+2*tb2)}')
    A(f'v_lshlrev_b32 {v(T)}, 4, v0')
    A(f's_mul_i32 s{S_B}, s8, 3'); A(f's_add_u32 s{S_A}, s{S_B}, s{S_K2}')
    A(f's_lshl_b32 s{S_A}, s{S_A}, 6')
    A(f's_lshl_b32 s{S_B}, s9, 2'); A(f's_add_u32 s{S_A}, s{S_A}, s{S_B}'); A(f's_add_u32 s{S_A}, s{S_A}, s7')
    A(f's_lshl_b32 s{S_A}, s{S_A}, 10'); A(f's_add_u32 s{S_A}, s{S_A}, {Z2T}')
    PK = V_BF + 12
    for bi in range(3):
        L = A.label('z2')
        A(f's_cmp_le_u32 s13, {bi}'); A(f's_cbranch_scc1 {L}')
        for tb2 in range(2):
            z = V_ACC0 + (bi*2+tb2)*4
            for h in range(2):
                A(f'v_pk_fma_f32 {v(z+2*h,2)}, {v(z+2*h,2)}, {v(RS[tb2],2)}, {v(MS[tb2],2)} neg_lo:[0,0,1] neg_hi:[0,0,1]')
            A(f'v_cvt_pk_bf16_f32 {v(PK+tb2*2)}, {v(z)}, {v(z+1)}')
            A(f'v_cvt_pk_bf16_f32 {v(PK+tb2*2+1)}, {v(z+2)}, {v(z+3)}')
        D = V_ACC1 + bi*8
        for tb2 in range(2):
            A(f'v_mfma_f32_16x16x16_bf16 {v(D+tb2*4,4)}, {v(PK+tb2*2,2)}, {v(V_ID,2)}, 0')
        A(f'{L}:')
    for bi in range(3):
        L = A.label('z2s')
        A(f's_cmp_le_u32 s13, {bi}'); A(f's_cbranch_scc1 {L}')
        D = V_ACC1 + bi*8
        P = V_BF + 16 + bi*4
        for tb2 in range(2):
            A(f'v_cvt_pk_bf16_f32 {v(P+tb2*2)}, {v(D+tb2*4)}, {v(D+tb2*4+1)}')
            A(f'v_cvt_pk_bf16_f32 {v(P+tb2*2+1)}, {v(D+tb2*4+2)}, {v(D+tb2*4+3)}')
        A(f's_add_u32 s{S_B}, s{S_A}, {bi*65536}')
        ws_store(A, 4, P, T, f's{S_B}', SF)
        A(f'{L}:')

def p1_decode(A):
    A('s_and_b32 s60, s2, 7'); A('s_lshr_b32 s61, s2, 3')
    A('s_and_b32 s62, s60, 1'); A('s_lshl_b32 s62, s62, 3'); A('s_and_b32 s63, s61, 7'); A('s_add_u32 s9, s62, s63')
    A('s_lshr_b32 s62, s60, 1'); A('s_lshl_b32 s62, s62, 2'); A('s_lshr_b32 s63, s61, 3'); A('s_add_u32 s10, s62, s63')

def emit_p1(A, cfg):
    SF = cfg['sf']
    p1_decode(A)
    p1_x_addr(A)
    A('s_waitcnt lgkmcnt(0)')
    srd(A, SRD_X, P_X, 2048*1024)
    srd(A, SRD_WS, P_WS, WS_USED)
    if CNT_SRD[0] == SRD_DBG: srd(A, SRD_DBG, P_DBG, 256)
    LW = A.label('p1win'); LE = A.label('p1end')
    A('s_cmp_ge_u32 s10, 8'); A(f's_cbranch_scc1 {LW}')
    for typ in ('qkv', 'win'):
        U = p1_units(typ)
        vm = VM()
        if typ == 'qkv':
            srd(A, SRD_WB, P_WQKV, 512*3072)
            A(f's_movk_i32 s{S_K3}, 896'); A(f's_movk_i32 s{S_K4}, 3072')
        else:
            A(f'{LW}:')
            srd(A, SRD_WB, P_WIN, 512*2752)
            A('s_sub_u32 s14, s10, 8')
            A('s_mul_i32 s11, s14, 192'); A('s_mov_b32 s12, s11'); A('s_add_u32 s11, s11, 1408')
            A(f's_mul_i32 s{S_K1}, s14, 6'); A(f's_add_u32 s{S_K2}, s{S_K1}, 1')
            A('s_mov_b32 s13, 3')
            L7 = A.label('lo')
            A('s_cmp_lg_u32 s14, 7'); A(f's_cbranch_scc1 {L7}')
            A('s_mov_b32 s11, 1376'); A('s_mov_b32 s12, 1344')
            A(f's_mov_b32 s{S_K1}, 42'); A(f's_mov_b32 s{S_K2}, 0')
            A('s_xor_b32 s13, s8, 1')
            A(f'{L7}:')
        if typ == 'win': del _stamp_names[mark:]
        else: mark = len(_stamp_names)
        stamp(A, 'start')
        for f in p1_issue_list(A, typ, vm, 0, U): f()
        p1_b_dma_addr(A, typ)
        NPRO = cfg.get('npro', 4)
        for n in range(1, NPRO):
            for f in p1_issue_list(A, typ, vm, n, U): f()
        stamp(A, 'pro')
        p1_read_addr(A, typ)
        stamp(A, 'addr')
        state = dict(issued=NPRO, maxper=cfg.get('maxper', 3))
        blocks = p1_blocks(A, typ, 0, vm, U, state, {c: c for c in range(8)})
        if PROF_ON:
            for c in range(8): blocks[2*c+1]['post'] = (lambda c=c: stamp(A, f'g0s{c}'))
        pipeline(A, blocks)
        if typ == 'qkv': p1_qkv_epi0(A, vm, SF)
        else: p1_win_epi0(A, vm, SF)
        stamp(A, 'epi0')
        state['maxper'] = 99
        sync1 = cfg.get('sync1', {0: 0, 1: 3, 4: 7})
        blocks = p1_blocks(A, typ, 1, vm, U, state, sync1)
        pre0 = blocks[0]['pre']
        def pre0b():
            pre0()
            if typ == 'qkv': p1_qkv_epi0b(A, vm, SF)
            else: p1_win_epi0b(A, vm, SF)
        blocks[0]['pre'] = pre0b
        if typ == 'win':
            def sig():
                L = A.label('sig')
                A('s_cmp_lg_u32 s8, 0'); A(f's_cbranch_scc1 {L}')
                A('s_waitcnt vmcnt(0)')
                A(f's_lshl_b32 s{S_A}, s9, {cfg["cnt_shift"]}'); A(f's_add_u32 s{S_A}, s{S_A}, {cfg["cnt_stats"]}')
                signal(A, S_A, V_T)
                A(f'{L}:')
            blocks[7]['post'] = sig
        if PROF_ON:
            for c in (1, 3, 5, 7):
                old = blocks[2*c+1].get('post')
                blocks[2*c+1]['post'] = (lambda c=c, old=old: ((old() if old else None), stamp(A, f'g1s{c}')))
        pipeline(A, blocks)
        if typ == 'qkv':
            p1_qkv_epi1(A, vm, SF)
            stamp(A, 'e1z1'); stamp(A, 'e1poll'); stamp(A, 'e1ld')
        else: p1_win_epi1(A, vm, SF, cfg)
        stamp(A, 'epi1')
        if typ == 'qkv':
            A(f's_branch {LE}')
    A(f'{LE}:')

def build(mode='k1', sf=''):
    A = Asm()
    cfg = dict(sf=sf, cnt_stats=CNT, cnt_shift=8)
    kernels = []
    if mode == 'k1':
        kernels = ['p1_kernel']
    for k in kernels:
        A(f'; @launch kernel={k} grid=(256,1,1) block=(512,1,1) lds={LDS_BYTES}')
    A('.amdgcn_target "amdgcn-amd-amdhsa--gfx950"')
    A('.text')
    for k in kernels:
        kernel_header(A, k)
        setup(A, k)
        if k == 'p1_kernel': emit_p1(A, cfg)
        stamp_flush(A)
        A(f'{k}_exit:')
        A('s_endpgm')
    A('.section .rodata,"a"')
    for k in kernels:
        A('.p2align 6')
        A(kernel_desc(k, 256, accum=128))
    return A

if __name__ == '__main__':
    if 'prof' in sys.argv: PROF_ON = True; sys.argv.remove('prof')
    mode = sys.argv[1] if len(sys.argv) > 1 else 'k1'
    out = sys.argv[2] if len(sys.argv) > 2 else 'k.s'
    A = build(mode)
    t = A.text()
    open(out, 'w').write(t)
    if PROF_ON: open(out + '.names', 'w').write(' '.join(_stamp_names))
    print('lines', t.count(chr(10)), 'nops inserted', A.nops_inserted)
```

```python
from gen import *
import gen

P2_ACC = 4
P2_BF = 52
P2_WR = 100
P2_ZD = 108
P2_ZR = 111
P2_WD = 112
P2_T = 114
ZST = 24576
NZ = 6

def WF(tb2, s_): return (tb2*16 + s_) * 4

def p2_decode(A):
    A('s_and_b32 s60, s2, 7'); A('s_lshr_b32 s61, s2, 3')
    A('s_lshr_b32 s62, s60, 1'); A('s_lshl_b32 s62, s62, 3'); A('s_and_b32 s63, s61, 7'); A('s_add_u32 s9, s62, s63')
    A('s_and_b32 s62, s60, 1'); A('s_lshl_b32 s62, s62, 2'); A('s_lshr_b32 s63, s61, 3'); A('s_add_u32 s10, s62, s63')
    A('s_mul_i32 s11, s10, 6'); A('s_add_u32 s11, s11, 1')
    A('s_cmp_eq_u32 s10, 7'); A('s_cselect_b32 s11, 0, s11')

def p2_w_addr(A):
    T = P2_T
    A(f'v_lshrrev_b32 {v(T)}, 4, v0')
    A(f'v_and_b32 {v(T+1)}, 15, v0')
    A(f's_and_b32 s{S_A}, s6, 1'); A(f's_lshl_b32 s{S_A}, s{S_A}, 3')
    A(f'v_xor_b32 {v(T+2)}, {v(T+1)}, {v(T)}')
    A(f'v_xor_b32 {v(T+2)}, s{S_A}, {v(T+2)}')
    A(f'v_lshlrev_b32 {v(T+2)}, 4, {v(T+2)}')
    A(f'v_lshl_add_u32 {v(T+2)}, {v(T)}, 12, {v(T+2)}')
    A(f's_lshl_b32 s{S_A}, s9, 18'); A(f's_lshl_b32 s{S_B}, s6, 15'); A(f's_add_u32 s{S_A}, s{S_A}, s{S_B}')
    A(f'v_add_u32 {v(P2_WD)}, s{S_A}, {v(T+2)}')
    A(f'v_xor_b32 {v(P2_WD+1)}, 64, {v(P2_WD)}')
    A(f'v_add_u32 {v(P2_WD+1)}, {4*4096-1024}, {v(P2_WD+1)}')
    A(f'v_lshrrev_b32 {v(T+2)}, 1, {v(T)}')
    A(f'v_xor_b32 {v(T+2)}, {v(T+2)}, {v(T+1)}')
    A(f'v_lshlrev_b32 {v(T+2)}, 4, {v(T+2)}')
    A(f'v_and_b32 {v(T+3)}, 1, {v(T)}')
    A(f'v_lshl_add_u32 {v(T+2)}, {v(T+3)}, 3, {v(T+2)}')
    A(f'v_lshl_add_u32 {v(T+2)}, {v(T+1)}, 8, {v(T+2)}')
    A(f's_lshl_b32 s{S_A}, s8, 13')
    A(f'v_add_u32 {v(P2_WR)}, s{S_A}, {v(T+2)}')
    for i in range(1, 8):
        A(f'v_xor_b32 {v(P2_WR+i)}, {32*i}, {v(P2_WR)}')

W_ORDER = [0,4,8,12, 1,5,9,13, 2,6,10,14, 3,7,11,15]
def p2_w_issue_list(A, vm, k, slot):
    u = W_ORDER[k]
    out = []
    for e in range(2):
        def f(e=e):
            A(f's_add_u32 m0, s{S_LW}, {slot*UNIT}')
            A(f's_movk_i32 s{S_SOFF}, {256*u}')
            A(f'buffer_load_dwordx4 {v(P2_WD+e)}, {SR(SRD_WSP)}, s{S_SOFF} offen offset:{e*1024} lds')
            vm.issue(('w', k))
        out.append(f)
    return out

def p2_w_consume(A, r, slot0):
    T = P2_T
    A(f's_lshl_b32 s{S_A}, s7, 14'); A(f's_add_u32 s{S_A}, s{S_A}, {slot0*UNIT}')
    for i in range(8): A(f'v_add_u32 {v(T+i)}, s{S_A}, {v(P2_WR+i)}')
    n = 0
    for sp in range(4):
        for tb2 in range(2):
            d = WF(tb2, 4*r + sp)
            A(f'ds_read_b64 {a(d,2)}, {v(T+2*sp)} offset:{tb2*4096}')
            A(f'ds_read_b64 {a(d+2,2)}, {v(T+2*sp+1)} offset:{tb2*4096}')
            n += 2
            if n == 12: A('s_waitcnt lgkmcnt(6)')

def p2_z_addr(A):
    T = P2_T
    A(f'v_lshlrev_b32 {v(T)}, 4, v0')
    A(f's_mul_i32 s{S_A}, s8, 3'); A(f's_add_u32 s{S_A}, s{S_A}, s11'); A(f's_lshl_b32 s{S_A}, s{S_A}, 16')
    A(f's_lshl_b32 s{S_B}, s7, 14'); A(f's_add_u32 s{S_A}, s{S_A}, s{S_B}')
    for i in range(3):
        A(f's_add_u32 s{S_B}, s{S_A}, {i*65536 - i*1024}')
        A(f'v_add_u32 {v(P2_ZD+i)}, s{S_B}, {v(T)}')
    A(f's_mul_i32 s{S_A}, s7, 6144')
    A(f'v_add_u32 {v(P2_ZR)}, s{S_A}, {v(T)}')
    A(f's_mul_i32 s{S_K1}, s7, 6144'); A(f's_mul_i32 s{S_B}, s8, 3072'); A(f's_add_u32 s{S_K1}, s{S_K1}, s{S_B}')

def p2_z_issue_list(A, vm, st, nf, LF):
    out = []
    cnt = 3 if nf == 6 else 1
    for i in range(cnt):
        def f(i=i):
            L = None
            if nf == 1:
                L = A.label('zs'); A('s_cmp_lg_u32 s8, 0'); A(f's_cbranch_scc1 {L}')
            A(f's_add_u32 m0, s{S_K1}, {(st % NZ)*ZST}')
            A(f's_mov_b32 s{S_SOFF}, {Z2T + st*1024}')
            A(f'buffer_load_dwordx4 {v(P2_ZD+i)}, {SR(SRD_WS)}, s{S_SOFF} offen offset:{i*1024} {LF} lds')
            vm.issue(('z', st))
            if L: A(f'{L}:')
        out.append(f)
    return out

def p2_main(A, vm, nf, LF):
    blocks = []
    for st in range(16):
        blk = dict(reads=[], mfmas=[], extra=[])
        base = (st % NZ) * ZST
        hi = base + 6144 > 65535 - 6144
        def pre(st=st, base=base, hi=hi):
            A(f's_waitcnt vmcnt({vm.wait_n(("z", st))})')
            A('s_barrier')
            if hi: A(f'v_add_u32 {v(P2_T)}, {base}, {v(P2_ZR)}')
        blk['pre'] = pre
        if st + NZ - 1 < 16 and st >= 1:
            blk['extra'] = p2_z_issue_list(A, vm, st + NZ - 1, nf, LF)
        for fbi in range(nf):
            r0 = P2_BF + (st % 2)*24 + fbi*4
            if hi: blk['reads'].append(f'ds_read_b128 {v(r0,4)}, {v(P2_T)} offset:{fbi*1024}')
            else: blk['reads'].append(f'ds_read_b128 {v(r0,4)}, {v(P2_ZR)} offset:{base + fbi*1024}')
        for fbi in range(nf):
            for tb2 in range(2):
                acc = P2_ACC + (tb2*6+fbi)*4
                cin = '0' if st == 0 else v(acc,4)
                blk['mfmas'].append(f'v_mfma_f32_16x16x32_bf16 {v(acc,4)}, {v(P2_BF + (st%2)*24 + fbi*4,4)}, {a(WF(tb2,st),4)}, {cin}')
        blocks.append(blk)
    return blocks

def p2_epi_loads(A, job, J, LF, nf):
    T = P2_T
    A(f's_add_u32 s{S_A}, s7, {4*job}')
    A(f's_cmp_ge_u32 s{S_A}, 3'); A(f's_cselect_b32 s{S_B}, 1, 0')
    A(f's_mul_i32 s{S_C}, s{S_B}, 3'); A(f's_sub_u32 s{S_C}, s{S_A}, s{S_C}')
    A(f's_lshl_b32 s{S_D}, s9, 2'); A(f's_lshl_b32 s{S_E}, s8, 1'); A(f's_add_u32 s{S_D}, s{S_D}, s{S_E}'); A(f's_add_u32 s{S_D}, s{S_D}, s{S_B}')
    A(f's_mov_b32 s{S_K3+job}, s{S_D}'); A(f's_mov_b32 s{12+job}, s{S_C}')
    A(f's_mul_i32 s{S_E}, s{S_D}, 43'); A(f's_add_u32 s{S_E}, s{S_E}, s11'); A(f's_lshl_b32 s{S_C}, s{S_C}, 1'); A(f's_add_u32 s{S_E}, s{S_E}, s{S_C}')
    A(f's_lshl_b32 s{S_E}, s{S_E}, 9'); A(f's_add_u32 s{S_E}, s{S_E}, {Z1}')
    A(f'v_lshlrev_b32 {v(T)}, 3, v0')
    A(f'buffer_load_dwordx2 {v(J,2)}, {v(T)}, {SR(SRD_WS)}, s{S_E} offen {LF}')
    if nf == 6: A(f'buffer_load_dwordx2 {v(J+2,2)}, {v(T)}, {SR(SRD_WS)}, s{S_E} offen offset:512 {LF}')
    A(f'v_and_b32 {v(T+1)}, 15, v0')
    A(f'v_lshlrev_b32 {v(T+2)}, 2, {v(T+1)}')
    A(f's_lshl_b32 s{S_E}, s{S_D}, 6'); A(f's_add_u32 s{S_E}, s{S_E}, {GATE}')
    A(f'buffer_load_dword {v(J+4)}, {v(T+2)}, {SR(SRD_WS)}, s{S_E} offen {LF}')
    A(f'v_lshlrev_b32 {v(T+3)}, 1, {v(T+1)}')
    A(f's_lshl_b32 s{S_E}, s{S_D}, 5')
    A(f'buffer_load_ushort {v(J+5)}, {v(T+3)}, {SR(SRD_M)}, s{S_E} offen')

def p2_epilogue(A, nf, SF, LF):
    T = P2_T
    JA = P2_BF; JB = P2_BF + 8
    srd(A, SRD_M, P_BSP, 4096)
    if nf == 6:
        p2_epi_loads(A, 0, JA, LF, nf)
        L = A.label('jb'); A('s_cmp_ge_u32 s7, 2'); A(f's_cbranch_scc1 {L}')
        p2_epi_loads(A, 1, JB, LF, nf)
        A(f'{L}:')
        njobs = 2
    else:
        pass
    A('s_barrier')
    A(f'v_lshlrev_b32 {v(T+4)}, 4, v0')
    A(f's_mul_i32 s{S_A}, s8, 49152'); A(f's_lshl_b32 s{S_B}, s7, 11'); A(f's_add_u32 s{S_A}, s{S_A}, s{S_B}')
    A(f'v_add_u32 {v(T+5)}, s{S_A}, {v(T+4)}')
    if nf == 6:
        for tb2 in range(2):
            for fbi in range(6):
                phi = tb2*3 + fbi//2
                A(f'ds_write_b128 {v(T+5)}, {v(P2_ACC + (tb2*6+fbi)*4,4)} offset:{phi*8192 + (fbi%2)*1024}')
    else:
        for tb2 in range(2):
            A(f'ds_write_b128 {v(T+5)}, {v(P2_ACC + (tb2*6)*4,4)} offset:{tb2*8192}')
    A('s_waitcnt lgkmcnt(0)')
    A('s_barrier')
    c1v = P2_BF + 46
    gelu_consts(A, c1v)
    def job(j, J):
        R = P2_ACC
        A(f's_add_u32 s{S_A}, s7, {4*j}'); A(f's_lshl_b32 s{S_A}, s{S_A}, 13')
        A(f's_mul_i32 s{S_B}, s8, 49152'); A(f's_add_u32 s{S_A}, s{S_A}, s{S_B}')
        A(f'v_add_u32 {v(T+5)}, s{S_A}, {v(T+4)}')
        nb = 2 if nf == 6 else 1
        for b in range(nb):
            for k in range(4):
                A(f'ds_read_b128 {v(R + (b*4+k)*4,4)}, {v(T+5)} offset:{k*2048 + b*1024}')
        Z = P2_BF + 16
        A(f's_waitcnt vmcnt({j})')
        for b in range(nb):
            for h in range(2):
                src = J + b*2 + h
                A(f'v_lshlrev_b32 {v(Z+b*4+2*h)}, 16, {v(src)}')
                A(f'v_and_b32 {v(Z+b*4+2*h+1)}, 0xffff0000, {v(src)}')
        gelu_block(A, Z, 4*nb, P2_BF + 32, c1v)
        A(f'v_lshlrev_b32 {v(J+5)}, 16, {v(J+5)}')
        A(f'v_sub_f32 {v(J+4)}, 1.0, {v(J+4)}')
        A(f'v_mov_b32 {v(J+6)}, {v(J+5)}'); A(f'v_mov_b32 {v(J+7)}, {v(J+5)}')
        A(f'v_mov_b32 {v(J+5)}, {v(J+4)}')
        A('s_waitcnt lgkmcnt(0)')
        for b in range(nb):
            R0 = R + b*16
            for h in range(2):
                A(f'v_pk_add_f32 {v(R0+2*h,2)}, {v(R0+2*h,2)}, {v(R0+4+2*h,2)}')
                A(f'v_pk_add_f32 {v(R0+8+2*h,2)}, {v(R0+8+2*h,2)}, {v(R0+12+2*h,2)}')
            for h in range(2):
                A(f'v_pk_add_f32 {v(R0+2*h,2)}, {v(R0+2*h,2)}, {v(R0+8+2*h,2)}')
            for h in range(2):
                A(f'v_pk_add_f32 {v(R0+2*h,2)}, {v(R0+2*h,2)}, {v(J+6,2)}')
            for h in range(2):
                A(f'v_pk_mul_f32 {v(R0+2*h,2)}, {v(R0+2*h,2)}, {v(Z+b*4+2*h,2)}')
            for h in range(2):
                A(f'v_pk_mul_f32 {v(R0+2*h,2)}, {v(R0+2*h,2)}, {v(J+4,2)}')
            for h in range(2):
                A(f'v_cvt_pk_bf16_f32 {v(Z+8+b*2+h)}, {v(R0+2*h)}, {v(R0+2*h+1)}')
        if nf == 6:
            A(f's_mul_i32 s{S_A}, s{S_K3+j}, 21'); A(f's_mul_i32 s{S_B}, s10, 3'); A(f's_add_u32 s{S_A}, s{S_A}, s{S_B}')
            A(f's_add_u32 s{S_A}, s{S_A}, s{12+j}'); A(f's_lshl_b32 s{S_A}, s{S_A}, 10'); A(f's_add_u32 s{S_A}, s{S_A}, {UO}')
            ws_store(A, 4, Z+8, T+4, f's{S_A}', SF)
        else:
            A(f's_lshl_b32 s{S_A}, s{S_K3+j}, 9'); A(f's_add_u32 s{S_A}, s{S_A}, {U0}')
            A(f'v_lshlrev_b32 {v(T+6)}, 3, v0')
            ws_store(A, 2, Z+8, T+6, f's{S_A}', SF)
    if nf == 6:
        job(0, JA)
        L = A.label('jb2'); A('s_cmp_ge_u32 s7, 2'); A(f's_cbranch_scc1 {L}')
        job(1, JB)
        A(f'{L}:')
    else:
        L = A.label('lj'); A('s_cmp_ge_u32 s7, 2'); A(f's_cbranch_scc1 {L}')
        A(f's_lshl_b32 s{S_D}, s9, 2'); A(f's_lshl_b32 s{S_E}, s8, 1'); A(f's_add_u32 s{S_D}, s{S_D}, s{S_E}'); A(f's_add_u32 s{S_D}, s{S_D}, s7')
        A(f's_mov_b32 s{S_K3}, s{S_D}')
        A(f's_mul_i32 s{S_E}, s{S_D}, {43*512}'); A(f's_add_u32 s{S_E}, s{S_E}, {Z1}')
        A(f'v_lshlrev_b32 {v(T)}, 3, v0')
        A(f'buffer_load_dwordx2 {v(JA,2)}, {v(T)}, {SR(SRD_WS)}, s{S_E} offen {LF}')
        A(f'v_and_b32 {v(T+1)}, 15, v0'); A(f'v_lshlrev_b32 {v(T+2)}, 2, {v(T+1)}')
        A(f's_lshl_b32 s{S_E}, s{S_D}, 6'); A(f's_add_u32 s{S_E}, s{S_E}, {GATE}')
        A(f'buffer_load_dword {v(JA+4)}, {v(T+2)}, {SR(SRD_WS)}, s{S_E} offen {LF}')
        A(f'v_lshlrev_b32 {v(T+3)}, 1, {v(T+1)}'); A(f's_lshl_b32 s{S_E}, s{S_D}, 5')
        A(f'buffer_load_ushort {v(JA+5)}, {v(T+3)}, {SR(SRD_M)}, s{S_E} offen')
        job(0, JA)
        A(f'{L}:')

def p2_ojob(A, SF, LF):
    T = P2_T
    A('s_barrier')
    A(f's_lshr_b32 s12, s9, 1')
    A(f's_lshl_b32 s{S_A}, s12, 1'); A(f's_add_u32 s{S_A}, s{S_A}, s8')
    A(f's_lshl_b32 s{S_B}, s7, 7'); A(f's_add_u32 s{S_B}, s{S_B}, s{S_A}')
    A(f's_lshl_b32 s{S_B}, s{S_B}, 10'); A(f's_add_u32 s{S_B}, s{S_B}, {KVP}')
    A(f'v_lshlrev_b32 {v(T)}, 4, v0')
    R = P2_ACC
    for i in range(4):
        A(f'buffer_load_dwordx4 {v(R+4*i,4)}, {v(T)}, {SR(SRD_WS)}, s{S_B} offen {LF}')
        A(f's_add_u32 s{S_B}, s{S_B}, {32*1024}')
    A(f'v_and_b32 {v(T+1)}, 0x30, v0')
    A(f's_lshl_b32 s{S_B}, s7, 9'); A(f's_add_u32 s{S_B}, s{S_B}, s{S_A}')
    A(f's_lshl_b32 s{S_B}, s{S_B}, 6'); A(f's_add_u32 s{S_B}, s{S_B}, {KZ}')
    Zr = P2_BF
    for half in range(2):
        for i in range(8):
            A(f'buffer_load_dwordx4 {v(Zr+4*i,4)}, {v(T+1)}, {SR(SRD_WS)}, s{S_B} offen {LF}')
            A(f's_add_u32 s{S_B}, s{S_B}, {32*64}')
        A('s_waitcnt vmcnt(0)')
        ZA = R + 16 + half*4
        for i in (0, 2, 4, 6):
            for h in range(2): A(f'v_pk_add_f32 {v(Zr+4*i+2*h,2)}, {v(Zr+4*i+2*h,2)}, {v(Zr+4*i+4+2*h,2)}')
        for i in (0, 4):
            for h in range(2): A(f'v_pk_add_f32 {v(Zr+4*i+2*h,2)}, {v(Zr+4*i+2*h,2)}, {v(Zr+4*i+8+2*h,2)}')
        for h in range(2): A(f'v_pk_add_f32 {v(ZA+2*h,2)}, {v(Zr+2*h,2)}, {v(Zr+16+2*h,2)}')
    for h in range(2):
        A(f'v_pk_add_f32 {v(R+2*h,2)}, {v(R+2*h,2)}, {v(R+4+2*h,2)}')
        A(f'v_pk_add_f32 {v(R+8+2*h,2)}, {v(R+8+2*h,2)}, {v(R+12+2*h,2)}')
        A(f'v_pk_add_f32 {v(R+16+2*h,2)}, {v(R+16+2*h,2)}, {v(R+20+2*h,2)}')
    for h in range(2): A(f'v_pk_add_f32 {v(R+2*h,2)}, {v(R+2*h,2)}, {v(R+8+2*h,2)}')
    A(f's_lshl_b32 s{S_A}, s6, 11')
    A(f'v_add_u32 {v(T+2)}, s{S_A}, {v(T)}')
    A(f'ds_write_b128 {v(T+2)}, {v(R,4)}')
    A(f'ds_write_b128 {v(T+2)}, {v(R+16,4)} offset:1024')
    A('s_waitcnt lgkmcnt(0)')
    A('s_barrier')
    KV = [P2_ACC, P2_ACC+4]; ZZ = [P2_ACC+8, P2_ACC+12]
    for hh in range(2):
        for what, dst in ((0, KV[hh]), (1, ZZ[hh])):
            for k in range(4):
                A(f'ds_read_b128 {v(P2_BF+4*k,4)}, {v(T)} offset:{(hh*4+k)*2048 + what*1024}')
            A('s_waitcnt lgkmcnt(0)')
            for h in range(2):
                A(f'v_pk_add_f32 {v(P2_BF+2*h,2)}, {v(P2_BF+2*h,2)}, {v(P2_BF+4+2*h,2)}')
                A(f'v_pk_add_f32 {v(P2_BF+8+2*h,2)}, {v(P2_BF+8+2*h,2)}, {v(P2_BF+12+2*h,2)}')
            for h in range(2): A(f'v_pk_add_f32 {v(dst+2*h,2)}, {v(P2_BF+2*h,2)}, {v(P2_BF+8+2*h,2)}')
    KB = [P2_ACC+16, P2_ACC+18]; ZB = [P2_ACC+20, P2_ACC+22]
    for hh in range(2):
        for h in range(2):
            A(f'v_cvt_pk_bf16_f32 {v(KB[hh]+h)}, {v(KV[hh]+2*h)}, {v(KV[hh]+2*h+1)}')
            A(f'v_cvt_pk_bf16_f32 {v(ZB[hh]+h)}, {v(ZZ[hh]+2*h)}, {v(ZZ[hh]+2*h+1)}')
    A(f's_and_b32 s13, s9, 1'); A(f's_lshl_b32 s13, s13, 6'); A(f's_lshl_b32 s{S_A}, s6, 3'); A(f's_add_u32 s13, s13, s{S_A}')
    A(f'v_lshlrev_b32 {v(T+1)}, 3, v0')
    A(f'v_and_b32 {v(T+2)}, 15, v0'); A(f'v_lshlrev_b32 {v(T+2)}, 2, {v(T+2)}')
    Q = P2_BF
    G = P2_BF + 32
    A(f's_lshl_b32 s{S_A}, s12, 8'); A(f's_add_u32 s{S_A}, s{S_A}, s13'); A(f's_lshl_b32 s{S_A}, s{S_A}, 9'); A(f's_add_u32 s{S_A}, s{S_A}, {QO}')
    for hh in range(2):
        A(f's_add_u32 s{S_B}, s{S_A}, {hh*65536}')
        for i in range(8):
            A(f'buffer_load_dwordx2 {v(Q+(i*2+hh)*2,2)}, {v(T+1)}, {SR(SRD_WS)}, s{S_B} offen offset:{i*512} {LF}')
    A(f's_lshl_b32 s{S_B}, s13, 6'); A(f's_add_u32 s{S_B}, s{S_B}, {GATE}')
    for i in range(8):
        A(f'buffer_load_dword {v(G+i)}, {v(T+2)}, {SR(SRD_WS)}, s{S_B} offen offset:{i*64} {LF}')
    phi_consts(A)
    A('s_waitcnt vmcnt(0)')
    X = P2_ACC + 24
    N = P2_ACC + 32
    for i in range(8):
        for hh in range(2):
            for h in range(2):
                src = Q + (i*2+hh)*2 + h
                A(f'v_lshlrev_b32 {v(X+hh*4+2*h)}, 16, {v(src)}')
                A(f'v_and_b32 {v(X+hh*4+2*h+1)}, 0xffff0000, {v(src)}')
        phi_block(A, X, 8, P2_BF + 40)
        for hh in range(2):
            for h in range(2):
                A(f'v_cvt_pk_bf16_f32 {v(Q+(i*2+hh)*2+h)}, {v(X+hh*4+2*h)}, {v(X+hh*4+2*h+1)}')
        for hh in range(2):
            A(f'v_mfma_f32_16x16x16_bf16 {v(N+hh*4,4)}, {v(KB[hh],2)}, {v(Q+(i*2+hh)*2,2)}, 0')
            A(f'v_mfma_f32_16x16x16_bf16 {v(N+8+hh*4,4)}, {v(ZB[hh],2)}, {v(Q+(i*2+hh)*2,2)}, 0')
        for hh in range(2):
            A(f'v_add_f32 {v(N+8+hh*4)}, s{S_PAIR+2}, {v(N+8+hh*4)}')
        for hh in range(2):
            A(f'v_rcp_f32 {v(N+8+hh*4)}, {v(N+8+hh*4)}')
        for hh in range(2):
            A(f'v_mul_f32 {v(N+8+hh*4)}, {v(N+8+hh*4)}, {v(G+i)}')
            A(f'v_mov_b32 {v(N+8+hh*4+1)}, {v(N+8+hh*4)}')
        for hh in range(2):
            for h in range(2):
                A(f'v_pk_mul_f32 {v(N+hh*4+2*h,2)}, {v(N+hh*4+2*h,2)}, {v(N+8+hh*4,2)}')
        for hh in range(2):
            for h in range(2):
                A(f'v_cvt_pk_bf16_f32 {v(X+hh*2+h)}, {v(N+hh*4+2*h)}, {v(N+hh*4+2*h+1)}')
        A(f's_add_u32 s{S_A}, s13, {i}'); A(f's_lshl_b32 s{S_A}, s{S_A}, 4'); A(f's_add_u32 s{S_A}, s{S_A}, s12')
        A(f's_lshl_b32 s{S_A}, s{S_A}, 10'); A(f's_add_u32 s{S_A}, s{S_A}, {OO}')
        ws_store(A, 4, X, T, f's{S_A}', SF)

def emit_p2(A, cfg):
    SF = cfg['sf']; LF = cfg['lf']
    p2_decode(A)
    p2_w_addr(A)
    A('s_waitcnt lgkmcnt(0)')
    srd(A, SRD_WS, P_WS, WS_USED)
    srd(A, SRD_WSP, P_WSP, 2048*4096)
    vm = VM()
    stamp(A, 'p2start')
    for k in range(8):
        for f in p2_w_issue_list(A, vm, k, k): f()
    p2_z_addr(A)
    for r in range(4):
        A(f's_waitcnt vmcnt({vm.wait_n(("w", 4*r+3))})')
        A('s_barrier')
        p2_w_consume(A, r, (4*r) % 8)
        A('s_waitcnt lgkmcnt(0)')
        if r < 2:
            A('s_barrier')
            for k in range(8 + 4*r, 12 + 4*r):
                for f in p2_w_issue_list(A, vm, k, k % 8): f()
    A('s_barrier')
    stamp(A, 'p2w')
    LL = A.label('p2left'); LE = A.label('p2end')
    A('s_cmp_eq_u32 s10, 7'); A(f's_cbranch_scc1 {LL}')
    for nf in (6, 1):
        if nf == 1:
            A(f'{LL}:')
            del gen._stamp_names[mark:]
        else: mark = len(gen._stamp_names)
        vm = VM()
        for st in range(NZ):
            for f in p2_z_issue_list(A, vm, st, nf, LF): f()
        blocks = p2_main(A, vm, nf, LF)
        if gen.PROF_ON:
            for st in (3, 7, 11, 15): blocks[st]['post'] = (lambda st=st: stamp(A, f'p2s{st}'))
        pipeline(A, blocks)
        p2_epilogue(A, nf, SF, LF)
        stamp(A, 'p2epi')
        if nf == 1:
            p2_ojob(A, SF, LF)
        stamp(A, 'p2o')
        if nf == 6: A(f's_branch {LE}')
    A(f'{LE}:')


P3_A = 4
P3_ACC = 80
P3_BF = 96
P3_T = 112
P3_BR = 100
P3_BD = 104

def p3_decode(A):
    A('s_and_b32 s60, s2, 7'); A('s_lshr_b32 s61, s2, 3')
    A('s_lshl_b32 s62, s60, 2'); A('s_and_b32 s63, s61, 3'); A('s_add_u32 s9, s62, s63')
    A('s_lshr_b32 s10, s61, 2')

def p3_b_setup(A):
    T = P3_T
    A(f'v_lshrrev_b32 {v(T)}, 3, v0'); A(f'v_and_b32 {v(T+1)}, 7, v0'); A(f'v_lshrrev_b32 {v(T+2)}, 4, v0')
    A(f'v_lshrrev_b32 {v(T+3)}, 1, {v(T+1)}')
    A(f'v_xor_b32 {v(T+3)}, {v(T+3)}, {v(T+2)}')
    A(f'v_lshlrev_b32 {v(T+3)}, 5, {v(T+3)}')
    A(f'v_and_b32 {v(T+4)}, 1, v0')
    A(f'v_lshl_add_u32 {v(T+3)}, {v(T+4)}, 4, {v(T+3)}')
    A(f'v_lshl_add_u32 {v(T+3)}, {v(T)}, 10, {v(T+3)}')
    A(f's_lshl_b32 s{S_A}, s10, 7'); A(f's_lshl_b32 s{S_B}, s6, 13'); A(f's_add_u32 s{S_A}, s{S_A}, s{S_B}')
    A(f'v_add_u32 {v(P3_BD)}, s{S_A}, {v(T+3)}')
    A(f'v_and_b32 {v(T+4)}, 15, v0')
    A(f'v_lshrrev_b32 {v(T+5)}, 2, {v(T+4)}')
    A(f'v_lshl_add_u32 {v(T+5)}, {v(T+2)}, 2, {v(T+5)}')
    A(f'v_lshrrev_b32 {v(T+6)}, 1, {v(T+5)}'); A(f'v_and_b32 {v(T+6)}, 3, {v(T+6)}')
    A(f'v_and_b32 {v(T+4)}, 3, {v(T+4)}'); A(f'v_lshlrev_b32 {v(T+4)}, 3, {v(T+4)}')
    A(f'v_lshl_add_u32 {v(T+4)}, {v(T+5)}, 7, {v(T+4)}')
    for b in range(4):
        A(f'v_xor_b32 {v(T+7)}, {b}, {v(T+6)}')
        A(f'v_lshl_add_u32 {v(P3_BR+b)}, {v(T+7)}, 5, {v(T+4)}')

def p3_b_issue(A, vm):
    for m in range(19):
        L = None
        if m == 18:
            L = A.label('b3'); A('s_cmp_ge_u32 s6, 6'); A(f's_cbranch_scc1 {L}')
        A(f's_add_u32 m0, s{S_LW1}, {m*8192}')
        if m < 8:
            A(f's_mov_b32 s{S_SOFF}, {m*65536}')
            A(f'buffer_load_dwordx4 {v(P3_BD)}, {SR(SRD_X)}, s{S_SOFF} offen lds')
        else:
            A(f's_mov_b32 s{S_SOFF}, {(m-8)*65536}')
            A(f'buffer_load_dwordx4 {v(P3_BD)}, {SR(SRD_WB)}, s{S_SOFF} offen lds')
        vm.issue(('b', m))
        if L: A(f'{L}:')

def p3_steps(kh):
    allsteps = [('o', hp, 32*hp) for hp in range(16)] + [('u', p, 512 + 16 + 32*p) for p in range(21)] + [('u0', 0, 512)]
    return allsteps[:19] if kh == 0 else allsteps[19:]

def emit_p3(A, cfg):
    LF = cfg['lf']
    p3_decode(A)
    p3_b_setup(A)
    A('s_waitcnt lgkmcnt(0)')
    srd(A, SRD_WS, P_WS, WS_USED)
    srd(A, SRD_X, P_WO, 512*1024)
    srd(A, SRD_WB, P_WOUT, 688*1024)
    stamp(A, 'p3start')
    vm = VM()
    p3_b_issue(A, vm)
    T = P3_T
    A(f'v_lshlrev_b32 {v(T)}, 4, v0'); A(f'v_lshlrev_b32 {v(T+1)}, 3, v0')
    A(f's_lshl_b32 s11, s9, 2'); A(f's_add_u32 s11, s11, s7')
    LK = A.label('p3k1'); LJ = A.label('p3join')
    A('s_cmp_lg_u32 s8, 0'); A(f's_cbranch_scc1 {LK}')
    for kh in range(2):
        if kh == 1: A(f'{LK}:')
        steps = p3_steps(kh)
        A(f's_lshl_b32 s{S_A}, s11, 14'); A(f's_add_u32 s{S_A}, s{S_A}, {OO}')
        A(f's_mul_i32 s{S_B}, s11, {21*1024}'); A(f's_add_u32 s{S_B}, s{S_B}, {UO}')
        A(f's_lshl_b32 s{S_C}, s11, 9'); A(f's_add_u32 s{S_C}, s{S_C}, {U0}')
        for i, (kind, idx, row0) in enumerate(steps):
            if kind == 'o':
                A(f's_add_u32 s{S_D}, s{S_A}, {idx*1024}')
                A(f'buffer_load_dwordx4 {v(P3_A+4*i,4)}, {v(T)}, {SR(SRD_WS)}, s{S_D} offen {LF}')
            elif kind == 'u':
                A(f's_add_u32 s{S_D}, s{S_B}, {idx*1024}')
                A(f'buffer_load_dwordx4 {v(P3_A+4*i,4)}, {v(T)}, {SR(SRD_WS)}, s{S_D} offen {LF}')
            else:
                A(f'buffer_load_dwordx2 {v(P3_A+4*i,2)}, {v(T+1)}, {SR(SRD_WS)}, s{S_C} offen {LF}')
        A('s_waitcnt vmcnt(19)')
        A('s_barrier')
        stamp(A, 'p3b')
        blocks = []
        for i, (kind, idx, row0) in enumerate(steps):
            blk = dict(reads=[], mfmas=[])
            base = row0 * 128
            par = i % 2
            hi = base + 16*128 + 512 > 65535
            def pre(i=i, base=base, hi=hi, par=par):
                A(f's_waitcnt vmcnt({18 - i})')
                if hi:
                    for b in range(4): A(f'v_add_u32 {v(T+2+par*4+b)}, {base}, {v(P3_BR+b)}')
            blk['pre'] = pre
            for b in range(4):
                ad = (T+2+par*4+b, 0) if hi else (P3_BR+b, base)
                d = par*16 + b*4
                A_ = f'ds_read_b64_tr_b16 {a(d,2)}, {v(ad[0])} offset:{ad[1]}'
                blk['reads'].append(A_)
                if kind != 'u0':
                    blk['reads'].append(f'ds_read_b64_tr_b16 {a(d+2,2)}, {v(ad[0])} offset:{ad[1] + 16*128}')
            for b in range(4):
                acc = P3_ACC + 4*b
                cin = '0' if i == 0 else v(acc,4)
                d = par*16 + b*4
                if kind == 'u0':
                    blk['mfmas'].append(f'v_mfma_f32_16x16x16_bf16 {v(acc,4)}, {a(d,2)}, {v(P3_A+4*i,2)}, {cin}')
                else:
                    blk['mfmas'].append(f'v_mfma_f32_16x16x32_bf16 {v(acc,4)}, {a(d,4)}, {v(P3_A+4*i,4)}, {cin}')
            blocks.append(blk)
        pipeline(A, blocks)
        if kh == 0: A(f's_branch {LJ}')
    A(f'{LJ}:')
    stamp(A, 'p3main')
    A('s_barrier')
    A(f's_lshl_b32 s{S_A}, s7, 12'); A(f's_lshl_b32 s{S_B}, s8, 11'); A(f's_add_u32 s{S_A}, s{S_A}, s{S_B}')
    A(f'v_add_u32 {v(T+2)}, s{S_A}, {v(T)}')
    A(f's_xor_b32 s{S_B}, s{S_A}, 2048')
    A(f'v_add_u32 {v(T+3)}, s{S_B}, {v(T)}')
    LA = A.label('r0'); LB = A.label('r1')
    A('s_cmp_lg_u32 s8, 0'); A(f's_cbranch_scc1 {LA}')
    for b in (2, 3): A(f'ds_write_b128 {v(T+2)}, {v(P3_ACC+4*b,4)} offset:{(b-2)*1024}')
    A(f's_branch {LB}')
    A(f'{LA}:')
    for b in (0, 1): A(f'ds_write_b128 {v(T+2)}, {v(P3_ACC+4*b,4)} offset:{b*1024}')
    for b in (0, 1):
        for r in range(4): A(f'v_mov_b32 {v(P3_ACC+4*b+r)}, {v(P3_ACC+8+4*b+r)}')
    A(f'{LB}:')
    A('s_waitcnt lgkmcnt(0)')
    A('s_barrier')
    R = P3_A
    for b in range(2): A(f'ds_read_b128 {v(R+4*b,4)}, {v(T+3)} offset:{b*1024}')
    A('s_waitcnt lgkmcnt(0)')
    for b in range(2):
        for h in range(2):
            A(f'v_pk_add_f32 {v(P3_ACC+4*b+2*h,2)}, {v(P3_ACC+4*b+2*h,2)}, {v(R+4*b+2*h,2)}')
    for b in range(2):
        for h in range(2):
            A(f'v_cvt_pk_bf16_f32 {v(R+8+2*b+h)}, {v(P3_ACC+4*b+2*h)}, {v(P3_ACC+4*b+2*h+1)}')
    srd(A, SRD_M, P_OUT, 2048*1024)
    A(f'v_and_b32 {v(T+4)}, 15, v0'); A(f'v_lshlrev_b32 {v(T+4)}, 10, {v(T+4)}')
    A(f'v_lshrrev_b32 {v(T+5)}, 4, v0'); A(f'v_lshl_add_u32 {v(T+4)}, {v(T+5)}, 3, {v(T+4)}')
    A(f's_lshl_b32 s{S_A}, s11, 14'); A(f's_lshl_b32 s{S_B}, s10, 7'); A(f's_add_u32 s{S_A}, s{S_A}, s{S_B}')
    A(f's_lshl_b32 s{S_B}, s8, 6'); A(f's_add_u32 s{S_A}, s{S_A}, s{S_B}')
    for b in range(2):
        A(f'buffer_store_dwordx2 {v(R+8+2*b,2)}, {v(T+4)}, {SR(SRD_M)}, s{S_A} offen offset:{b*32}')
    stamp(A, 'p3end')

HEADER = open('gated_mix__linear_attn_block__mixer_gmlp__prompt.s.ref').read().split('; Override launch geometry')[0]
def build2(mode, sf='', lf='', dbgcnt=False, extra_empty=0):
    A = Asm()
    A(HEADER.rstrip())
    cfg = dict(sf=sf, lf=lf, cnt_stats=CNT, cnt_shift=8)
    if dbgcnt:
        gen.CNT_SRD[0] = gen.SRD_DBG
        cfg['cnt_stats'] = 0; cfg['cnt_shift'] = 4
    kernels = {'k1': ['p1'], 'k2': ['p2'], 'k3': ['p3'], 'k123': ['p1', 'p2', 'p3']}[mode]
    for k in kernels:
        A(f'; @launch kernel={k}_kernel grid=(256,1,1) block=(512,1,1) lds={LDS_BYTES}')
    for i in range(extra_empty):
        A(f'; @launch kernel=empty_kernel grid=(256,1,1) block=(512,1,1) lds={LDS_BYTES}')
    A('.amdgcn_target "amdgcn-amd-amdhsa--gfx950"')
    A('.text')
    if extra_empty:
        kernel_header(A, 'empty_kernel'); A('s_endpgm')
    for k in kernels:
        kernel_header(A, k + '_kernel')
        setup(A, k + '_kernel')
        {'p1': emit_p1, 'p2': emit_p2, 'p3': emit_p3}[k](A, cfg)
        stamp_flush(A)
        A(f'{k}_kernel_exit:')
        A('s_endpgm')
    A('.section .rodata,"a"')
    for k in kernels:
        A('.p2align 6')
        A(kernel_desc(k + '_kernel', 256, accum=128))
    if extra_empty:
        A('.p2align 6'); A(kernel_desc('empty_kernel', 256, accum=128))
    return A

if __name__ == '__main__':
    if 'prof' in sys.argv: gen.PROF_ON = True; sys.argv.remove('prof')
    mode = sys.argv[1]; out = sys.argv[2]
    kw = {}
    for a_ in sys.argv[3:]:
        k_, v_ = a_.split('=')
        kw[k_] = int(v_) if v_.isdigit() else v_
    A = build2(mode, **kw)
    t = A.text()
    open(out, 'w').write(t)
    if gen.PROF_ON: open(out + '.names', 'w').write(' '.join(gen._stamp_names))
    print('lines', t.count(chr(10)), 'nops inserted', A.nops_inserted)
```

```python
import sys, struct
from asmgen import *
from layout import *

UNIT = 16384
NU = 8
SCR = NU * UNIT
LDS_BYTES = 163840
KNAME = 'gated_mix__linear_attn_block__mixer_gmlp__prompt_kernel'

P_X, P_WQKV, P_WO, P_BX, P_WIN, P_WSP, P_BSP, P_WOUT = 16, 18, 20, 22, 24, 26, 28, 30
P_GW, P_OUT, P_DBG, P_WS = 32, 34, 36, 38
SRD_X, SRD_WB, SRD_WS, SRD_WSP, SRD_M = 40, 44, 48, 52, 56
S_A, S_B, S_C, S_D, S_E, S_F = 60, 61, 62, 63, 64, 65
S_SOFF = 66
S_POLL = 67
S_EX = 68
S_K1, S_K2, S_K3, S_K4 = 70, 71, 72, 73
S_LW, S_LW1 = 74, 75
S_PAIR = 76
SRD_DBG = 92
S_T2, S_T3, S_N3 = 96, 97, 98
S_J = 99

C_STATS, C_WIN, C_QKV, C_U, C_O = 0, 16, 24, 32, 64
def cnt(i): return CNT + i * 256

def f2u(x): return struct.unpack('<I', struct.pack('<f', x))[0]
LOG2E = 1.4426950408889634
GK = -2.0 * 0.7978845608028654 * LOG2E
GC = 0.044715

CFG = dict(prof=False, sf='sc1', lf='sc1', zlf='sc1', xf='', wf='', wspf='', b3f='', npro=4, maxper=3, codepf=1, p3pro=6, p3per=2)
_stamps = []
PROF = 0x1000000
def stamp(A, name):
    if not CFG['prof']: return
    if name in _stamps: idx = _stamps.index(name)
    else: idx = len(_stamps); _stamps.append(name)
    A('s_waitcnt lgkmcnt(0)')
    A('s_memtime s[84:85]')
    A('s_waitcnt lgkmcnt(0)')
    A(f'v_writelane_b32 v127, s84, {idx}')
def stamp_flush(A):
    if not CFG['prof']: return
    A('s_waitcnt vmcnt(0)')
    A('s_lshl_b32 s84, s2, 3'); A('s_add_u32 s84, s84, s6'); A('s_lshl_b32 s84, s84, 8')
    A('v_lshlrev_b32 v126, 2, v0')
    A(f's_mov_b32 s88, s38'); A('s_and_b32 s89, s39, 0xffff'); A('s_mov_b32 s90, 0x2000000'); A('s_mov_b32 s91, 0x00020000')
    A(f's_add_u32 s84, s84, {PROF}')
    A('buffer_store_dword v127, v126, s[88:91], s84 offen')

class VM:
    def __init__(self): self.q = []; self.marks = {}
    def issue(self, tag, n=1): self.q += [tag] * n
    def wait_n(self, tag):
        idx = max(i for i, t in enumerate(self.q) if t == tag)
        return len(self.q) - 1 - idx
    def mark(self, name): self.marks[name] = len(self.q)
    def since(self, name): return len(self.q) - self.marks[name]

def SR(d): return f's[{d}:{d+3}]'
def srd(A, d, p, nbytes):
    A(f's_mov_b32 s{d}, s{p}')
    A(f's_and_b32 s{d+1}, s{p+1}, 0xffff')
    A(f's_mov_b32 s{d+2}, {hex(nbytes)}')
    A(f's_mov_b32 s{d+3}, 0x00020000')

def if_s(A, cond, body, name='if'):
    L = A.label(name)
    inv = {'eq': 'lg', 'lg': 'eq', 'lt': 'ge', 'ge': 'lt', 'gt': 'le', 'le': 'gt'}[cond[0]]
    A(f's_cmp_{inv}_u32 {cond[1]}, {cond[2]}'); A(f's_cbranch_scc1 {L}')
    body()
    A(f'{L}:')

def pipeline(A, blocks):
    n = len(blocks)
    b0 = blocks[0]
    if b0.get('pre'): b0['pre']()
    for r in b0['reads']: A(r)
    for x in b0.get('extra', []): x()
    for i in range(n):
        if blocks[i].get('start'): blocks[i]['start']()
        else: A('s_waitcnt lgkmcnt(0)')
        nxt = blocks[i+1] if i+1 < n else None
        fill = []; ex = []
        if nxt is not None:
            if nxt.get('pre'): nxt['pre']()
            fill = [(lambda r=r: A(r)) for r in nxt['reads']]
            ex = list(nxt.get('extra', []))
        m = blocks[i]['mfmas']
        slots = [[] for _ in m]
        k = 0
        for j in range(len(m)):
            for _ in range(2):
                if k < len(fill): slots[j].append(fill[k]); k += 1
        while k < len(fill): slots[-1].append(fill[k]); k += 1
        if ex:
            for e_i, e in enumerate(ex):
                pos = min(len(m)-1, (e_i * len(m)) // len(ex) + (len(m)//len(ex))//2)
                slots[pos].append(e)
        for j, t in enumerate(m):
            A(t)
            for f in slots[j]: f()
        if blocks[i].get('post'): blocks[i]['post']()

def ws_store(A, n, data, vaddr, soff, flags, off=0):
    nm = {1: 'dword', 2: 'dwordx2', 4: 'dwordx4'}[n]
    A(f'buffer_store_{nm} {v(data,n)}, {v(vaddr)}, {SR(SRD_WS)}, {soff} offen offset:{off} {flags}')

def signal(A, soff_sgpr, tmp, lanes=1, stride=0):
    A(f's_mov_b64 s[{S_EX}:{S_EX+1}], exec')
    A(f's_mov_b64 exec, {(1<<lanes)-1}')
    A(f'v_mov_b32 {v(tmp)}, 1')
    if stride: A(f'v_mul_u32_u24 {v(tmp+1)}, {stride}, v0')
    else: A(f'v_mov_b32 {v(tmp+1)}, 0')
    A(f'buffer_atomic_add {v(tmp)}, {v(tmp+1)}, {SR(SRD_WS)}, s{soff_sgpr} offen sc1')
    A(f's_mov_b64 exec, s[{S_EX}:{S_EX+1}]')

def poll(A, srd_, soff, target, tmp, name, cmp='ge'):
    A(f'v_mov_b32 {v(tmp+1)}, 0')
    A(f's_mov_b32 s{S_F}, 0')
    L = A.label(name); LO = A.label(name + 'ok')
    A(f'{L}:')
    A(f'buffer_load_dword {v(tmp)}, {v(tmp+1)}, {SR(srd_)}, {soff} offen sc1')
    A('s_waitcnt vmcnt(0)')
    A(f'v_readfirstlane_b32 s{S_E}, {v(tmp)}')
    A(f's_add_u32 s{S_F}, s{S_F}, 1')
    A(f's_cmp_ge_u32 s{S_E}, {target}')
    A(f's_cbranch_scc1 {LO}')
    A(f's_cmp_lt_u32 s{S_F}, 100000')
    A(f's_cbranch_scc0 {LO}')
    A('s_sleep 1')
    A(f's_branch {L}')
    A(f'{LO}:')

def pollN(A, items, tmp, name):
    n = len(items)
    A(f's_mov_b64 s[{S_EX}:{S_EX+1}], exec')
    A(f'v_mov_b32 {v(tmp+1)}, 0'); A(f'v_mov_b32 {v(tmp+2)}, 0')
    for i, (so, tg) in enumerate(items):
        A(f'v_writelane_b32 {v(tmp+1)}, {so}, {i}')
        A(f's_movk_i32 s{S_E}, {tg}')
        A(f'v_writelane_b32 {v(tmp+2)}, s{S_E}, {i}')
    A(f's_mov_b64 exec, {(1<<n)-1}')
    A(f's_mov_b32 s{S_F}, 0')
    L = A.label(name); LO = A.label(name + 'ok')
    A(f'{L}:')
    A(f'buffer_load_dword {v(tmp)}, {v(tmp+1)}, {SR(SRD_WS)}, 0 offen sc1')
    A('s_waitcnt vmcnt(0)')
    A(f'v_cmp_lt_u32 vcc, {v(tmp)}, {v(tmp+2)}')
    A(f's_add_u32 s{S_F}, s{S_F}, 1')
    A(f's_cmp_lt_u32 s{S_F}, 100000')
    A(f's_cbranch_scc0 {LO}')
    A(f's_cbranch_vccz {LO}')
    A('s_sleep 1')
    A(f's_branch {L}')
    A(f'{LO}:')
    A(f's_mov_b64 exec, s[{S_EX}:{S_EX+1}]')

def gelu_block(A, base, n, tmp, c1v):
    npairs = n // 2
    G = 4
    for p0 in range(0, npairs, G):
        ps = list(range(p0, min(p0 + G, npairs)))
        T = lambda p: tmp + 2 * (p - p0)
        X = lambda p: base + 2 * p
        for p in ps: A(f'v_pk_mul_f32 {v(T(p),2)}, {v(X(p),2)}, {v(X(p),2)}')
        for p in ps: A(f'v_pk_fma_f32 {v(T(p),2)}, {v(T(p),2)}, {s(S_PAIR,2)}, {v(c1v,2)}')
        for p in ps: A(f'v_pk_mul_f32 {v(T(p),2)}, {v(T(p),2)}, {v(X(p),2)}')
        for p in ps:
            A(f'v_exp_f32 {v(T(p))}, {v(T(p))}')
            A(f'v_exp_f32 {v(T(p)+1)}, {v(T(p)+1)}')
        for p in ps: A(f'v_pk_add_f32 {v(T(p),2)}, {v(T(p),2)}, {s(S_PAIR+2,2)}')
        for p in ps:
            A(f'v_rcp_f32 {v(T(p))}, {v(T(p))}')
            A(f'v_rcp_f32 {v(T(p)+1)}, {v(T(p)+1)}')
        for p in ps: A(f'v_pk_mul_f32 {v(X(p),2)}, {v(X(p),2)}, {v(T(p),2)}')
def gelu_consts(A, c1v):
    A(f's_mov_b32 s{S_PAIR}, {hex(f2u(GK*GC))}'); A(f's_mov_b32 s{S_PAIR+1}, {hex(f2u(GK*GC))}')
    A(f's_mov_b32 s{S_PAIR+2}, 1.0'); A(f's_mov_b32 s{S_PAIR+3}, 1.0')
    A(f'v_mov_b32 {v(c1v)}, {hex(f2u(GK))}'); A(f'v_mov_b32 {v(c1v+1)}, {hex(f2u(GK))}')
def phi_block(A, base, n, tmp):
    npairs = n // 2
    G = 4
    for p0 in range(0, npairs, G):
        ps = list(range(p0, min(p0 + G, npairs)))
        T = lambda p: tmp + 2 * (p - p0)
        X = lambda p: base + 2 * p
        for p in ps: A(f'v_pk_mul_f32 {v(T(p),2)}, {v(X(p),2)}, {s(S_PAIR,2)}')
        for p in ps:
            A(f'v_exp_f32 {v(T(p))}, {v(T(p))} clamp')
            A(f'v_exp_f32 {v(T(p)+1)}, {v(T(p)+1)} clamp')
        for p in ps:
            A(f'v_max_f32 {v(X(p))}, 0, {v(X(p))}')
            A(f'v_max_f32 {v(X(p)+1)}, 0, {v(X(p)+1)}')
        for p in ps: A(f'v_pk_add_f32 {v(T(p),2)}, {v(T(p),2)}, {s(S_PAIR+2,2)}')
        for p in ps: A(f'v_pk_add_f32 {v(X(p),2)}, {v(X(p),2)}, {v(T(p),2)}')
def phi_consts(A):
    A(f's_mov_b32 s{S_PAIR}, {hex(f2u(LOG2E))}'); A(f's_mov_b32 s{S_PAIR+1}, {hex(f2u(LOG2E))}')
    A(f's_mov_b32 s{S_PAIR+2}, {hex(f2u(1e-6))}'); A(f's_mov_b32 s{S_PAIR+3}, {hex(f2u(1e-6))}')

V_ACC0 = 4; V_ACC1 = 36; V_BF = 60
V_XD = 92; V_B0D = 94; V_B1D = 96; V_WD = 98
V_XR = 100; V_B0R = 102; V_B1R = 106; V_TA = 109; V_T = 115
V_FLAG = 123; V_ID = 124
def XF(tb2, ks): return (tb2 * 16 + ks) * 4

def p1_x_addr(A):
    T0, T1, T2, T3 = V_T, V_T+1, V_T+2, V_T+3
    A(f'v_lshrrev_b32 {v(T0)}, 3, v0'); A(f'v_and_b32 {v(T1)}, 7, v0')
    A(f'v_lshrrev_b32 {v(T2)}, 4, v0'); A(f'v_and_b32 {v(T3)}, 15, v0')
    A(f's_lshl_b32 s{S_A}, s9, 17'); A(f's_lshl_b32 s{S_B}, s6, 14'); A(f's_add_u32 s{S_A}, s{S_A}, s{S_B}')
    A(f'v_xor_b32 {v(V_XD)}, {v(T1)}, {v(T2)}')
    A(f'v_lshlrev_b32 {v(V_XD)}, 4, {v(V_XD)}')
    A(f'v_lshl_add_u32 {v(V_XD)}, {v(T0)}, 10, {v(V_XD)}')
    A(f'v_add_u32 {v(V_XD)}, s{S_A}, {v(V_XD)}')
    A(f'v_xor_b32 {v(V_XD+1)}, 64, {v(V_XD)}')
    A(f'v_add_u32 {v(V_XD+1)}, {8192-1024}, {v(V_XD+1)}')

def p1_b_dma_addr(A, typ):
    T0, T1, T2, T3, T4, T5 = V_T, V_T+1, V_T+2, V_T+3, V_T+4, V_T+5
    A(f's_and_b32 s{S_C}, s6, 1'); A(f's_lshl_b32 s{S_C}, s{S_C}, 2')
    A(f'v_lshrrev_b32 {v(T4)}, 1, {v(T3)}')
    A(f'v_xor_b32 {v(T4)}, {v(T4)}, {v(T2)}')
    A(f'v_xor_b32 {v(T4)}, s{S_C}, {v(T4)}')
    A(f'v_and_b32 {v(T5)}, 1, v0')
    if typ == 'qkv':
        A(f'v_lshlrev_b32 {v(V_B0D)}, 5, {v(T4)}')
        A(f'v_lshl_add_u32 {v(V_B0D)}, {v(T5)}, 4, {v(V_B0D)}')
        A(f'v_lshrrev_b32 {v(T4)}, 2, {v(T4)}')
        A(f'v_mad_u32_u24 {v(V_B0D)}, {v(T4)}, s{S_K3}, {v(V_B0D)}')
        A(f'v_mad_u32_u24 {v(V_B0D)}, {v(T2)}, s{S_K4}, {v(V_B0D)}')
        A(f's_mul_i32 s{S_B}, s6, {8*3072}')
        A(f's_lshl_b32 s{S_D}, s10, 7')
        A(f's_add_u32 s{S_B}, s{S_B}, s{S_D}')
        A(f's_add_u32 s{S_D}, s{S_B}, 1024')
        A(f'v_add_u32 {v(V_B0D)}, s{S_D}, {v(V_B0D)}')
        A(f'v_add_u32 {v(V_B0D+1)}, {4*3072-1024}, {v(V_B0D)}')
    else:
        A(f'v_lshlrev_b32 {v(T4)}, 5, {v(T4)}')
        A(f'v_lshl_add_u32 {v(T4)}, {v(T5)}, 4, {v(T4)}')
        A(f's_mul_i32 s{S_B}, s6, {8*2752}')
        A(f'v_mul_u32_u24 {v(T5)}, 2752, {v(T2)}')
        for (sc, VD) in ((11, V_B0D), (12, V_B1D)):
            A(f's_add_u32 s{S_D}, s{S_B}, s{sc}')
            A(f'v_add_u32 {v(VD)}, s{S_D}, {v(T5)}')
            A(f'v_add_u32 {v(VD+1)}, {4*2752}, {v(VD)}')
            A(f'v_and_b32 {v(VD)}, 0xffffff80, {v(VD)}')
            A(f'v_and_b32 {v(VD+1)}, 0xffffff80, {v(VD+1)}')
            A(f'v_add_u32 {v(VD)}, {v(VD)}, {v(T4)}')
            A(f'v_add_u32 {v(VD+1)}, {v(VD+1)}, {v(T4)}')
            A(f'v_subrev_u32 {v(VD+1)}, 1024, {v(VD+1)}')

def p1_q_dma_addr(A):
    T0, T1, T2, T3, T4, T5 = V_T, V_T+1, V_T+2, V_T+3, V_T+4, V_T+5
    A(f's_and_b32 s{S_C}, s6, 1'); A(f's_lshl_b32 s{S_C}, s{S_C}, 1')
    A(f'v_lshrrev_b32 {v(T4)}, 1, {v(T1)}')
    A(f'v_and_b32 {v(V_B1D)}, 1, {v(T2)}')
    A(f'v_xor_b32 {v(T4)}, {v(T4)}, {v(V_B1D)}')
    A(f'v_xor_b32 {v(T4)}, s{S_C}, {v(T4)}')
    A(f'v_lshlrev_b32 {v(T4)}, 5, {v(T4)}')
    A(f'v_and_b32 {v(T5)}, 1, v0')
    A(f'v_lshl_add_u32 {v(T4)}, {v(T5)}, 4, {v(T4)}')
    A(f'v_mad_u32_u24 {v(T4)}, {v(T0)}, s{S_K4}, {v(T4)}')
    A(f's_mul_i32 s{S_B}, s6, {8*3072}'); A(f's_lshl_b32 s{S_D}, s10, 7'); A(f's_add_u32 s{S_B}, s{S_B}, s{S_D}')
    A(f'v_add_u32 {v(V_B1D)}, s{S_B}, {v(T4)}')

def w_dma_addr(A, WD, T):
    A(f'v_lshrrev_b32 {v(T)}, 4, v0'); A(f'v_and_b32 {v(T+1)}, 15, v0')
    A(f's_and_b32 s{S_A}, s6, 1'); A(f's_lshl_b32 s{S_A}, s{S_A}, 3')
    A(f'v_xor_b32 {v(T+2)}, {v(T+1)}, {v(T)}')
    A(f'v_xor_b32 {v(T+2)}, s{S_A}, {v(T+2)}')
    A(f'v_lshlrev_b32 {v(T+2)}, 4, {v(T+2)}')
    A(f'v_lshl_add_u32 {v(T+2)}, {v(T)}, 12, {v(T+2)}')
    A(f's_lshl_b32 s{S_A}, s{S_T2}, 18'); A(f's_lshl_b32 s{S_B}, s6, 15'); A(f's_add_u32 s{S_A}, s{S_A}, s{S_B}')
    A(f'v_add_u32 {v(WD)}, s{S_A}, {v(T+2)}')
    A(f'v_xor_b32 {v(WD+1)}, 64, {v(WD)}')
    A(f'v_add_u32 {v(WD+1)}, {4*4096-1024}, {v(WD+1)}')

def p1_read_addr(A, typ):
    T0, T1, T2, T3, T4, T5 = V_T, V_T+1, V_T+2, V_T+3, V_T+4, V_T+5
    A(f'v_lshrrev_b32 {v(T4)}, 1, {v(T3)}')
    A(f'v_xor_b32 {v(T4)}, {v(T4)}, {v(T2)}')
    A(f'v_lshlrev_b32 {v(T4)}, 4, {v(T4)}')
    A(f'v_lshl_add_u32 {v(T4)}, {v(T3)}, 7, {v(T4)}')
    A(f's_lshl_b32 s{S_B}, s7, 12')
    A(f'v_add_u32 {v(V_XR)}, s{S_B}, {v(T4)}')
    A(f'v_xor_b32 {v(V_XR+1)}, 64, {v(V_XR)}')
    RI, KEY, INR = V_TA, V_TA+1, V_TA+2
    A(f'v_lshrrev_b32 {v(RI)}, 2, {v(T3)}')
    A(f'v_and_b32 {v(KEY)}, 1, {v(T2)}')
    A(f'v_lshl_or_b32 {v(KEY)}, {v(KEY)}, 2, {v(RI)}')
    A(f'v_and_b32 {v(INR)}, 3, {v(T3)}')
    A(f'v_lshlrev_b32 {v(INR)}, 3, {v(INR)}')
    A(f'v_lshl_add_u32 {v(RI)}, {v(T2)}, 3, {v(RI)}')
    if typ == 'qkv':
        A(f'v_lshl_add_u32 {v(T5)}, {v(RI)}, 8, {v(INR)}')
        A(f's_lshl_b32 s{S_B}, s8, 1')
        A(f'v_xor_b32 {v(T4)}, s{S_B}, {v(KEY)}')
        for bi in range(4):
            x = [0, 1, 4, 5][bi]
            if x: A(f'v_xor_b32 {v(V_B0R+bi)}, {x}, {v(T4)}')
            else: A(f'v_mov_b32 {v(V_B0R+bi)}, {v(T4)}')
            A(f'v_lshl_add_u32 {v(V_B0R+bi)}, {v(V_B0R+bi)}, 5, {v(T5)}')
        A(f'v_lshrrev_b32 {v(T5)}, 3, {v(T3)}')
        A(f'v_and_b32 {v(T4)}, 1, {v(T2)}')
        A(f'v_lshl_or_b32 {v(T5)}, {v(T4)}, 1, {v(T5)}')
        A(f'v_xor_b32 {v(T5)}, s{S_B}, {v(T5)}')
        A(f'v_lshl_add_u32 {v(T4)}, {v(RI)}, 7, {v(INR)}')
        A(f'v_lshl_add_u32 {v(V_B1R)}, {v(T5)}, 5, {v(T4)}')
        A(f'v_xor_b32 {v(V_B1R+1)}, 32, {v(V_B1R)}')
    else:
        A(f'v_lshl_add_u32 {v(T1)}, {v(RI)}, 8, {v(INR)}')
        A(f'v_mul_u32_u24 {v(T0)}, 2752, {v(RI)}')
        A(f's_mul_i32 s{S_B}, s8, 3')
        for (sc, VR) in ((11, V_B0R), (12, V_B1R)):
            A(f'v_add_u32 {v(T4)}, s{sc}, {v(T0)}')
            A(f'v_bfe_u32 {v(T4)}, {v(T4)}, 5, 2')
            A(f'v_add_u32 {v(T4)}, s{S_B}, {v(T4)}')
            for bi in range(3):
                A(f'v_add_u32 {v(T5)}, {bi}, {v(T4)}')
                A(f'v_and_b32 {v(T5)}, 7, {v(T5)}')
                A(f'v_xor_b32 {v(T5)}, {v(T5)}, {v(KEY)}')
                A(f'v_lshl_add_u32 {v(VR+bi)}, {v(T5)}, 5, {v(T1)}')

W_ORDER = [0,4,8,12, 1,5,9,13, 2,6,10,14, 3,7,11,15]
def w_issue_list(A, vm, k, slot, tag):
    u = W_ORDER[k]
    out = []
    for e in range(2):
        def f(e=e):
            A(f's_add_u32 m0, s{S_LW}, {slot*UNIT}')
            A(f's_movk_i32 s{S_SOFF}, {256*u}')
            A(f'buffer_load_dwordx4 {v(V_WD+e)}, {SR(SRD_WSP)}, s{S_SOFF} offen offset:{e*1024} {CFG["wspf"]} lds')
            vm.issue(tag)
        out.append(f)
    return out

def p1_units():
    U = []
    for c in range(8): U.append(('x', c)); U.append(('b0', c))
    for c in range(8): U.append(('b1', c))
    for k in range(16): U.append(('w', k))
    return U
def unit_addr(n): return (n % NU) * UNIT

def p1_issue_list(A, typ, vm, n, U):
    kind, c = U[n]
    base = unit_addr(n)
    if kind == 'w': return w_issue_list(A, vm, c, n % NU, n)
    rowbytes = 3072 if typ == 'qkv' else 2752
    if kind == 'x': VD, srd_, soff, cnt_, lw, fl = V_XD, SRD_X, c*128, 2, S_LW, CFG['xf']
    elif kind == 'b0': VD, srd_, soff, cnt_, lw, fl = V_B0D, SRD_WB, c*64*rowbytes, 2, S_LW, CFG['wf']
    elif typ == 'win': VD, srd_, soff, cnt_, lw, fl = V_B1D, SRD_WB, c*64*rowbytes, 2, S_LW, CFG['wf']
    else: VD, srd_, soff, cnt_, lw, fl = V_B1D, SRD_WB, c*64*rowbytes, 1, S_LW1, CFG['wf']
    out = []
    for e in range(cnt_):
        def f(e=e):
            A(f's_add_u32 m0, s{lw}, {base}')
            A(f's_mov_b32 s{S_SOFF}, {soff}')
            A(f'buffer_load_dwordx4 {v(VD+e)}, {SR(srd_)}, s{S_SOFF} offen offset:{e*1024} {fl} lds')
            vm.issue(n)
        out.append(f)
    return out

def p1_blocks(A, typ, grp, vm, U, state, sync_at, limit):
    nblk = {('qkv',0):4, ('qkv',1):2, ('win',0):3, ('win',1):3}[(typ, grp)]
    rowb = 128 if (typ, grp) == ('qkv', 1) else 256
    VR = V_B0R if grp == 0 else V_B1R
    ACC = V_ACC0 if grp == 0 else V_ACC1
    swapped = not (typ == 'qkv' and grp == 0)
    blocks = []
    pend = []
    for c in range(8):
        need = [2*c, 2*c+1] if grp == 0 else [16 + c]
        bbase = unit_addr(need[-1]); xb = unit_addr(need[0])
        hiB = (bbase + 16384 > 65536); hiX = (xb + 16384 > 65536)
        for kk in range(2):
            ks = 2*c + kk
            blk = dict(reads=[], mfmas=[], extra=[])
            if kk == 0:
                def pre(c=c, bbase=bbase, xb=xb, hiB=hiB, hiX=hiX):
                    if c in sync_at:
                        tag = (16 + sync_at[c]) if grp else (2*sync_at[c] + 1)
                        N = vm.wait_n(tag)
                        if (grp, c) in state.get('also_mark', {}): N = min(N, vm.since(state['also_mark'][(grp, c)]))
                        A(f's_waitcnt vmcnt({N})')
                        A('s_barrier')
                    if (grp, c) in state.get('hooks', {}): state['hooks'][(grp, c)]()
                    if hiB:
                        for bi in range(nblk): A(f'v_add_u32 {v(V_TA+bi)}, {bbase}, {v(VR+bi)}')
                    if grp == 0 and hiX:
                        for k in range(2): A(f'v_add_u32 {v(V_TA+4+k)}, {xb}, {v(V_XR+k)}')
                blk['pre'] = pre
                if c in sync_at:
                    todo = []
                    while state['issued'] < limit and state['issued'] - NU <= need[0] - 1 and len(todo) < state['maxper']:
                        todo.append(state['issued']); state['issued'] += 1
                    pend = [('u', n) for n in todo]
                h = (len(pend) + 1) // 2
                blk['units'] = [p[1] for p in pend[:h]]; pend = pend[h:]
            else:
                blk['units'] = [p[1] for p in pend]; pend = []
            baddr = [((V_TA+bi, 0) if hiB else (VR+bi, bbase)) for bi in range(nblk)]
            if grp == 0:
                xa = (V_TA+4+kk, 0) if hiX else (V_XR+kk, xb)
                for tb2 in range(2):
                    blk['reads'].append(f'ds_read_b128 {a(XF(tb2,ks),4)}, {v(xa[0])} offset:{xa[1] + tb2*2048}')
            for bi in range(nblk):
                r0 = V_BF + kk*16 + bi*4
                off = baddr[bi][1] + kk*32*rowb
                blk['reads'].append(f'ds_read_b64_tr_b16 {v(r0,2)}, {v(baddr[bi][0])} offset:{off}')
                blk['reads'].append(f'ds_read_b64_tr_b16 {v(r0+2,2)}, {v(baddr[bi][0])} offset:{off + 4*rowb}')
            for bi in range(nblk):
                for tb2 in range(2):
                    acc = ACC + (bi*2 + tb2)*4
                    cin = '0' if ks == 0 else v(acc,4)
                    xf = a(XF(tb2,ks),4); bf = v(V_BF + kk*16 + bi*4, 4)
                    blk['mfmas'].append(f'v_mfma_f32_16x16x32_bf16 {v(acc,4)}, {bf}, {xf}, {cin}' if swapped
                                        else f'v_mfma_f32_16x16x32_bf16 {v(acc,4)}, {xf}, {bf}, {cin}')
            blocks.append(blk)
    for blk in blocks:
        ex = []
        for n in blk['units']: ex += p1_issue_list(A, typ, vm, n, U)
        blk['extra'] = ex
    return blocks

def p1_qkv_epi0(A, vm):
    SF = CFG['sf']
    phi_consts(A)
    phi_block(A, V_ACC0, 16, V_BF)
    PK = V_BF + 8; PV = V_BF + 16; ONE = V_BF + 24; D = V_ACC1
    for hh in range(2):
        for tb2 in range(2):
            k = V_ACC0 + (hh*2+tb2)*4; vv = V_ACC0 + ((2+hh)*2+tb2)*4
            A(f'v_cvt_pk_bf16_f32 {v(PK+hh*4+tb2*2)}, {v(k)}, {v(k+1)}')
            A(f'v_cvt_pk_bf16_f32 {v(PK+hh*4+tb2*2+1)}, {v(k+2)}, {v(k+3)}')
            A(f'v_cvt_pk_bf16_f32 {v(PV+hh*4+tb2*2)}, {v(vv)}, {v(vv+1)}')
            A(f'v_cvt_pk_bf16_f32 {v(PV+hh*4+tb2*2+1)}, {v(vv+2)}, {v(vv+3)}')
    for i in range(4): A(f'v_mov_b32 {v(ONE+i)}, 0x3f803f80')
    for hh in range(2):
        A(f'v_mfma_f32_16x16x32_bf16 {v(D+hh*8,4)}, {v(PK+hh*4,4)}, {v(PV+hh*4,4)}, 0')
        A(f'v_mfma_f32_16x16x32_bf16 {v(D+hh*8+4,4)}, {v(PK+hh*4,4)}, {v(ONE,4)}, 0')
    T = V_T
    A(f's_lshl_b32 s{S_A}, s8, 13'); A(f's_lshl_b32 s{S_B}, s7, 10')
    A(f's_add_u32 s{S_A}, s{S_A}, s{S_B}'); A(f's_add_u32 s{S_A}, s{S_A}, {SCR}')
    A(f'v_lshlrev_b32 {v(T)}, 4, v0')
    A(f'v_add_u32 {v(T+1)}, s{S_A}, {v(T)}')
    for hh in range(2):
        A(f'ds_write_b128 {v(T+1)}, {v(D+hh*8,4)} offset:{hh*4096}')
        A(f'ds_write_b128 {v(T+1)}, {v(D+hh*8+4,4)} offset:{16384 + hh*4096}')
    A('s_waitcnt lgkmcnt(0)')

def p1_qkv_epi0b(A, vm):
    SF = CFG['sf']
    T = V_T
    A(f's_lshl_b32 s{S_A}, s7, 12'); A(f's_lshl_b32 s{S_B}, s8, 14'); A(f's_add_u32 s{S_A}, s{S_A}, s{S_B}')
    A(f's_add_u32 s{S_A}, s{S_A}, {SCR}')
    A(f'v_lshlrev_b32 {v(T)}, 4, v0')
    A(f'v_add_u32 {v(T+1)}, s{S_A}, {v(T)}')
    R = V_ACC0
    for i in range(4): A(f'ds_read_b128 {v(R+4*i,4)}, {v(T+1)} offset:{i*1024}')
    A(f's_lshl_b32 s{S_A}, s9, 5'); A(f's_lshl_b32 s{S_C}, s10, 2'); A(f's_add_u32 s{S_A}, s{S_A}, s{S_C}'); A(f's_add_u32 s{S_A}, s{S_A}, s7')
    A('s_waitcnt lgkmcnt(0)')
    for h in range(2):
        A(f'v_pk_add_f32 {v(R+2*h,2)}, {v(R+2*h,2)}, {v(R+4+2*h,2)}')
        A(f'v_pk_add_f32 {v(R+8+2*h,2)}, {v(R+8+2*h,2)}, {v(R+12+2*h,2)}')
    for h in range(2): A(f'v_pk_add_f32 {v(R+2*h,2)}, {v(R+2*h,2)}, {v(R+8+2*h,2)}')
    LZ = A.label('kz'); LJ = A.label('kzj')
    A('s_cmp_lg_u32 s8, 0'); A(f's_cbranch_scc1 {LZ}')
    A(f's_lshl_b32 s{S_A}, s{S_A}, 10'); A(f's_add_u32 s{S_A}, s{S_A}, {KVP}')
    ws_store(A, 4, R, T, f's{S_A}', SF)
    A(f's_branch {LJ}')
    A(f'{LZ}:')
    A(f's_lshl_b32 s{S_A}, s{S_A}, 6'); A(f's_add_u32 s{S_A}, s{S_A}, {KZ}')
    A(f'v_and_b32 {v(T+2)}, 0x30, v0')
    A(f's_mov_b64 s[{S_EX}:{S_EX+1}], exec')
    A(f's_mov_b32 exec_lo, 0x00010001'); A(f's_mov_b32 exec_hi, 0x00010001')
    ws_store(A, 4, R, T+2, f's{S_A}', SF)
    A(f's_mov_b64 exec, s[{S_EX}:{S_EX+1}]')
    A(f'{LJ}:')
    vm.issue('kvp')

def p1_qkv_epi1(A, vm):
    SF = CFG['sf']
    T = V_T
    phi_consts(A)
    phi_block(A, V_ACC1, 16, V_BF + 8)
    A(f'v_lshlrev_b32 {v(T)}, 4, v0')
    A(f's_lshl_b32 s{S_A}, s10, 2'); A(f's_lshl_b32 s{S_B}, s8, 1'); A(f's_add_u32 s{S_A}, s{S_A}, s{S_B}')
    A(f's_lshl_b32 s{S_A}, s{S_A}, 6')
    A(f's_lshl_b32 s{S_B}, s9, 2'); A(f's_add_u32 s{S_A}, s{S_A}, s{S_B}'); A(f's_add_u32 s{S_A}, s{S_A}, s7')
    A(f's_lshl_b32 s{S_A}, s{S_A}, 10'); A(f's_add_u32 s{S_A}, s{S_A}, {QO}')
    for hh in range(2):
        for tb2 in range(2):
            q = V_ACC1 + (hh*2+tb2)*4
            P = V_BF + (hh*2+tb2)*2
            A(f'v_cvt_pk_bf16_f32 {v(P)}, {v(q)}, {v(q+1)}')
            A(f'v_cvt_pk_bf16_f32 {v(P+1)}, {v(q+2)}, {v(q+3)}')
        A(f's_add_u32 s{S_B}, s{S_A}, {hh*65536}')
        ws_store(A, 4, V_BF + hh*4, T, f's{S_B}', SF)
    vm.issue('q', 2)

def p1_win_epi0(A, vm):
    c1v = V_BF + 30
    gelu_consts(A, c1v)
    gelu_block(A, V_ACC0, 24, V_BF, c1v)
    stamp(A, 'e0gelu')
    ST = V_BF + 8
    P1 = [ST, ST+2]; P2 = [ST+4, ST+6]
    for i in range(8): A(f'v_mov_b32 {v(ST+i)}, 0')
    for bi in range(3):
        def body(bi=bi):
            for tb2 in range(2):
                z = V_ACC0 + (bi*2+tb2)*4
                for h in range(2):
                    A(f'v_pk_add_f32 {v(P1[tb2],2)}, {v(P1[tb2],2)}, {v(z+2*h,2)}')
                    A(f'v_pk_fma_f32 {v(P2[tb2],2)}, {v(z+2*h,2)}, {v(z+2*h,2)}, {v(P2[tb2],2)}')
        if_s(A, ('gt', 's13', bi), body)
    a0, a1, b0, b1 = ST+8, ST+9, ST+10, ST+11
    A(f'v_add_f32 {v(a0)}, {v(P1[0])}, {v(P1[0]+1)}'); A(f'v_add_f32 {v(a1)}, {v(P1[1])}, {v(P1[1]+1)}')
    A(f'v_add_f32 {v(b0)}, {v(P2[0])}, {v(P2[0]+1)}'); A(f'v_add_f32 {v(b1)}, {v(P2[1])}, {v(P2[1]+1)}')
    A(f'v_permlane32_swap_b32 {v(a0)}, {v(a1)}'); A(f'v_permlane32_swap_b32 {v(b0)}, {v(b1)}')
    A(f'v_add_f32 {v(a0)}, {v(a0)}, {v(a1)}'); A(f'v_add_f32 {v(b0)}, {v(b0)}, {v(b1)}')
    A(f'v_permlane16_swap_b32 {v(a0)}, {v(b0)}')
    A(f'v_add_f32 {v(a0)}, {v(a0)}, {v(b0)}')
    T = V_T
    A(f'v_lshlrev_b32 {v(T)}, 2, v0')
    A(f's_lshl_b32 s{S_A}, s7, 8'); A(f's_add_u32 s{S_A}, s{S_A}, {SCR}')
    A(f'v_add_u32 {v(T+1)}, s{S_A}, {v(T)}')
    A(f'v_mov_b32 {v(T+6)}, {v(a0)}')
    def w1():
        A(f'ds_write_b32 {v(T+1)}, {v(a0)}')
        A('s_waitcnt lgkmcnt(0)')
    if_s(A, ('lg', 's8', 0), w1)

def p1_win_epi0b(A, vm):
    T = V_T
    def body():
        A(f'ds_read_b32 {v(T+2)}, {v(T+1)}')
        A(f's_lshl_b32 s{S_A}, s9, 2'); A(f's_add_u32 s{S_A}, s{S_A}, s7'); A(f's_lshl_b32 s{S_A}, s{S_A}, 3')
        A(f's_add_u32 s{S_A}, s{S_A}, s14'); A(f's_lshl_b32 s{S_A}, s{S_A}, 8'); A(f's_add_u32 s{S_A}, s{S_A}, {STATS}')
        A('s_waitcnt lgkmcnt(0)')
        A(f'v_add_f32 {v(T+2)}, {v(T+2)}, {v(T+6)}')
        ws_store(A, 1, T+2, T, f's{S_A}', 'sc1')
    if_s(A, ('eq', 's8', 0), body)

def flag_load(A):
    def body():
        A(f'v_mov_b32 {v(V_FLAG+0)}, 0')
        A(f'buffer_load_dword {v(V_FLAG)}, {v(V_FLAG)}, {SR(SRD_DBG)}, 0 offen sc1')
    if_s(A, ('eq', 's6', 0), body)
def flag_check(A, tmp):
    L = A.label('fl')
    A(f'v_readfirstlane_b32 s{S_E}, {v(V_FLAG)}')
    A(f's_cmp_lg_u32 s{S_E}, 0'); A(f's_cbranch_scc1 {L}')
    poll(A, SRD_DBG, '0', 1, tmp, 'flp')
    A(f'{L}:')

def p1_win_epi1(A, vm):
    SF = CFG['sf']
    T = V_T
    ST = V_BF
    A(f'v_lshlrev_b32 {v(T+2)}, 2, v0')
    A(f's_lshl_b32 s{S_A}, s9, 2'); A(f's_add_u32 s{S_A}, s{S_A}, s7'); A(f's_lshl_b32 s{S_A}, s{S_A}, 11')
    A(f's_add_u32 s{S_A}, s{S_A}, {STATS}')
    for p in range(8):
        A(f'buffer_load_dword {v(ST+p)}, {v(T+2)}, {SR(SRD_WS)}, s{S_A} offen offset:{p*256} sc1')
    vm.issue('st', 8)
    A(f'v_lshlrev_b32 {v(T)}, 4, v0')
    A(f's_lshl_b32 s{S_A}, s9, 2'); A(f's_add_u32 s{S_A}, s{S_A}, s7')
    A(f's_mul_i32 s{S_A}, s{S_A}, 43')
    A(f's_mul_i32 s{S_B}, s8, 3'); A(f's_add_u32 s{S_A}, s{S_A}, s{S_B}')
    A(f's_add_u32 s{S_A}, s{S_A}, s{S_K1}')
    A(f's_lshl_b32 s{S_A}, s{S_A}, 10'); A(f's_add_u32 s{S_A}, s{S_A}, {Z1}')
    PZ = V_BF + 16
    A(f'v_and_b32 {v(T+3)}, 15, v0'); A(f'v_lshrrev_b32 {v(T+4)}, 4, v0')
    A(f'v_lshlrev_b32 {v(T+4)}, 2, {v(T+4)}')
    A(f'v_sub_u32 {v(T+3)}, {v(T+3)}, {v(T+4)}')
    A(f'v_mov_b32 {v(T+4)}, 0x3f80'); A(f'v_mov_b32 {v(T+5)}, 0x3f800000')
    for half in range(2):
        A(f'v_cmp_eq_u32 vcc, {2*half}, {v(T+3)}')
        A(f'v_cndmask_b32 {v(V_ID+half)}, 0, {v(T+4)}, vcc')
        A(f'v_cmp_eq_u32 vcc, {2*half+1}, {v(T+3)}')
        A(f'v_cndmask_b32 {v(V_ID+half)}, {v(V_ID+half)}, {v(T+5)}, vcc')
    for bi in range(3):
        for tb2 in range(2):
            z = V_ACC1 + (bi*2+tb2)*4
            P = PZ + (bi*2+tb2)*2
            A(f'v_cvt_pk_bf16_f32 {v(P)}, {v(z)}, {v(z+1)}')
            A(f'v_cvt_pk_bf16_f32 {v(P+1)}, {v(z+2)}, {v(z+3)}')
        A(f's_add_u32 s{S_B}, s{S_A}, {bi*1024}')
        A(f's_cmp_gt_u32 s13, {bi}'); A(f's_cselect_b32 s{S_B}, s{S_B}, {WS_USED}')
        ws_store(A, 4, PZ + bi*4, T, f's{S_B}', SF)
    vm.issue('z1', 3)
    A(f's_waitcnt vmcnt({vm.wait_n("st")})')
    for (x, y) in ((0,1),(2,3),(4,5),(6,7),(0,2),(4,6),(0,4)):
        A(f'v_add_f32 {v(ST+x)}, {v(ST+x)}, {v(ST+y)}')
    A(f'v_mul_f32 {v(ST)}, {hex(f2u(1.0/688.0))}, {v(ST)}')
    A(f'v_mov_b32 {v(ST+1)}, {v(ST)}')
    A(f'v_permlane16_swap_b32 {v(ST)}, {v(ST+1)}')
    A(f'v_fma_f32 {v(ST+1)}, -{v(ST)}, {v(ST)}, {v(ST+1)}')
    A(f'v_add_f32 {v(ST+1)}, {hex(f2u(1e-5))}, {v(ST+1)}')
    A(f'v_rsq_f32 {v(ST+1)}, {v(ST+1)}')
    A(f'v_mul_f32 {v(ST)}, {v(ST)}, {v(ST+1)}')
    A(f'v_mov_b32 {v(ST+2)}, {v(ST)}'); A(f'v_mov_b32 {v(ST+3)}, {v(ST+1)}')
    A(f'v_permlane32_swap_b32 {v(ST)}, {v(ST+2)}')
    A(f'v_permlane32_swap_b32 {v(ST+1)}, {v(ST+3)}')
    RS = [ST+4, ST+6]; MS = [ST+8, ST+10]
    for tb2 in range(2):
        for h in range(2):
            A(f'v_mov_b32 {v(RS[tb2]+h)}, {v(ST+1+2*tb2)}')
            A(f'v_mov_b32 {v(MS[tb2]+h)}, {v(ST+2*tb2)}')
    A(f'v_lshlrev_b32 {v(T)}, 4, v0')
    A(f's_mul_i32 s{S_B}, s8, 3'); A(f's_add_u32 s{S_A}, s{S_B}, s{S_K2}')
    A(f's_lshl_b32 s{S_A}, s{S_A}, 6')
    A(f's_lshl_b32 s{S_B}, s9, 2'); A(f's_add_u32 s{S_A}, s{S_A}, s{S_B}'); A(f's_add_u32 s{S_A}, s{S_A}, s7')
    A(f's_lshl_b32 s{S_A}, s{S_A}, 10'); A(f's_add_u32 s{S_A}, s{S_A}, {Z2T}')
    PK = V_BF + 12
    for bi in range(3):
        for tb2 in range(2):
            z = V_ACC0 + (bi*2+tb2)*4
            for h in range(2):
                A(f'v_pk_fma_f32 {v(z+2*h,2)}, {v(z+2*h,2)}, {v(RS[tb2],2)}, {v(MS[tb2],2)} neg_lo:[0,0,1] neg_hi:[0,0,1]')
            A(f'v_cvt_pk_bf16_f32 {v(PK+tb2*2)}, {v(z)}, {v(z+1)}')
            A(f'v_cvt_pk_bf16_f32 {v(PK+tb2*2+1)}, {v(z+2)}, {v(z+3)}')
        D = V_ACC1 + bi*8
        for tb2 in range(2):
            A(f'v_mfma_f32_16x16x16_bf16 {v(D+tb2*4,4)}, {v(PK+tb2*2,2)}, {v(V_ID,2)}, 0')
    for bi in range(3):
        D = V_ACC1 + bi*8
        P = V_BF + 28 - 12 + bi*4 + 0
        P = V_BF + 16 + bi*4
        for tb2 in range(2):
            A(f'v_cvt_pk_bf16_f32 {v(P+tb2*2)}, {v(D+tb2*4)}, {v(D+tb2*4+1)}')
            A(f'v_cvt_pk_bf16_f32 {v(P+tb2*2+1)}, {v(D+tb2*4+2)}, {v(D+tb2*4+3)}')
        A(f's_add_u32 s{S_B}, s{S_A}, {bi*65536}')
        A(f's_cmp_gt_u32 s13, {bi}'); A(f's_cselect_b32 s{S_B}, s{S_B}, {WS_USED}')
        ws_store(A, 4, P, T, f's{S_B}', SF)
    vm.issue('z2', 3)

def p1_gate(A):
    SF = CFG['sf']
    T = V_T
    def body():
        srd(A, SRD_M, P_GW, 1024)
        A(f'v_and_b32 {v(T+7)}, 0x30, v0')
        G = V_BF
        ACC = V_ACC0
        for half in range(2):
            for k in range(8):
                A(f'buffer_load_dwordx4 {v(G+4*k,4)}, {v(T+7)}, {SR(SRD_M)}, 0 offen offset:{(half*8+k)*64}')
            A('s_waitcnt vmcnt(0)')
            for k in range(8):
                ks = half*8 + k
                for tb2 in range(2):
                    acc = ACC + tb2*4
                    cin = '0' if ks == 0 else v(acc,4)
                    A(f'v_mfma_f32_16x16x32_bf16 {v(acc,4)}, {a(XF(tb2,ks),4)}, {v(G+4*k,4)}, {cin}')
        for i in range(8): A(f'v_mul_f32 {v(ACC+i)}, {hex(f2u(-LOG2E))}, {v(ACC+i)}')
        for i in range(8): A(f'v_exp_f32 {v(ACC+i)}, {v(ACC+i)}')
        for i in range(8): A(f'v_add_f32 {v(ACC+i)}, 1.0, {v(ACC+i)}')
        for i in range(8): A(f'v_rcp_f32 {v(ACC+i)}, {v(ACC+i)}')
        A(f's_lshl_b32 s{S_A}, s9, 9'); A(f's_lshl_b32 s{S_B}, s7, 7'); A(f's_add_u32 s{S_A}, s{S_A}, s{S_B}')
        A(f's_add_u32 s{S_A}, s{S_A}, {GATE}')
        A(f's_mov_b64 s[{S_EX}:{S_EX+1}], exec')
        A(f's_mov_b32 exec_lo, 0x00010001'); A(f's_mov_b32 exec_hi, 0x00010001')
        for tb2 in range(2):
            A(f'buffer_store_dwordx4 {v(ACC+4*tb2,4)}, {v(T+7)}, {SR(SRD_WS)}, s{S_A} offen offset:{tb2*64} {SF}')
        A(f's_mov_b64 exec, s[{S_EX}:{S_EX+1}]')
    L = A.label('gate')
    A('s_cmp_lg_u32 s14, 7'); A(f's_cbranch_scc1 {L}')
    A('s_cmp_eq_u32 s8, 0'); A(f's_cbranch_scc1 {L}')
    body()
    A(f'{L}:')

def p1_decode(A):
    A('s_and_b32 s60, s2, 7'); A('s_lshr_b32 s61, s2, 3')
    A('s_and_b32 s62, s60, 1'); A('s_lshl_b32 s62, s62, 3'); A('s_and_b32 s63, s61, 7'); A('s_add_u32 s9, s62, s63')
    A('s_lshr_b32 s62, s60, 1'); A('s_lshl_b32 s62, s62, 2'); A('s_lshr_b32 s63, s61, 3'); A('s_add_u32 s10, s62, s63')
    A('s_lshr_b32 s62, s60, 1'); A('s_lshl_b32 s62, s62, 3'); A('s_and_b32 s63, s61, 7'); A(f's_add_u32 s{S_T2}, s62, s63')
    A('s_lshl_b32 s62, s60, 2'); A('s_and_b32 s63, s61, 3'); A(f's_add_u32 s{S_T3}, s62, s63')
    A(f's_lshr_b32 s{S_N3}, s61, 2')

W_RA = 100
def w_read_addr(A, T):
    A(f'v_lshrrev_b32 {v(T)}, 4, v0'); A(f'v_and_b32 {v(T+1)}, 15, v0')
    A(f'v_lshrrev_b32 {v(T+2)}, 1, {v(T)}')
    A(f'v_xor_b32 {v(T+2)}, {v(T+2)}, {v(T+1)}')
    A(f'v_lshlrev_b32 {v(T+2)}, 4, {v(T+2)}')
    A(f'v_and_b32 {v(T+3)}, 1, {v(T)}')
    A(f'v_lshl_add_u32 {v(T+2)}, {v(T+3)}, 3, {v(T+2)}')
    A(f'v_lshl_add_u32 {v(T+2)}, {v(T+1)}, 8, {v(T+2)}')
    A(f's_lshl_b32 s{S_A}, s8, 13')
    A(f'v_add_u32 {v(W_RA)}, s{S_A}, {v(T+2)}')
    for i in range(1, 8): A(f'v_xor_b32 {v(W_RA+i)}, {32*i}, {v(W_RA)}')
def w_consume(A, r, T):
    slot0 = (4*r) % 8
    A(f's_lshl_b32 s{S_A}, s7, 14'); A(f's_add_u32 s{S_A}, s{S_A}, {slot0*UNIT}')
    for i in range(8): A(f'v_add_u32 {v(T+i)}, s{S_A}, {v(W_RA+i)}')
    n = 0
    for sp in range(4):
        for tb2 in range(2):
            d = XF(tb2, 4*r + sp)
            A(f'ds_read_b64 {a(d,2)}, {v(T+2*sp)} offset:{tb2*4096}')
            A(f'ds_read_b64 {a(d+2,2)}, {v(T+2*sp+1)} offset:{tb2*4096}')
            n += 2
            if n == 12: A('s_waitcnt lgkmcnt(6)')

def emit_p1(A):
    LW = A.label('p1win'); LE = A.label('p1end')
    A('s_cmp_ge_u32 s10, 8'); A(f's_cbranch_scc1 {LW}')
    for typ in ('qkv', 'win'):
        U = p1_units()
        vm = VM()
        if typ == 'qkv':
            srd(A, SRD_WB, P_WQKV, 512*3072)
            A(f's_movk_i32 s{S_K3}, 896'); A(f's_movk_i32 s{S_K4}, 3072')
        else:
            A(f'{LW}:')
            srd(A, SRD_WB, P_WIN, 512*2752)
            A('s_sub_u32 s14, s10, 8')
            A('s_mul_i32 s11, s14, 192'); A('s_mov_b32 s12, s11'); A('s_add_u32 s11, s11, 1408')
            A(f's_mul_i32 s{S_K1}, s14, 6'); A(f's_add_u32 s{S_K2}, s{S_K1}, 1')
            A('s_mov_b32 s13, 3')
            def lo():
                A('s_mov_b32 s11, 1376'); A('s_mov_b32 s12, 1344')
                A(f's_mov_b32 s{S_K1}, 42'); A(f's_mov_b32 s{S_K2}, 0')
                A('s_xor_b32 s13, s8, 1')
            if_s(A, ('eq', 's14', 7), lo)
        for f in p1_issue_list(A, typ, vm, 0, U): f()
        p1_b_dma_addr(A, typ)
        NPRO = CFG['npro']
        for n in range(1, NPRO):
            for f in p1_issue_list(A, typ, vm, n, U): f()
        stamp(A, 'pro')
        if typ == 'qkv': p1_q_dma_addr(A)
        p1_read_addr(A, typ)
        w_dma_addr(A, V_WD, V_T)
        stamp(A, 'addr')
        state = dict(issued=NPRO, maxper=CFG['maxper'])
        if typ == 'qkv': state['hooks'] = {(0, 1): lambda: emit_init_flag(A)}
        blocks = p1_blocks(A, typ, 0, vm, U, state, {c: c for c in range(8)}, 24)
        if CFG['prof']:
            for c in (0, 3, 7): blocks[2*c+1]['post'] = (lambda c=c: stamp(A, f'g0s{c}'))
        pipeline(A, blocks)
        if typ == 'qkv': p1_qkv_epi0(A, vm)
        else: p1_win_epi0(A, vm)
        stamp(A, 'epi0')
        state['maxper'] = 2
        def hook0():
            if typ == 'qkv': p1_qkv_epi0b(A, vm)
            else: p1_win_epi0b(A, vm)
            flag_load(A)
            vm.mark('pub')
        def hook2():
            def body():
                flag_check(A, V_T+7)
                if typ == 'win':
                    A(f's_lshl_b32 s{S_A}, s9, 8'); A(f's_add_u32 s{S_A}, s{S_A}, {cnt(C_STATS)}')
                    signal(A, S_A, V_T+7)
            if_s(A, ('eq', 's6', 0), body)
        state['hooks'] = {(1, 0): hook0, (1, 2): hook2}
        state['also_mark'] = {(1, 2): 'pub'}
        blocks = p1_blocks(A, typ, 1, vm, U, state, {0: 1, 2: 3, 4: 5, 6: 7}, 32)
        if CFG['prof']:
            for c in (1, 3, 7): blocks[2*c+1]['post'] = (lambda c=c: stamp(A, f'g1s{c}'))
        pipeline(A, blocks)
        if typ == 'win':
            p1_gate(A)
            def pl():
                A(f's_lshl_b32 s{S_POLL}, s9, 8'); A(f's_add_u32 s{S_POLL}, s{S_POLL}, {cnt(C_STATS)}')
                poll(A, SRD_WS, f's{S_POLL}', 8, V_T+7, 'pst')
            if_s(A, ('eq', 's6', 0), pl)
        A('s_barrier')
        stamp(A, 'e1bar')
        if typ == 'win': p1_win_epi1(A, vm)
        else: p1_qkv_epi1(A, vm)
        vm.mark('stores')
        stamp(A, 'epi1')
        while state['issued'] < 32:
            for f in p1_issue_list(A, typ, vm, state['issued'], U): f()
            state['issued'] += 1
        w_read_addr(A, V_T)
        A(f's_waitcnt vmcnt({vm.wait_n(24+3)})')
        A('s_barrier')
        w_consume(A, 0, V_TA - 1)
        A('s_waitcnt vmcnt(0)')
        A('s_barrier')
        def sig():
            if typ == 'qkv': A(f's_lshl_b32 s{S_A}, s10, 8'); A(f's_add_u32 s{S_A}, s{S_A}, {cnt(C_QKV)}')
            else: A(f's_lshl_b32 s{S_A}, s14, 8'); A(f's_add_u32 s{S_A}, s{S_A}, {cnt(C_WIN)}')
            signal(A, S_A, V_T+7)
        if_s(A, ('eq', 's6', 0), sig)
        stamp(A, 'p1sig')
        w_consume(A, 1, V_TA - 1)
        A('s_waitcnt lgkmcnt(0)')
        A('s_barrier')
        vm2 = VM()
        for k in range(8, 16):
            for f in w_issue_list(A, vm2, k, k % 8, ('w', k)): f()
        A(f's_waitcnt vmcnt({vm2.wait_n(("w", 11))})')
        A('s_barrier')
        w_consume(A, 2, V_TA - 1)
        A('s_waitcnt vmcnt(0)')
        A('s_barrier')
        w_consume(A, 3, V_TA - 1)
        A('s_waitcnt lgkmcnt(0)')
        stamp(A, 'wdone')
        if typ == 'qkv': A(f's_branch {LE}')
    A(f'{LE}:')

P2_ACC = 4; P2_BF = 52
P2_ZD = 108; P2_ZR = 111; P2_T = 114
ZST = 24576; NZ = 6
def WF(tb2, s_): return XF(tb2, s_)

def p2_decode(A):
    A('s_and_b32 s60, s2, 7'); A('s_lshr_b32 s61, s2, 3')
    A(f's_mov_b32 s9, s{S_T2}')
    A('s_and_b32 s62, s60, 1'); A('s_lshl_b32 s62, s62, 2'); A('s_lshr_b32 s63, s61, 3'); A('s_add_u32 s10, s62, s63')
    A('s_mul_i32 s11, s10, 6'); A('s_add_u32 s11, s11, 1')
    A('s_cmp_eq_u32 s10, 7'); A('s_cselect_b32 s11, 0, s11')

def p2_z_addr(A):
    T = P2_T
    A(f'v_lshlrev_b32 {v(T)}, 4, v0')
    A(f's_mul_i32 s{S_A}, s8, 3'); A(f's_add_u32 s{S_A}, s{S_A}, s11'); A(f's_lshl_b32 s{S_A}, s{S_A}, 16')
    A(f's_lshl_b32 s{S_B}, s7, 14'); A(f's_add_u32 s{S_A}, s{S_A}, s{S_B}')
    for i in range(3):
        A(f's_add_u32 s{S_B}, s{S_A}, {i*65536 - i*1024}')
        A(f'v_add_u32 {v(P2_ZD+i)}, s{S_B}, {v(T)}')
    A(f's_mul_i32 s{S_A}, s7, 6144')
    A(f'v_add_u32 {v(P2_ZR)}, s{S_A}, {v(T)}')
    A(f's_mul_i32 s{S_K1}, s7, 6144'); A(f's_mul_i32 s{S_B}, s8, 3072'); A(f's_add_u32 s{S_K1}, s{S_K1}, s{S_B}')

def p2_z_issue_list(A, vm, st, nf):
    out = []
    for i in range(3 if nf == 6 else 1):
        def f(i=i):
            def body():
                A(f's_add_u32 m0, s{S_K1}, {(st % NZ)*ZST}')
                A(f's_mov_b32 s{S_SOFF}, {Z2T + st*1024}')
                A(f'buffer_load_dwordx4 {v(P2_ZD+i)}, {SR(SRD_WS)}, s{S_SOFF} offen offset:{i*1024} {CFG["zlf"]} lds')
            if nf == 1: if_s(A, ('eq', 's8', 0), body)
            else: body()
            vm.issue(('z', st))
        out.append(f)
    return out

def p2_main(A, vm, nf, hooks):
    blocks = []
    issued = 2
    for st in range(16):
        blk = dict(reads=[], mfmas=[], extra=[])
        base = (st % NZ) * ZST
        hi = base + 6144 > 65535 - 6144
        def pre(st=st, base=base, hi=hi):
            A(f's_waitcnt vmcnt({vm.wait_n(("z", st))})')
            A('s_barrier')
            if hi: A(f'v_add_u32 {v(P2_T)}, {base}, {v(P2_ZR)}')
            if st in hooks: hooks[st]()
        blk['pre'] = pre
        todo = []
        while issued < 16 and issued <= st + NZ - 1 and len(todo) < 2:
            todo.append(issued); issued += 1
        blk['stages'] = todo
        for fbi in range(nf):
            r0 = P2_BF + (st % 2)*24 + fbi*4
            if hi: blk['reads'].append(f'ds_read_b128 {v(r0,4)}, {v(P2_T)} offset:{fbi*1024}')
            else: blk['reads'].append(f'ds_read_b128 {v(r0,4)}, {v(P2_ZR)} offset:{base + fbi*1024}')
        for fbi in range(nf):
            for tb2 in range(2):
                acc = P2_ACC + (tb2*6+fbi)*4
                cin = '0' if st == 0 else v(acc,4)
                blk['mfmas'].append(f'v_mfma_f32_16x16x32_bf16 {v(acc,4)}, {v(P2_BF + (st%2)*24 + fbi*4,4)}, {a(WF(tb2,st),4)}, {cin}')
        blocks.append(blk)
    for blk in blocks:
        ex = []
        for st in blk['stages']: ex += p2_z_issue_list(A, vm, st, nf)
        blk['extra'] = ex
    return blocks

J_REG = [116, 121]
def p2_job_scalars(A, job, nf):
    if nf == 6:
        A(f's_add_u32 s{S_A}, s7, {4*job}')
        A(f's_cmp_ge_u32 s{S_A}, 3'); A(f's_cselect_b32 s{S_B}, 1, 0')
        A(f's_mul_i32 s{S_C}, s{S_B}, 3'); A(f's_sub_u32 s{12+job}, s{S_A}, s{S_C}')
    else:
        A(f's_mov_b32 s{S_B}, s7'); A(f's_mov_b32 s{12+job}, 0')
    A(f's_lshl_b32 s{S_D}, s9, 2'); A(f's_lshl_b32 s{S_E}, s8, 1'); A(f's_add_u32 s{S_D}, s{S_D}, s{S_E}'); A(f's_add_u32 s{S_K3+job}, s{S_D}, s{S_B}')

def p2_epi_loads(A, job, J, nf, T):
    LF = CFG['lf']
    A(f's_lshr_b32 s{S_D}, s{S_K3+job}, 1')
    A(f's_mul_i32 s{S_E}, s{S_D}, 43'); A(f's_add_u32 s{S_E}, s{S_E}, s11'); A(f's_lshl_b32 s{S_C}, s{12+job}, 1'); A(f's_add_u32 s{S_E}, s{S_E}, s{S_C}')
    A(f's_lshl_b32 s{S_E}, s{S_E}, 10'); A(f's_add_u32 s{S_E}, s{S_E}, {Z1}')
    A(f's_and_b32 s{S_D}, s{S_K3+job}, 1'); A(f's_lshl_b32 s{S_D}, s{S_D}, 3'); A(f's_add_u32 s{S_E}, s{S_E}, s{S_D}')
    A(f'v_lshlrev_b32 {v(T)}, 4, v0')
    A(f'buffer_load_dwordx2 {v(J,2)}, {v(T)}, {SR(SRD_WS)}, s{S_E} offen {LF}')
    if nf == 6: A(f'buffer_load_dwordx2 {v(J+2,2)}, {v(T)}, {SR(SRD_WS)}, s{S_E} offen offset:1024 {LF}')
    A(f'v_and_b32 {v(T+1)}, 15, v0')
    A(f'v_lshlrev_b32 {v(T)}, 2, {v(T+1)}')
    A(f's_lshl_b32 s{S_E}, s{S_K3+job}, 6'); A(f's_add_u32 s{S_E}, s{S_E}, {GATE}')
    A(f'buffer_load_dword {v(J+4)}, {v(T)}, {SR(SRD_WS)}, s{S_E} offen {LF}')
    A(f'v_lshlrev_b32 {v(T+1)}, 1, {v(T+1)}')
    A(f's_lshl_b32 s{S_E}, s{S_K3+job}, 5')
    A(f'buffer_load_ushort {v(J+5)}, {v(T+1)}, {SR(SRD_M)}, s{S_E} offen')

def p2_epilogue(A, nf):
    SF = CFG['sf']
    T = P2_T
    JA = P2_BF; JB = P2_BF + 8
    srd(A, SRD_M, P_BSP, 4096)
    A('s_barrier')
    owners = (lambda body: body()) if nf == 6 else (lambda body: if_s(A, ('lt', 's7', 2), body))
    def ld0():
        p2_job_scalars(A, 0, nf); p2_epi_loads(A, 0, JA, nf, T)
    owners(ld0)
    if nf == 6:
        def ld1():
            p2_job_scalars(A, 1, nf); p2_epi_loads(A, 1, JB, nf, T)
        if_s(A, ('lt', 's7', 2), ld1)
    A(f'v_lshlrev_b32 {v(T+4)}, 4, v0')
    A(f's_mul_i32 s{S_A}, s8, 49152'); A(f's_lshl_b32 s{S_B}, s7, 11'); A(f's_add_u32 s{S_A}, s{S_A}, s{S_B}')
    A(f'v_add_u32 {v(T+5)}, s{S_A}, {v(T+4)}')
    if nf == 6:
        for tb2 in range(2):
            for fbi in range(6):
                phi = tb2*3 + fbi//2
                A(f'ds_write_b128 {v(T+5)}, {v(P2_ACC + (tb2*6+fbi)*4,4)} offset:{phi*8192 + (fbi%2)*1024}')
    else:
        for tb2 in range(2):
            A(f'ds_write_b128 {v(T+5)}, {v(P2_ACC + (tb2*6)*4,4)} offset:{tb2*8192}')
    c1v = P2_BF + 46
    gelu_consts(A, c1v)
    nb = 2 if nf == 6 else 1
    def prep(j, J):
        Z = P2_BF + 16 + j*8
        for b in range(nb):
            for h in range(2):
                src = J + b*2 + h
                A(f'v_lshlrev_b32 {v(Z+b*4+2*h)}, 16, {v(src)}')
                A(f'v_and_b32 {v(Z+b*4+2*h+1)}, 0xffff0000, {v(src)}')
        gelu_block(A, Z, 4*nb, P2_BF + 32, c1v)
        A(f'v_lshlrev_b32 {v(J+5)}, 16, {v(J+5)}')
        A(f'v_sub_f32 {v(J+4)}, 1.0, {v(J+4)}')
        A(f'v_mov_b32 {v(J+6)}, {v(J+5)}'); A(f'v_mov_b32 {v(J+7)}, {v(J+5)}')
        A(f'v_mov_b32 {v(J+5)}, {v(J+4)}')
        for b in range(nb):
            for h in range(2):
                A(f'v_pk_mul_f32 {v(Z+b*4+2*h,2)}, {v(Z+b*4+2*h,2)}, {v(J+4,2)}')
    A('s_waitcnt vmcnt(0)')
    owners(lambda: prep(0, JA))
    if nf == 6: if_s(A, ('lt', 's7', 2), lambda: prep(1, JB))
    A('s_waitcnt lgkmcnt(0)')
    A('s_barrier')
    def job(j, J):
        R = P2_ACC
        Z = P2_BF + 16 + j*8
        A(f's_add_u32 s{S_A}, s7, {4*j}'); A(f's_lshl_b32 s{S_A}, s{S_A}, 13')
        A(f's_mul_i32 s{S_B}, s8, 49152'); A(f's_add_u32 s{S_A}, s{S_A}, s{S_B}')
        A(f'v_add_u32 {v(T+5)}, s{S_A}, {v(T+4)}')
        for b in range(nb):
            for k in range(4):
                A(f'ds_read_b128 {v(R + (b*4+k)*4,4)}, {v(T+5)} offset:{k*2048 + b*1024}')
        if nf == 6:
            A(f's_mul_i32 s{S_A}, s{S_K3+j}, 21'); A(f's_mul_i32 s{S_B}, s10, 3'); A(f's_add_u32 s{S_A}, s{S_A}, s{S_B}')
            A(f's_add_u32 s{S_A}, s{S_A}, s{12+j}'); A(f's_lshl_b32 s{S_A}, s{S_A}, 10'); A(f's_add_u32 s{S_A}, s{S_A}, {UO}')
        else:
            A(f's_lshl_b32 s{S_A}, s{S_K3+j}, 9'); A(f's_add_u32 s{S_A}, s{S_A}, {U0}')
        A('s_waitcnt lgkmcnt(0)')
        O = P2_ACC + 32 + j*4
        for b in range(nb):
            R0 = R + b*16
            for h in range(2):
                A(f'v_pk_add_f32 {v(R0+2*h,2)}, {v(R0+2*h,2)}, {v(R0+4+2*h,2)}')
                A(f'v_pk_add_f32 {v(R0+8+2*h,2)}, {v(R0+8+2*h,2)}, {v(R0+12+2*h,2)}')
            for h in range(2): A(f'v_pk_add_f32 {v(R0+2*h,2)}, {v(R0+2*h,2)}, {v(J+6,2)}')
            for h in range(2): A(f'v_pk_add_f32 {v(R0+2*h,2)}, {v(R0+2*h,2)}, {v(R0+8+2*h,2)}')
            for h in range(2): A(f'v_pk_mul_f32 {v(R0+2*h,2)}, {v(R0+2*h,2)}, {v(Z+b*4+2*h,2)}')
            for h in range(2): A(f'v_cvt_pk_bf16_f32 {v(O+b*2+h)}, {v(R0+2*h)}, {v(R0+2*h+1)}')
        if nf == 6:
            ws_store(A, 4, O, T+4, f's{S_A}', SF)
        else:
            A(f'v_lshlrev_b32 {v(T+6)}, 3, v0')
            ws_store(A, 2, O, T+6, f's{S_A}', SF)
    owners(lambda: job(0, JA))
    if nf == 6: if_s(A, ('lt', 's7', 2), lambda: job(1, JB))

def p2_ojob(A):
    SF = CFG['sf']; LF = CFG['lf']
    T = P2_T
    A(f's_lshr_b32 s12, s9, 1')
    A('s_barrier')
    A(f's_and_b32 s13, s9, 1'); A(f's_lshl_b32 s13, s13, 6'); A(f's_lshl_b32 s{S_A}, s6, 3'); A(f's_add_u32 s13, s13, s{S_A}')
    A(f's_lshl_b32 s{S_A}, s12, 1'); A(f's_add_u32 s{S_A}, s{S_A}, s8')
    A(f's_lshl_b32 s{S_B}, s7, 7'); A(f's_add_u32 s{S_B}, s{S_B}, s{S_A}')
    A(f's_lshl_b32 s{S_C}, s{S_B}, 6'); A(f's_add_u32 s{S_C}, s{S_C}, {KZ}')
    A(f's_lshl_b32 s{S_B}, s{S_B}, 10'); A(f's_add_u32 s{S_B}, s{S_B}, {KVP}')
    A(f'v_lshlrev_b32 {v(T)}, 4, v0'); A(f'v_and_b32 {v(T+1)}, 0x30, v0')
    R = P2_ACC
    for i in range(4):
        A(f'buffer_load_dwordx4 {v(R+4*i,4)}, {v(T)}, {SR(SRD_WS)}, s{S_B} offen {LF}')
        A(f'buffer_load_dwordx4 {v(R+16+4*i,4)}, {v(T+1)}, {SR(SRD_WS)}, s{S_C} offen {LF}')
        A(f's_add_u32 s{S_B}, s{S_B}, {32*1024}'); A(f's_add_u32 s{S_C}, s{S_C}, {32*64}')
    Q = P2_BF; G = P2_BF + 32
    A(f'v_lshlrev_b32 {v(T+2)}, 3, v0')
    A(f'v_and_b32 {v(T+3)}, 15, v0'); A(f'v_lshlrev_b32 {v(T+3)}, 2, {v(T+3)}')
    A(f's_lshl_b32 s{S_A}, s12, 7'); A(f's_lshr_b32 s{S_B}, s13, 1'); A(f's_add_u32 s{S_A}, s{S_A}, s{S_B}'); A(f's_lshl_b32 s{S_A}, s{S_A}, 10'); A(f's_add_u32 s{S_A}, s{S_A}, {QO}')
    for hh in range(2):
        A(f's_add_u32 s{S_B}, s{S_A}, {hh*65536}')
        for i in range(4):
            A(f'buffer_load_dwordx4 {v(Q+hh*16+i*4,4)}, {v(T)}, {SR(SRD_WS)}, s{S_B} offen offset:{i*1024} {LF}')
    A(f's_lshl_b32 s{S_B}, s13, 6'); A(f's_add_u32 s{S_B}, s{S_B}, {GATE}')
    for i in range(8):
        A(f'buffer_load_dword {v(G+i)}, {v(T+3)}, {SR(SRD_WS)}, s{S_B} offen offset:{i*64} {LF}')
    A('s_waitcnt vmcnt(16)')
    for base in (R, R+16):
        for h in range(2):
            A(f'v_pk_add_f32 {v(base+2*h,2)}, {v(base+2*h,2)}, {v(base+4+2*h,2)}')
            A(f'v_pk_add_f32 {v(base+8+2*h,2)}, {v(base+8+2*h,2)}, {v(base+12+2*h,2)}')
        for h in range(2): A(f'v_pk_add_f32 {v(base+2*h,2)}, {v(base+2*h,2)}, {v(base+8+2*h,2)}')
    A(f's_lshl_b32 s{S_A}, s6, 11')
    A(f'v_add_u32 {v(T+4)}, s{S_A}, {v(T)}')
    A(f'ds_write_b128 {v(T+4)}, {v(R,4)}')
    A(f'ds_write_b128 {v(T+4)}, {v(R+16,4)} offset:1024')
    A('s_waitcnt lgkmcnt(0)')
    A('s_barrier')
    KB = [P2_ACC+40, P2_ACC+42]; ZB = [P2_ACC+44, P2_ACC+46]
    for hh in range(2):
        for k in range(4):
            A(f'ds_read_b128 {v(R+4*k,4)}, {v(T)} offset:{(hh*4+k)*2048}')
            A(f'ds_read_b128 {v(R+16+4*k,4)}, {v(T)} offset:{(hh*4+k)*2048 + 1024}')
        A('s_waitcnt lgkmcnt(0)')
        for base, dst in ((R, KB[hh]), (R+16, ZB[hh])):
            for h in range(2):
                A(f'v_pk_add_f32 {v(base+2*h,2)}, {v(base+2*h,2)}, {v(base+4+2*h,2)}')
                A(f'v_pk_add_f32 {v(base+8+2*h,2)}, {v(base+8+2*h,2)}, {v(base+12+2*h,2)}')
            for h in range(2): A(f'v_pk_add_f32 {v(base+2*h,2)}, {v(base+2*h,2)}, {v(base+8+2*h,2)}')
            for h in range(2): A(f'v_cvt_pk_bf16_f32 {v(dst+h)}, {v(base+2*h)}, {v(base+2*h+1)}')
    A('s_waitcnt vmcnt(0)')
    A(f's_mov_b32 s{S_PAIR}, {hex(f2u(1e-6))}')
    for i0 in range(0, 8, 2):
        for di in range(2):
            i = i0 + di
            N = P2_ACC + di*16
            for hh in range(2):
                A(f'v_mfma_f32_16x16x16_bf16 {v(N+hh*4,4)}, {v(KB[hh],2)}, {v(Q+hh*16+i*2,2)}, 0')
                A(f'v_mfma_f32_16x16x16_bf16 {v(N+8+hh*4,4)}, {v(ZB[hh],2)}, {v(Q+hh*16+i*2,2)}, 0')
        for di in range(2):
            N = P2_ACC + di*16
            for hh in range(2): A(f'v_add_f32 {v(N+8+hh*4)}, s{S_PAIR}, {v(N+8+hh*4)}')
        for di in range(2):
            N = P2_ACC + di*16
            for hh in range(2): A(f'v_rcp_f32 {v(N+8+hh*4)}, {v(N+8+hh*4)}')
        for di in range(2):
            N = P2_ACC + di*16
            for hh in range(2):
                A(f'v_mul_f32 {v(N+8+hh*4)}, {v(N+8+hh*4)}, {v(G+i0+di)}')
            for hh in range(2):
                A(f'v_mov_b32 {v(N+8+hh*4+1)}, {v(N+8+hh*4)}')
        for di in range(2):
            N = P2_ACC + di*16
            for hh in range(2):
                for h in range(2):
                    A(f'v_pk_mul_f32 {v(N+hh*4+2*h,2)}, {v(N+hh*4+2*h,2)}, {v(N+8+hh*4,2)}')
        for di in range(2):
            N = P2_ACC + di*16
            X = P2_ACC + 32 + di*4
            for hh in range(2):
                for h in range(2):
                    A(f'v_cvt_pk_bf16_f32 {v(X+hh*2+h)}, {v(N+hh*4+2*h)}, {v(N+hh*4+2*h+1)}')
            A(f's_add_u32 s{S_A}, s13, {i0+di}'); A(f's_lshl_b32 s{S_A}, s{S_A}, 4'); A(f's_add_u32 s{S_A}, s{S_A}, s12')
            A(f's_lshl_b32 s{S_A}, s{S_A}, 10'); A(f's_add_u32 s{S_A}, s{S_A}, {OO}')
            ws_store(A, 4, X, T, f's{S_A}', SF)

P3_A = 4; P3_ACC = 80; P3_BR = 100; P3_BD = 104; P3_T = 112
def p3_b_setup(A):
    T = P3_T
    A(f'v_lshrrev_b32 {v(T)}, 3, v0'); A(f'v_and_b32 {v(T+1)}, 7, v0'); A(f'v_lshrrev_b32 {v(T+2)}, 4, v0')
    A(f'v_lshrrev_b32 {v(T+3)}, 1, {v(T+1)}')
    A(f'v_xor_b32 {v(T+3)}, {v(T+3)}, {v(T+2)}')
    A(f'v_lshlrev_b32 {v(T+3)}, 5, {v(T+3)}')
    A(f'v_and_b32 {v(T+4)}, 1, v0')
    A(f'v_lshl_add_u32 {v(T+3)}, {v(T+4)}, 4, {v(T+3)}')
    A(f'v_lshl_add_u32 {v(T+3)}, {v(T)}, 10, {v(T+3)}')
    A(f's_lshl_b32 s{S_A}, s{S_N3}, 7'); A(f's_lshl_b32 s{S_B}, s6, 13'); A(f's_add_u32 s{S_A}, s{S_A}, s{S_B}')
    A(f'v_add_u32 {v(P3_BD)}, s{S_A}, {v(T+3)}')
    A(f'v_and_b32 {v(T+4)}, 15, v0')
    A(f'v_lshrrev_b32 {v(T+5)}, 2, {v(T+4)}')
    A(f'v_lshl_add_u32 {v(T+5)}, {v(T+2)}, 2, {v(T+5)}')
    A(f'v_lshrrev_b32 {v(T+6)}, 1, {v(T+5)}'); A(f'v_and_b32 {v(T+6)}, 3, {v(T+6)}')
    A(f'v_and_b32 {v(T+4)}, 3, {v(T+4)}'); A(f'v_lshlrev_b32 {v(T+4)}, 3, {v(T+4)}')
    A(f'v_lshl_add_u32 {v(T+4)}, {v(T+5)}, 7, {v(T+4)}')
    for b in range(4):
        A(f'v_xor_b32 {v(T+7)}, {b}, {v(T+6)}')
        A(f'v_lshl_add_u32 {v(P3_BR+b)}, {v(T+7)}, 5, {v(T+4)}')
def p3_b_issue(A, m0_, m1_):
    for m in range(m0_, m1_):
        def body(m=m):
            A(f's_add_u32 m0, s{S_LW1}, {m*8192}')
            if m < 8:
                A(f's_mov_b32 s{S_SOFF}, {m*65536}')
                A(f'buffer_load_dwordx4 {v(P3_BD)}, {SR(SRD_X)}, s{S_SOFF} offen {CFG["b3f"]} lds')
            else:
                A(f's_mov_b32 s{S_SOFF}, {(m-8)*65536}')
                A(f'buffer_load_dwordx4 {v(P3_BD)}, {SR(SRD_WB)}, s{S_SOFF} offen {CFG["b3f"]} lds')
        if m == 18: if_s(A, ('lt', 's6', 6), body)
        else: body()

def p2_finish(A, nf):
    T = P2_T
    srd(A, SRD_X, P_WO, 512*1024)
    srd(A, SRD_WB, P_WOUT, 688*1024)
    A('s_barrier')
    p3_b_setup(A)
    p3_b_issue(A, 0, 8)
    A('s_waitcnt vmcnt(8)')
    A('s_barrier')
    def sig():
        A(f's_lshl_b32 s{S_A}, s9, 8'); A(f's_add_u32 s{S_A}, s{S_A}, {cnt(C_U)}')
        signal(A, S_A, T+8)
        if nf == 1:
            A(f's_and_b32 s{S_A}, s9, 1'); A(f's_lshl_b32 s{S_A}, s{S_A}, 10'); A(f's_add_u32 s{S_A}, s{S_A}, {cnt(C_O)}')
            signal(A, S_A, T+8, lanes=4, stride=256)
    if_s(A, ('eq', 's6', 0), sig)
    stamp(A, 'p2sig')
    p3_b_issue(A, 8, 19)

def emit_p2(A):
    p2_decode(A)
    p2_z_addr(A)
    def pl():
        A(f's_lshl_b32 s{S_A}, s10, 8'); A(f's_add_u32 s{S_A}, s{S_A}, {cnt(C_WIN)}')
        A(f's_add_u32 s{S_B}, s10, 1'); A(f's_and_b32 s{S_B}, s{S_B}, 7'); A(f's_lshl_b32 s{S_B}, s{S_B}, 8'); A(f's_add_u32 s{S_B}, s{S_B}, {cnt(C_WIN)}')
        A(f's_mov_b32 s{S_C}, {cnt(C_WIN+7)}')
        A(f's_lshr_b32 s{S_D}, s9, 2'); A(f's_lshl_b32 s{S_D}, s{S_D}, 8'); A(f's_add_u32 s{S_D}, s{S_D}, {cnt(C_QKV)}')
        A(f's_cmp_eq_u32 s10, 7'); A(f's_cselect_b32 s{S_D}, s{S_D}, s{S_C}')
        pollN(A, [(f's{S_A}', 16), (f's{S_B}', 16), (f's{S_C}', 16), (f's{S_D}', 16)], P2_T+6, 'pz2')
    if_s(A, ('eq', 's6', 0), pl)
    A('s_barrier')
    stamp(A, 'p2go')
    LL = A.label('p2left'); LE = A.label('p2end')
    A('s_cmp_eq_u32 s10, 7'); A(f's_cbranch_scc1 {LL}')
    for nf in (6, 1):
        if nf == 1: A(f'{LL}:')
        vm = VM()
        for st in range(2):
            for f in p2_z_issue_list(A, vm, st, nf): f()
        blocks = p2_main(A, vm, nf, {})
        if CFG['prof']:
            for st in (0, 7, 15): blocks[st]['post'] = (lambda st=st: stamp(A, f'p2s{st}'))
        pipeline(A, blocks)
        p2_epilogue(A, nf)
        stamp(A, 'p2epi')
        if nf == 1: p2_ojob(A)
        stamp(A, 'p2o')
        p2_finish(A, nf)
        if nf == 6: A(f's_branch {LE}')
    A(f'{LE}:')

def p3_steps(kh):
    allsteps = [('o', hp, 32*hp) for hp in range(16)] + [('u', p, 512 + 16 + 32*p) for p in range(21)] + [('u0', 0, 512)]
    return allsteps[:19] if kh == 0 else allsteps[19:]

def emit_p3(A):
    LF = CFG['lf']
    T = P3_T
    A(f's_mov_b32 s9, s{S_T3}'); A(f's_mov_b32 s10, s{S_N3}')
    def pl():
        A(f's_lshl_b32 s{S_A}, s9, 8'); A(f's_add_u32 s{S_A}, s{S_A}, {cnt(C_U)}')
        A(f's_lshr_b32 s{S_B}, s9, 4'); A(f's_lshl_b32 s{S_B}, s{S_B}, 2'); A(f's_and_b32 s{S_C}, s9, 3'); A(f's_add_u32 s{S_B}, s{S_B}, s{S_C}')
        A(f's_lshl_b32 s{S_B}, s{S_B}, 8'); A(f's_add_u32 s{S_B}, s{S_B}, {cnt(C_O)}')
        pollN(A, [(f's{S_A}', 8), (f's{S_B}', 16)], T+8, 'pu')
    A(f'v_lshlrev_b32 {v(T)}, 4, v0'); A(f'v_lshlrev_b32 {v(T+1)}, 3, v0')
    A(f's_lshl_b32 s11, s9, 2'); A(f's_add_u32 s11, s11, s7')
    A(f's_lshl_b32 s{S_K1}, s11, 14'); A(f's_add_u32 s{S_K1}, s{S_K1}, {OO}')
    A(f's_mul_i32 s{S_K2}, s11, {21*1024}'); A(f's_add_u32 s{S_K2}, s{S_K2}, {UO}')
    A(f's_lshl_b32 s{S_K3}, s11, 9'); A(f's_add_u32 s{S_K3}, s{S_K3}, {U0}')
    if_s(A, ('eq', 's6', 0), pl)
    A('s_waitcnt vmcnt(0)')
    A('s_barrier')
    stamp(A, 'p3go')
    LK = A.label('p3k1'); LJ = A.label('p3join')
    A('s_cmp_lg_u32 s8, 0'); A(f's_cbranch_scc1 {LK}')
    for kh in range(2):
        if kh == 1: A(f'{LK}:')
        steps = p3_steps(kh)
        vm = VM()
        def aload(i):
            kind, idx, row0 = steps[i]
            if kind == 'o':
                A(f's_add_u32 s{S_D}, s{S_K1}, {idx*1024}')
                A(f'buffer_load_dwordx4 {v(P3_A+4*i,4)}, {v(T)}, {SR(SRD_WS)}, s{S_D} offen {LF}')
            elif kind == 'u':
                A(f's_add_u32 s{S_D}, s{S_K2}, {idx*1024}')
                A(f'buffer_load_dwordx4 {v(P3_A+4*i,4)}, {v(T)}, {SR(SRD_WS)}, s{S_D} offen {LF}')
            else:
                A(f'buffer_load_dwordx2 {v(P3_A+4*i,2)}, {v(T+1)}, {SR(SRD_WS)}, s{S_K3} offen {LF}')
            vm.issue(i)
        NA = CFG['p3pro']
        for i in range(NA): aload(i)
        blocks = []
        nxt = NA
        for i, (kind, idx, row0) in enumerate(steps):
            blk = dict(reads=[], mfmas=[], extra=[])
            base = row0 * 128
            par = i % 2
            hi = base + 16*128 + 512 > 65535
            def pre(i=i, base=base, hi=hi, par=par):
                if hi:
                    for b in range(4): A(f'v_add_u32 {v(T+2+par*4+b)}, {base}, {v(P3_BR+b)}')
            blk['pre'] = pre
            for _ in range(CFG['p3per']):
                if nxt < len(steps):
                    blk['extra'].append(lambda n=nxt: aload(n)); nxt += 1
            for b in range(4):
                ad = (T+2+par*4+b, 0) if hi else (P3_BR+b, base)
                d = par*16 + b*4
                blk['reads'].append(f'ds_read_b64_tr_b16 {a(d,2)}, {v(ad[0])} offset:{ad[1]}')
                if kind != 'u0':
                    blk['reads'].append(f'ds_read_b64_tr_b16 {a(d+2,2)}, {v(ad[0])} offset:{ad[1] + 16*128}')
            for b in range(4):
                acc = P3_ACC + 4*b
                cin = '0' if i == 0 else v(acc,4)
                d = par*16 + b*4
                if kind == 'u0':
                    blk['mfmas'].append(f'v_mfma_f32_16x16x16_bf16 {v(acc,4)}, {a(d,2)}, {v(P3_A+4*i,2)}, {cin}')
                else:
                    blk['mfmas'].append(f'v_mfma_f32_16x16x32_bf16 {v(acc,4)}, {a(d,4)}, {v(P3_A+4*i,4)}, {cin}')
            blk['start'] = (lambda i=i: A(f's_waitcnt vmcnt({vm.wait_n(i)}) lgkmcnt(0)'))
            blocks.append(blk)
        pipeline(A, blocks)
        if kh == 0: A(f's_branch {LJ}')
    A(f'{LJ}:')
    stamp(A, 'p3main')
    A('s_barrier')
    A(f's_lshl_b32 s{S_A}, s7, 12'); A(f's_lshl_b32 s{S_B}, s8, 11'); A(f's_add_u32 s{S_A}, s{S_A}, s{S_B}')
    A(f'v_add_u32 {v(T+2)}, s{S_A}, {v(T)}')
    A(f's_xor_b32 s{S_B}, s{S_A}, 2048')
    A(f'v_add_u32 {v(T+3)}, s{S_B}, {v(T)}')
    LA = A.label('r0'); LB = A.label('r1')
    A('s_cmp_lg_u32 s8, 0'); A(f's_cbranch_scc1 {LA}')
    for b in (2, 3): A(f'ds_write_b128 {v(T+2)}, {v(P3_ACC+4*b,4)} offset:{(b-2)*1024}')
    A(f's_branch {LB}')
    A(f'{LA}:')
    for b in (0, 1): A(f'ds_write_b128 {v(T+2)}, {v(P3_ACC+4*b,4)} offset:{b*1024}')
    for b in (0, 1):
        for r in range(4): A(f'v_mov_b32 {v(P3_ACC+4*b+r)}, {v(P3_ACC+8+4*b+r)}')
    A(f'{LB}:')
    A('s_waitcnt lgkmcnt(0)')
    A('s_barrier')
    R = P3_A
    for b in range(2): A(f'ds_read_b128 {v(R+4*b,4)}, {v(T+3)} offset:{b*1024}')
    srd(A, SRD_M, P_OUT, 2048*1024)
    A(f'v_and_b32 {v(T+4)}, 15, v0'); A(f'v_lshlrev_b32 {v(T+4)}, 10, {v(T+4)}')
    A(f'v_lshrrev_b32 {v(T+5)}, 4, v0'); A(f'v_lshl_add_u32 {v(T+4)}, {v(T+5)}, 3, {v(T+4)}')
    A(f's_lshl_b32 s{S_A}, s11, 14'); A(f's_lshl_b32 s{S_B}, s10, 7'); A(f's_add_u32 s{S_A}, s{S_A}, s{S_B}')
    A(f's_lshl_b32 s{S_B}, s8, 6'); A(f's_add_u32 s{S_A}, s{S_A}, s{S_B}')
    A('s_waitcnt lgkmcnt(0)')
    for b in range(2):
        for h in range(2):
            A(f'v_pk_add_f32 {v(P3_ACC+4*b+2*h,2)}, {v(P3_ACC+4*b+2*h,2)}, {v(R+4*b+2*h,2)}')
    for b in range(2):
        for h in range(2):
            A(f'v_cvt_pk_bf16_f32 {v(R+8+2*b+h)}, {v(P3_ACC+4*b+2*h)}, {v(P3_ACC+4*b+2*h+1)}')
    for b in range(2):
        A(f'buffer_store_dwordx2 {v(R+8+2*b,2)}, {v(T+4)}, {SR(SRD_M)}, s{S_A} offen offset:{b*32}')
    stamp(A, 'p3end')

def wg0w0(A, body):
    L = A.label('init')
    A('s_cmp_lg_u32 s2, 0'); A(f's_cbranch_scc1 {L}')
    A('s_cmp_lg_u32 s6, 0'); A(f's_cbranch_scc1 {L}')
    body()
    A(f'{L}:')
def emit_init(A):
    def body():
        A('v_lshlrev_b32 v2, 8, v0'); A('v_mov_b32 v3, 0')
        A(f's_mov_b32 s{S_A}, {CNT}')
        A(f'buffer_store_dword v3, v2, {SR(SRD_WS)}, s{S_A} offen sc1')
        A(f's_add_u32 s{S_A}, s{S_A}, {64*256}')
        A(f'buffer_store_dword v3, v2, {SR(SRD_WS)}, s{S_A} offen sc1')
    wg0w0(A, body)
def emit_init_flag(A):
    def body():
        A('v_mov_b32 v2, 0'); A('v_mov_b32 v3, 1')
        A('s_mov_b64 exec, 1')
        A(f'buffer_store_dword v3, v2, {SR(SRD_DBG)}, 0 offen sc1')
        A('s_mov_b64 exec, -1')
    wg0w0(A, body)

def build():
    A = Asm()
    hdr = open('gated_mix__linear_attn_block__mixer_gmlp__prompt.s.ref').read().split('; Override launch geometry')[0]
    A(hdr.rstrip())
    A(f'; @launch grid=(256,1,1) block=(512,1,1) lds={LDS_BYTES}')
    A('.amdgcn_target "amdgcn-amd-amdhsa--gfx950"')
    A('.text')
    kernel_header(A, KNAME)
    A('s_cmp_ge_u32 s2, 256')
    A(f's_cbranch_scc1 k_exit')
    A('s_load_dwordx16 s[16:31], s[0:1], 0')
    A('s_load_dwordx8 s[32:39], s[0:1], 64')
    A('v_lshrrev_b32 v1, 6, v0')
    A('v_and_b32 v0, 63, v0')
    A('v_readfirstlane_b32 s6, v1')
    A('s_and_b32 s7, s6, 3'); A('s_lshr_b32 s8, s6, 2')
    A(f's_lshl_b32 s{S_LW}, s6, 11'); A(f's_lshl_b32 s{S_LW1}, s6, 10')
    stamp(A, 'start')
    p1_decode(A)
    p1_x_addr(A)
    A('s_waitcnt lgkmcnt(0)')
    srd(A, SRD_X, P_X, 2048*1024)
    srd(A, SRD_WS, P_WS, WS_USED)
    srd(A, SRD_DBG, P_DBG, 256)
    srd(A, SRD_WSP, P_WSP, 2048*4096)
    emit_init(A)
    emit_p1(A)
    emit_p2(A)
    emit_p3(A)
    stamp_flush(A)
    A('k_exit:')
    A('s_endpgm')
    A('.section .rodata,"a"')
    A('.p2align 6')
    A(kernel_desc(KNAME, 256, accum=128))
    return A

if __name__ == '__main__':
    out = sys.argv[1]
    for a_ in sys.argv[2:]:
        k_, v_ = a_.split('=')
        CFG[k_] = int(v_) if v_.lstrip('-').isdigit() else v_.replace('_', ' ')
    A = build()
    t = A.text()
    open(out, 'w').write(t)
    if CFG['prof']: open(out + '.names', 'w').write(' '.join(_stamps))
    print('lines', t.count(chr(10)), 'nops inserted', A.nops_inserted)
```

```python
import sys, struct
from asmgen import *
from layout import *

UNIT = 16384
NU = 8
SCR = NU * UNIT
LDS_BYTES = 163840
KNAME = 'gated_mix__linear_attn_block__mixer_gmlp__prompt_kernel'

P_X, P_WQKV, P_WO, P_BX, P_WIN, P_WSP, P_BSP, P_WOUT = 16, 18, 20, 22, 24, 26, 28, 30
P_GW, P_OUT, P_DBG, P_WS = 32, 34, 36, 38
SRD_X, SRD_WB, SRD_WS, SRD_WSP, SRD_M = 40, 44, 48, 52, 56
S_A, S_B, S_C, S_D, S_E, S_F = 60, 61, 62, 63, 64, 65
S_SOFF = 66
S_POLL = 67
S_EX = 68
S_K1, S_K2, S_K3, S_K4 = 70, 71, 72, 73
S_LW, S_LW1 = 74, 75
S_PAIR = 76
SRD_DBG = 92
S_T2, S_T3, S_N3 = 96, 97, 98
S_XO, S_B0O, S_B1O = 99, 100, 101
S_C0 = 15
S_R0 = 5

C_STATS, C_WIN, C_QKV, C_U, C_O, C_Z1 = 0, 16, 24, 32, 64, 72
LCNT = NU*UNIT + 28672
def cnt(i): return CNT + i * 256

def f2u(x): return struct.unpack('<I', struct.pack('<f', x))[0]
LOG2E = 1.4426950408889634
GK = -2.0 * 0.7978845608028654 * LOG2E
GC = 0.044715

CFG = dict(prof=False, sf='sc1', lf='sc1', zlf='sc1', xf='', wf='', wspf='', b3f='', npro=4, maxper=3, codepf=1, p3pro=6, p3per=2, rot=2, rot2=4)
_stamps = []
PROF = 0x1000000
def stamp(A, name):
    if not CFG['prof']: return
    if name in _stamps: idx = _stamps.index(name)
    else: idx = len(_stamps); _stamps.append(name)
    A('s_waitcnt lgkmcnt(0)')
    A('s_memrealtime s[84:85]' if name.startswith('rt') else 's_memtime s[84:85]')
    A('s_waitcnt lgkmcnt(0)')
    A(f'v_writelane_b32 v127, s84, {idx}')
def stamp_flush(A):
    if not CFG['prof']: return
    A('s_waitcnt vmcnt(0)')
    A('s_lshl_b32 s84, s2, 3'); A('s_add_u32 s84, s84, s6'); A('s_lshl_b32 s84, s84, 8')
    A('v_lshlrev_b32 v126, 2, v0')
    A(f's_mov_b32 s88, s38'); A('s_and_b32 s89, s39, 0xffff'); A('s_mov_b32 s90, 0x2000000'); A('s_mov_b32 s91, 0x00020000')
    A(f's_add_u32 s84, s84, {PROF}')
    A('buffer_store_dword v127, v126, s[88:91], s84 offen')

class VM:
    def __init__(self): self.q = []; self.marks = {}
    def issue(self, tag, n=1): self.q += [tag] * n
    def wait_n(self, tag):
        idx = max(i for i, t in enumerate(self.q) if t == tag)
        return len(self.q) - 1 - idx
    def mark(self, name): self.marks[name] = len(self.q)
    def since(self, name): return len(self.q) - self.marks[name]

class VM2:
    def __init__(self): self.v = [VM(), VM()]
    def issue(self, tag, n=1, who=(0, 1)):
        for w in who: self.v[w].issue(tag, n)
    def mark(self, name):
        for x in self.v: x.mark(name)
    def counts(self, tag, mark=None):
        out = []
        for x in self.v:
            N = x.wait_n(tag) if (tag is not None and tag in x.q) else 63
            if mark is not None: N = min(N, x.since(mark))
            out.append(N)
        return out
    def wait(self, A, tag, mark=None):
        n0, n1 = self.counts(tag, mark)
        if n0 == n1: A(f's_waitcnt vmcnt({min(n0,63)})'); return
        L0 = A.label('vw'); L1 = A.label('vw')
        A('s_cmp_eq_u32 s8, 0'); A(f's_cbranch_scc1 {L0}')
        A(f's_waitcnt vmcnt({min(n1,63)})'); A(f's_branch {L1}')
        A(f'{L0}:'); A(f's_waitcnt vmcnt({min(n0,63)})'); A(f'{L1}:')

class Sprinkle:
    def __init__(self, A, extras, every):
        self.A = A; self.ex = list(extras); self.every = every; self.n = 0
    def __call__(self, t):
        self.A(t); self.n += 1
        if self.ex and self.n % self.every == 0: self.ex.pop(0)()
    def label(self, b='L'): return self.A.label(b)
    def flush(self):
        while self.ex: self.ex.pop(0)()

def SR(d): return f's[{d}:{d+3}]'
def srd(A, d, p, nbytes):
    A(f's_mov_b32 s{d}, s{p}')
    A(f's_and_b32 s{d+1}, s{p+1}, 0xffff')
    A(f's_mov_b32 s{d+2}, {hex(nbytes)}')
    A(f's_mov_b32 s{d+3}, 0x00020000')

def if_s(A, cond, body, name='if'):
    L = A.label(name)
    inv = {'eq': 'lg', 'lg': 'eq', 'lt': 'ge', 'ge': 'lt', 'gt': 'le', 'le': 'gt'}[cond[0]]
    A(f's_cmp_{inv}_u32 {cond[1]}, {cond[2]}'); A(f's_cbranch_scc1 {L}')
    body()
    A(f'{L}:')

def pipeline(A, blocks):
    n = len(blocks)
    b0 = blocks[0]
    if b0.get('pre'): b0['pre']()
    for r in b0['reads']: A(r)
    for x in b0.get('extra', []): x()
    for i in range(n):
        if blocks[i].get('start'): blocks[i]['start']()
        else: A('s_waitcnt lgkmcnt(0)')
        nxt = blocks[i+1] if i+1 < n else None
        fill = []; ex = []
        if nxt is not None:
            if nxt.get('pre'): nxt['pre']()
            fill = [(lambda r=r: A(r)) for r in nxt['reads']]
            ex = list(nxt.get('extra', []))
        m = blocks[i]['mfmas']
        slots = [[] for _ in m]
        k = 0
        for j in range(len(m)):
            for _ in range(2):
                if k < len(fill): slots[j].append(fill[k]); k += 1
        while k < len(fill): slots[-1].append(fill[k]); k += 1
        if ex:
            for e_i, e in enumerate(ex):
                pos = min(len(m)-1, (e_i * len(m)) // len(ex) + (len(m)//len(ex))//2)
                slots[pos].append(e)
        for j, t in enumerate(m):
            A(t)
            for f in slots[j]: f()
        if blocks[i].get('post'): blocks[i]['post']()

def ws_store(A, n, data, vaddr, soff, flags, off=0):
    nm = {1: 'dword', 2: 'dwordx2', 4: 'dwordx4'}[n]
    A(f'buffer_store_{nm} {v(data,n)}, {v(vaddr)}, {SR(SRD_WS)}, {soff} offen offset:{off} {flags}')

def signal(A, soff_sgpr, tmp, lanes=1, stride=0):
    A(f's_mov_b64 s[{S_EX}:{S_EX+1}], exec')
    A(f's_mov_b64 exec, {(1<<lanes)-1}')
    A(f'v_mov_b32 {v(tmp)}, 1')
    if stride: A(f'v_mul_u32_u24 {v(tmp+1)}, {stride}, v0')
    else: A(f'v_mov_b32 {v(tmp+1)}, 0')
    A(f'buffer_atomic_add {v(tmp)}, {v(tmp+1)}, {SR(SRD_WS)}, s{soff_sgpr} offen sc1')
    A(f's_mov_b64 exec, s[{S_EX}:{S_EX+1}]')

def poll(A, srd_, soff, target, tmp, name, cmp='ge'):
    A(f'v_mov_b32 {v(tmp+1)}, 0')
    A(f's_mov_b32 s{S_F}, 0')
    L = A.label(name); LO = A.label(name + 'ok')
    A(f'{L}:')
    A(f'buffer_load_dword {v(tmp)}, {v(tmp+1)}, {SR(srd_)}, {soff} offen sc1')
    A('s_waitcnt vmcnt(0)')
    A(f'v_readfirstlane_b32 s{S_E}, {v(tmp)}')
    A(f's_add_u32 s{S_F}, s{S_F}, 1')
    A(f's_cmp_ge_u32 s{S_E}, {target}')
    A(f's_cbranch_scc1 {LO}')
    A(f's_cmp_lt_u32 s{S_F}, 100000')
    A(f's_cbranch_scc0 {LO}')
    A('s_sleep 1')
    A(f's_branch {L}')
    A(f'{LO}:')

def pollN(A, items, tmp, name):
    n = len(items)
    A(f's_mov_b64 s[{S_EX}:{S_EX+1}], exec')
    A(f'v_mov_b32 {v(tmp+1)}, 0'); A(f'v_mov_b32 {v(tmp+2)}, 0')
    for i, (so, tg) in enumerate(items):
        A(f'v_writelane_b32 {v(tmp+1)}, {so}, {i}')
        A(f's_movk_i32 s{S_E}, {tg}')
        A(f'v_writelane_b32 {v(tmp+2)}, s{S_E}, {i}')
    A(f's_mov_b64 exec, {(1<<n)-1}')
    A(f's_mov_b32 s{S_F}, 0')
    L = A.label(name); LO = A.label(name + 'ok')
    A(f'{L}:')
    A(f'buffer_load_dword {v(tmp)}, {v(tmp+1)}, {SR(SRD_WS)}, 0 offen sc1')
    A('s_waitcnt vmcnt(0)')
    A(f'v_cmp_lt_u32 vcc, {v(tmp)}, {v(tmp+2)}')
    A(f's_add_u32 s{S_F}, s{S_F}, 1')
    A(f's_cmp_lt_u32 s{S_F}, 100000')
    A(f's_cbranch_scc0 {LO}')
    A(f's_cbranch_vccz {LO}')
    A('s_sleep 1')
    A(f's_branch {L}')
    A(f'{LO}:')
    A(f's_mov_b64 exec, s[{S_EX}:{S_EX+1}]')

def gelu_block(A, base, n, tmp, c1v):
    npairs = n // 2
    G = 4
    for p0 in range(0, npairs, G):
        ps = list(range(p0, min(p0 + G, npairs)))
        T = lambda p: tmp + 2 * (p - p0)
        X = lambda p: base + 2 * p
        for p in ps: A(f'v_pk_mul_f32 {v(T(p),2)}, {v(X(p),2)}, {v(X(p),2)}')
        for p in ps: A(f'v_pk_fma_f32 {v(T(p),2)}, {v(T(p),2)}, {s(S_PAIR,2)}, {v(c1v,2)}')
        for p in ps: A(f'v_pk_mul_f32 {v(T(p),2)}, {v(T(p),2)}, {v(X(p),2)}')
        for p in ps:
            A(f'v_exp_f32 {v(T(p))}, {v(T(p))}')
            A(f'v_exp_f32 {v(T(p)+1)}, {v(T(p)+1)}')
        for p in ps: A(f'v_pk_add_f32 {v(T(p),2)}, {v(T(p),2)}, {s(S_PAIR+2,2)}')
        for p in ps:
            A(f'v_rcp_f32 {v(T(p))}, {v(T(p))}')
            A(f'v_rcp_f32 {v(T(p)+1)}, {v(T(p)+1)}')
        for p in ps: A(f'v_pk_mul_f32 {v(X(p),2)}, {v(X(p),2)}, {v(T(p),2)}')
def gelu_consts(A, c1v):
    A(f's_mov_b32 s{S_PAIR}, {hex(f2u(GK*GC))}'); A(f's_mov_b32 s{S_PAIR+1}, {hex(f2u(GK*GC))}')
    A(f's_mov_b32 s{S_PAIR+2}, 1.0'); A(f's_mov_b32 s{S_PAIR+3}, 1.0')
    A(f'v_mov_b32 {v(c1v)}, {hex(f2u(GK))}'); A(f'v_mov_b32 {v(c1v+1)}, {hex(f2u(GK))}')
def phi_block(A, base, n, tmp):
    npairs = n // 2
    G = 4
    for p0 in range(0, npairs, G):
        ps = list(range(p0, min(p0 + G, npairs)))
        T = lambda p: tmp + 2 * (p - p0)
        X = lambda p: base + 2 * p
        for p in ps: A(f'v_pk_mul_f32 {v(T(p),2)}, {v(X(p),2)}, {s(S_PAIR,2)}')
        for p in ps:
            A(f'v_exp_f32 {v(T(p))}, {v(T(p))} clamp')
            A(f'v_exp_f32 {v(T(p)+1)}, {v(T(p)+1)} clamp')
        for p in ps:
            A(f'v_max_f32 {v(X(p))}, 0, {v(X(p))}')
            A(f'v_max_f32 {v(X(p)+1)}, 0, {v(X(p)+1)}')
        for p in ps: A(f'v_pk_add_f32 {v(T(p),2)}, {v(T(p),2)}, {s(S_PAIR+2,2)}')
        for p in ps: A(f'v_pk_add_f32 {v(X(p),2)}, {v(X(p),2)}, {v(T(p),2)}')
def phi_consts(A):
    A(f's_mov_b32 s{S_PAIR}, {hex(f2u(LOG2E))}'); A(f's_mov_b32 s{S_PAIR+1}, {hex(f2u(LOG2E))}')
    A(f's_mov_b32 s{S_PAIR+2}, {hex(f2u(1e-6))}'); A(f's_mov_b32 s{S_PAIR+3}, {hex(f2u(1e-6))}')

V_ACC0 = 4; V_ACC1 = 36; V_BF = 60
V_XD = 92; V_B0D = 94; V_B1D = 96; V_WD = 98
V_XR = 100; V_B0R = 102; V_B1R = 106; V_TA = 109; V_T = 115
V_FLAG = 123; V_ID = 124
def XF(tb2, ks): return (tb2 * 16 + ks) * 4

def p1_x_addr(A):
    T0, T1, T2, T3 = V_T, V_T+1, V_T+2, V_T+3
    A(f'v_lshrrev_b32 {v(T0)}, 3, v0'); A(f'v_and_b32 {v(T1)}, 7, v0')
    A(f'v_lshrrev_b32 {v(T2)}, 4, v0'); A(f'v_and_b32 {v(T3)}, 15, v0')
    A(f's_lshl_b32 s{S_A}, s9, 17'); A(f's_lshl_b32 s{S_B}, s6, 14'); A(f's_add_u32 s{S_A}, s{S_A}, s{S_B}')
    A(f'v_xor_b32 {v(V_XD)}, {v(T1)}, {v(T2)}')
    A(f'v_lshlrev_b32 {v(V_XD)}, 4, {v(V_XD)}')
    A(f'v_lshl_add_u32 {v(V_XD)}, {v(T0)}, 10, {v(V_XD)}')
    A(f'v_add_u32 {v(V_XD)}, s{S_A}, {v(V_XD)}')
    A(f'v_xor_b32 {v(V_XD+1)}, 64, {v(V_XD)}')
    A(f'v_add_u32 {v(V_XD+1)}, {8192-1024}, {v(V_XD+1)}')

def p1_b_dma_addr(A, typ):
    T0, T1, T2, T3, T4, T5 = V_T, V_T+1, V_T+2, V_T+3, V_T+4, V_T+5
    A(f's_and_b32 s{S_C}, s6, 1'); A(f's_lshl_b32 s{S_C}, s{S_C}, 2')
    A(f'v_lshrrev_b32 {v(T4)}, 1, {v(T3)}')
    A(f'v_xor_b32 {v(T4)}, {v(T4)}, {v(T2)}')
    A(f'v_xor_b32 {v(T4)}, s{S_C}, {v(T4)}')
    A(f'v_and_b32 {v(T5)}, 1, v0')
    if typ == 'qkv':
        A(f'v_lshlrev_b32 {v(V_B0D)}, 5, {v(T4)}')
        A(f'v_lshl_add_u32 {v(V_B0D)}, {v(T5)}, 4, {v(V_B0D)}')
        A(f'v_lshrrev_b32 {v(T4)}, 2, {v(T4)}')
        A(f'v_mad_u32_u24 {v(V_B0D)}, {v(T4)}, s{S_K3}, {v(V_B0D)}')
        A(f'v_mad_u32_u24 {v(V_B0D)}, {v(T2)}, s{S_K4}, {v(V_B0D)}')
        A(f's_mul_i32 s{S_B}, s6, {8*3072}')
        A(f's_lshl_b32 s{S_D}, s10, 7')
        A(f's_add_u32 s{S_B}, s{S_B}, s{S_D}')
        A(f's_add_u32 s{S_D}, s{S_B}, 1024')
        A(f'v_add_u32 {v(V_B0D)}, s{S_D}, {v(V_B0D)}')
        A(f'v_add_u32 {v(V_B0D+1)}, {4*3072-1024}, {v(V_B0D)}')
    else:
        A(f'v_lshlrev_b32 {v(T4)}, 5, {v(T4)}')
        A(f'v_lshl_add_u32 {v(T4)}, {v(T5)}, 4, {v(T4)}')
        A(f's_mul_i32 s{S_B}, s6, {8*2752}')
        A(f'v_mul_u32_u24 {v(T5)}, 2752, {v(T2)}')
        for (sc, VD) in ((11, V_B0D), (12, V_B1D)):
            A(f's_add_u32 s{S_D}, s{S_B}, s{sc}')
            A(f'v_add_u32 {v(VD)}, s{S_D}, {v(T5)}')
            A(f'v_add_u32 {v(VD+1)}, {4*2752}, {v(VD)}')
            A(f'v_and_b32 {v(VD)}, 0xffffff80, {v(VD)}')
            A(f'v_and_b32 {v(VD+1)}, 0xffffff80, {v(VD+1)}')
            A(f'v_add_u32 {v(VD)}, {v(VD)}, {v(T4)}')
            A(f'v_add_u32 {v(VD+1)}, {v(VD+1)}, {v(T4)}')
            A(f'v_subrev_u32 {v(VD+1)}, 1024, {v(VD+1)}')

def p1_q_dma_addr(A):
    T0, T1, T2, T3, T4, T5 = V_T, V_T+1, V_T+2, V_T+3, V_T+4, V_T+5
    A(f's_and_b32 s{S_C}, s6, 1'); A(f's_lshl_b32 s{S_C}, s{S_C}, 1')
    A(f'v_lshrrev_b32 {v(T4)}, 1, {v(T1)}')
    A(f'v_and_b32 {v(V_B1D)}, 1, {v(T2)}')
    A(f'v_xor_b32 {v(T4)}, {v(T4)}, {v(V_B1D)}')
    A(f'v_xor_b32 {v(T4)}, s{S_C}, {v(T4)}')
    A(f'v_lshlrev_b32 {v(T4)}, 5, {v(T4)}')
    A(f'v_and_b32 {v(T5)}, 1, v0')
    A(f'v_lshl_add_u32 {v(T4)}, {v(T5)}, 4, {v(T4)}')
    A(f'v_mad_u32_u24 {v(T4)}, {v(T0)}, s{S_K4}, {v(T4)}')
    A(f's_mul_i32 s{S_B}, s6, {8*3072}'); A(f's_lshl_b32 s{S_D}, s10, 7'); A(f's_add_u32 s{S_B}, s{S_B}, s{S_D}')
    A(f'v_add_u32 {v(V_B1D)}, s{S_B}, {v(T4)}')

def w_dma_addr(A, WD, T):
    A(f'v_lshrrev_b32 {v(T)}, 4, v0'); A(f'v_and_b32 {v(T+1)}, 15, v0')
    A(f's_and_b32 s{S_A}, s6, 1'); A(f's_lshl_b32 s{S_A}, s{S_A}, 3')
    A(f'v_xor_b32 {v(T+2)}, {v(T+1)}, {v(T)}')
    A(f'v_xor_b32 {v(T+2)}, s{S_A}, {v(T+2)}')
    A(f'v_lshlrev_b32 {v(T+2)}, 4, {v(T+2)}')
    A(f'v_lshl_add_u32 {v(T+2)}, {v(T)}, 12, {v(T+2)}')
    A(f's_lshl_b32 s{S_A}, s{S_T2}, 18'); A(f's_lshl_b32 s{S_B}, s6, 15'); A(f's_add_u32 s{S_A}, s{S_A}, s{S_B}')
    A(f'v_add_u32 {v(WD)}, s{S_A}, {v(T+2)}')
    A(f'v_xor_b32 {v(WD+1)}, 64, {v(WD)}')
    A(f'v_add_u32 {v(WD+1)}, {4*4096-1024}, {v(WD+1)}')

def w_dma_addr4(A, WD, T):
    A(f'v_lshrrev_b32 {v(T)}, 4, v0'); A(f'v_and_b32 {v(T+1)}, 15, v0')
    A(f'v_xor_b32 {v(T+2)}, {v(T+1)}, {v(T)}')
    A(f'v_lshlrev_b32 {v(T+2)}, 4, {v(T+2)}')
    A(f'v_lshl_add_u32 {v(T+2)}, {v(T)}, 12, {v(T+2)}')
    A(f's_lshl_b32 s{S_A}, s{S_T2}, 18'); A(f's_lshl_b32 s{S_B}, s7, 16'); A(f's_add_u32 s{S_A}, s{S_A}, s{S_B}')
    A(f'v_add_u32 {v(WD)}, s{S_A}, {v(T+2)}')
    for e in range(1, 4):
        A(f'v_xor_b32 {v(WD+e)}, {64*e}, {v(WD)}')
        A(f'v_add_u32 {v(WD+e)}, {e*(4*4096-1024)}, {v(WD+e)}')

def p1_read_addr(A, typ):
    T0, T1, T2, T3, T4, T5 = V_T, V_T+1, V_T+2, V_T+3, V_T+4, V_T+5
    A(f'v_lshrrev_b32 {v(T4)}, 1, {v(T3)}')
    A(f'v_xor_b32 {v(T4)}, {v(T4)}, {v(T2)}')
    A(f'v_lshlrev_b32 {v(T4)}, 4, {v(T4)}')
    A(f'v_lshl_add_u32 {v(T4)}, {v(T3)}, 7, {v(T4)}')
    A(f's_lshl_b32 s{S_B}, s7, 12')
    A(f'v_add_u32 {v(V_XR)}, s{S_B}, {v(T4)}')
    A(f'v_xor_b32 {v(V_XR+1)}, 64, {v(V_XR)}')
    RI, KEY, INR = V_TA, V_TA+1, V_TA+2
    A(f'v_lshrrev_b32 {v(RI)}, 2, {v(T3)}')
    A(f'v_and_b32 {v(KEY)}, 1, {v(T2)}')
    A(f'v_lshl_or_b32 {v(KEY)}, {v(KEY)}, 2, {v(RI)}')
    A(f'v_and_b32 {v(INR)}, 3, {v(T3)}')
    A(f'v_lshlrev_b32 {v(INR)}, 3, {v(INR)}')
    A(f'v_lshl_add_u32 {v(RI)}, {v(T2)}, 3, {v(RI)}')
    if typ == 'qkv':
        A(f'v_lshl_add_u32 {v(T5)}, {v(RI)}, 8, {v(INR)}')
        A(f's_lshl_b32 s{S_B}, s8, 1')
        A(f'v_xor_b32 {v(T4)}, s{S_B}, {v(KEY)}')
        for bi in range(4):
            x = [0, 1, 4, 5][bi]
            if x: A(f'v_xor_b32 {v(V_B0R+bi)}, {x}, {v(T4)}')
            else: A(f'v_mov_b32 {v(V_B0R+bi)}, {v(T4)}')
            A(f'v_lshl_add_u32 {v(V_B0R+bi)}, {v(V_B0R+bi)}, 5, {v(T5)}')
        A(f'v_lshrrev_b32 {v(T5)}, 3, {v(T3)}')
        A(f'v_and_b32 {v(T4)}, 1, {v(T2)}')
        A(f'v_lshl_or_b32 {v(T5)}, {v(T4)}, 1, {v(T5)}')
        A(f'v_xor_b32 {v(T5)}, s{S_B}, {v(T5)}')
        A(f'v_lshl_add_u32 {v(T4)}, {v(RI)}, 7, {v(INR)}')
        A(f'v_lshl_add_u32 {v(V_B1R)}, {v(T5)}, 5, {v(T4)}')
        A(f'v_xor_b32 {v(V_B1R+1)}, 32, {v(V_B1R)}')
    else:
        A(f'v_lshl_add_u32 {v(T1)}, {v(RI)}, 8, {v(INR)}')
        A(f'v_mul_u32_u24 {v(T0)}, 2752, {v(RI)}')
        A(f's_mul_i32 s{S_B}, s8, 3')
        for (sc, VR) in ((11, V_B0R), (12, V_B1R)):
            A(f'v_add_u32 {v(T4)}, s{sc}, {v(T0)}')
            A(f'v_bfe_u32 {v(T4)}, {v(T4)}, 5, 2')
            A(f'v_add_u32 {v(T4)}, s{S_B}, {v(T4)}')
            for bi in range(3):
                A(f'v_add_u32 {v(T5)}, {bi}, {v(T4)}')
                A(f'v_and_b32 {v(T5)}, 7, {v(T5)}')
                A(f'v_xor_b32 {v(T5)}, {v(T5)}, {v(KEY)}')
                A(f'v_lshl_add_u32 {v(VR+bi)}, {v(T5)}, 5, {v(T1)}')

W_ORDER = [0,4,8,12, 1,5,9,13, 2,6,10,14, 3,7,11,15]
def w_issue_list(A, vm, k, slot, tag, form=2):
    kq, r = k % 4, k // 4
    out = []
    for e in range(form):
        def f(e=e):
            def body():
                if form == 2: A(f's_add_u32 m0, s{S_LW}, {slot*UNIT}')
                else: A(f's_lshl_b32 m0, s7, 12'); A(f's_add_u32 m0, m0, {slot*UNIT}')
                A(f's_add_u32 s{S_SOFF}, s{S_R0}, {r}'); A(f's_and_b32 s{S_SOFF}, s{S_SOFF}, 3'); A(f's_lshl_b32 s{S_SOFF}, s{S_SOFF}, 8')
                if kq: A(f's_add_u32 s{S_SOFF}, s{S_SOFF}, {1024*kq}')
                A(f'buffer_load_dwordx4 {v(V_WD+e)}, {SR(SRD_WSP)}, s{S_SOFF} offen offset:{e*1024} {CFG["wspf"]} lds')
            if form == 2:
                body(); vm.issue(tag)
            else:
                if_s(A, ('lg', 's8', 0), body); vm.issue(tag, who=(1,))
        out.append(f)
    return out
def w_issue_ch1(A, vm, ks):
    def body():
        for k in ks:
            kq, r = k % 4, k // 4
            A(f's_lshl_b32 m0, s7, 12'); A(f's_add_u32 m0, m0, {(k % 8)*UNIT}')
            A(f's_add_u32 s{S_SOFF}, s{S_R0}, {r}'); A(f's_and_b32 s{S_SOFF}, s{S_SOFF}, 3'); A(f's_lshl_b32 s{S_SOFF}, s{S_SOFF}, 8')
            if kq: A(f's_add_u32 s{S_SOFF}, s{S_SOFF}, {1024*kq}')
            for e in range(4):
                A(f'buffer_load_dwordx4 {v(V_WD+e)}, {SR(SRD_WSP)}, s{S_SOFF} offen offset:{e*1024} {CFG["wspf"]} lds')
            vm.issue(('w', k), 4, who=(1,))
    if_s(A, ('lg', 's8', 0), body)

def p1_units():
    U = []
    for c in range(8): U.append(('x', c)); U.append(('b0', c))
    for c in range(8): U.append(('b1', c))
    for k in range(16): U.append(('w', k))
    return U
def unit_addr(n): return (n % NU) * UNIT

def p1_issue_list(A, typ, vm, n, U):
    kind, c = U[n]
    base = unit_addr(n)
    if kind == 'w': return w_issue_list(A, vm, c, n % NU, n, form=(2 if typ == 'qkv' else 4))
    rowbytes = 3072 if typ == 'qkv' else 2752
    if kind == 'x': VD, srd_, so, step, cnt_, lw, fl = V_XD, SRD_X, S_XO, 128, 2, S_LW, CFG['xf']
    elif kind == 'b0': VD, srd_, so, step, cnt_, lw, fl = V_B0D, SRD_WB, S_B0O, 64*rowbytes, 2, S_LW, CFG['wf']
    elif typ == 'win': VD, srd_, so, step, cnt_, lw, fl = V_B1D, SRD_WB, S_B1O, 64*rowbytes, 2, S_LW, CFG['wf']
    else: VD, srd_, so, step, cnt_, lw, fl = V_B1D, SRD_WB, S_B1O, 64*rowbytes, 1, S_LW1, CFG['wf']
    out = []
    for e in range(cnt_):
        def f(e=e):
            A(f's_add_u32 m0, s{lw}, {base}')
            A('s_nop 0')
            A(f'buffer_load_dwordx4 {v(VD+e)}, {SR(srd_)}, s{so} offen offset:{e*1024} {fl} lds')
            if e == cnt_ - 1:
                A(f's_add_u32 s{so}, s{so}, {step}')
                A(f's_cmp_eq_u32 s{so}, {8*step}')
                A(f's_cselect_b32 s{so}, 0, s{so}')
            vm.issue(n)
        out.append(f)
    return out

def p1_blocks(A, typ, grp, vm, U, state, sync_at, limit):
    nblk = {('qkv',0):4, ('qkv',1):2, ('win',0):3, ('win',1):3}[(typ, grp)]
    rowb = 128 if (typ, grp) == ('qkv', 1) else 256
    VR = V_B0R if grp == 0 else V_B1R
    ACC = V_ACC0 if grp == 0 else V_ACC1
    swapped = not (typ == 'qkv' and grp == 0)
    blocks = []
    pend = []
    for c in range(8):
        need = [2*c, 2*c+1] if grp == 0 else [16 + c]
        bbase = unit_addr(need[-1]); xb = unit_addr(need[0])
        hiB = (bbase + 16384 > 65536); hiX = (xb + 16384 > 65536)
        for kk in range(2):
            ks = 2*c + kk
            blk = dict(reads=[], mfmas=[], extra=[])
            if kk == 0:
                def pre(c=c, bbase=bbase, xb=xb, hiB=hiB, hiX=hiX):
                    if c in sync_at:
                        tag = (16 + sync_at[c]) if grp else (2*sync_at[c] + 1)
                        vm.wait(A, tag, state.get('also_mark', {}).get((grp, c)))
                        A('s_barrier')
                        if grp == 0 and c < 4 and CFG.get('finestamp'): stamp(A, f'sy{c}')
                    if (grp, c) in state.get('hooks', {}): state['hooks'][(grp, c)]()
                    if hiB:
                        for bi in range(nblk): A(f'v_add_u32 {v(V_TA+bi)}, {bbase}, {v(VR+bi)}')
                    if grp == 0 and hiX:
                        for k in range(2): A(f'v_add_u32 {v(V_TA+4+k)}, {xb}, {v(V_XR+k)}')
                blk['pre'] = pre
                if c in sync_at:
                    todo = []
                    while state['issued'] < limit and state['issued'] - NU <= need[0] - 1 and len(todo) < state['maxper']:
                        todo.append(state['issued']); state['issued'] += 1
                    pend = [('u', n) for n in todo]
                h = (len(pend) + 1) // 2
                blk['units'] = [p[1] for p in pend[:h]]; pend = pend[h:]
            else:
                blk['units'] = [p[1] for p in pend]; pend = []
            baddr = [((V_TA+bi, 0) if hiB else (VR+bi, bbase)) for bi in range(nblk)]
            if grp == 0:
                xa = (V_TA+4+kk, 0) if hiX else (V_XR+kk, xb)
                for tb2 in range(2):
                    blk['reads'].append(f'ds_read_b128 {a(XF(tb2,ks),4)}, {v(xa[0])} offset:{xa[1] + tb2*2048}')
            for bi in range(nblk):
                r0 = V_BF + kk*16 + bi*4
                off = baddr[bi][1] + kk*32*rowb
                blk['reads'].append(f'ds_read_b64_tr_b16 {v(r0,2)}, {v(baddr[bi][0])} offset:{off}')
                blk['reads'].append(f'ds_read_b64_tr_b16 {v(r0+2,2)}, {v(baddr[bi][0])} offset:{off + 4*rowb}')
            for bi in range(nblk):
                for tb2 in range(2):
                    acc = ACC + (bi*2 + tb2)*4
                    cin = '0' if ks == 0 else v(acc,4)
                    xf = a(XF(tb2,ks),4); bf = v(V_BF + kk*16 + bi*4, 4)
                    blk['mfmas'].append(f'v_mfma_f32_16x16x32_bf16 {v(acc,4)}, {bf}, {xf}, {cin}' if swapped
                                        else f'v_mfma_f32_16x16x32_bf16 {v(acc,4)}, {xf}, {bf}, {cin}')
            blocks.append(blk)
    for blk in blocks:
        ex = []
        for n in blk['units']: ex += p1_issue_list(A, typ, vm, n, U)
        blk['extra'] = ex
    return blocks

def p1_qkv_epi0(A, vm, extras):
    SF = CFG['sf']
    phi_consts(A)
    SP = Sprinkle(A, extras, 4)
    phi_block(SP, V_ACC0, 16, V_BF)
    SP.flush()
    PK = V_BF + 8; PV = V_BF + 16; ONE = V_BF + 24; D = V_ACC1
    for hh in range(2):
        for tb2 in range(2):
            k = V_ACC0 + (hh*2+tb2)*4; vv = V_ACC0 + ((2+hh)*2+tb2)*4
            A(f'v_cvt_pk_bf16_f32 {v(PK+hh*4+tb2*2)}, {v(k)}, {v(k+1)}')
            A(f'v_cvt_pk_bf16_f32 {v(PK+hh*4+tb2*2+1)}, {v(k+2)}, {v(k+3)}')
            A(f'v_cvt_pk_bf16_f32 {v(PV+hh*4+tb2*2)}, {v(vv)}, {v(vv+1)}')
            A(f'v_cvt_pk_bf16_f32 {v(PV+hh*4+tb2*2+1)}, {v(vv+2)}, {v(vv+3)}')
    for i in range(4): A(f'v_mov_b32 {v(ONE+i)}, 0x3f803f80')
    for hh in range(2):
        A(f'v_mfma_f32_16x16x32_bf16 {v(D+hh*8,4)}, {v(PK+hh*4,4)}, {v(PV+hh*4,4)}, 0')
        A(f'v_mfma_f32_16x16x32_bf16 {v(D+hh*8+4,4)}, {v(PK+hh*4,4)}, {v(ONE,4)}, 0')
    T = V_T
    A(f's_lshl_b32 s{S_A}, s8, 13'); A(f's_lshl_b32 s{S_B}, s7, 10')
    A(f's_add_u32 s{S_A}, s{S_A}, s{S_B}'); A(f's_add_u32 s{S_A}, s{S_A}, {SCR}')
    A(f'v_lshlrev_b32 {v(T)}, 4, v0')
    A(f'v_add_u32 {v(T+1)}, s{S_A}, {v(T)}')
    for hh in range(2):
        A(f'ds_write_b128 {v(T+1)}, {v(D+hh*8,4)} offset:{hh*4096}')
        A(f'ds_write_b128 {v(T+1)}, {v(D+hh*8+4,4)} offset:{16384 + hh*4096}')
    A('s_waitcnt lgkmcnt(0)')

def p1_qkv_epi0b(A, vm):
    SF = CFG['sf']
    T = V_T
    A(f's_lshl_b32 s{S_A}, s7, 12'); A(f's_lshl_b32 s{S_B}, s8, 14'); A(f's_add_u32 s{S_A}, s{S_A}, s{S_B}')
    A(f's_add_u32 s{S_A}, s{S_A}, {SCR}')
    A(f'v_lshlrev_b32 {v(T)}, 4, v0')
    A(f'v_add_u32 {v(T+1)}, s{S_A}, {v(T)}')
    R = V_ACC0
    for i in range(4): A(f'ds_read_b128 {v(R+4*i,4)}, {v(T+1)} offset:{i*1024}')
    A(f's_lshl_b32 s{S_A}, s9, 5'); A(f's_lshl_b32 s{S_C}, s10, 2'); A(f's_add_u32 s{S_A}, s{S_A}, s{S_C}'); A(f's_add_u32 s{S_A}, s{S_A}, s7')
    A('s_waitcnt lgkmcnt(0)')
    for h in range(2):
        A(f'v_pk_add_f32 {v(R+2*h,2)}, {v(R+2*h,2)}, {v(R+4+2*h,2)}')
        A(f'v_pk_add_f32 {v(R+8+2*h,2)}, {v(R+8+2*h,2)}, {v(R+12+2*h,2)}')
    for h in range(2): A(f'v_pk_add_f32 {v(R+2*h,2)}, {v(R+2*h,2)}, {v(R+8+2*h,2)}')
    LZ = A.label('kz'); LJ = A.label('kzj')
    A('s_cmp_lg_u32 s8, 0'); A(f's_cbranch_scc1 {LZ}')
    A(f's_lshl_b32 s{S_A}, s{S_A}, 10'); A(f's_add_u32 s{S_A}, s{S_A}, {KVP}')
    ws_store(A, 4, R, T, f's{S_A}', SF)
    A(f's_branch {LJ}')
    A(f'{LZ}:')
    A(f's_lshl_b32 s{S_A}, s{S_A}, 6'); A(f's_add_u32 s{S_A}, s{S_A}, {KZ}')
    A(f'v_and_b32 {v(T+2)}, 0x30, v0')
    A(f's_mov_b64 s[{S_EX}:{S_EX+1}], exec')
    A(f's_mov_b32 exec_lo, 0x00010001'); A(f's_mov_b32 exec_hi, 0x00010001')
    ws_store(A, 4, R, T+2, f's{S_A}', SF)
    A(f's_mov_b64 exec, s[{S_EX}:{S_EX+1}]')
    A(f'{LJ}:')
    vm.issue('kvp')

def p1_qkv_epi1(A, vm):
    SF = CFG['sf']
    T = V_T
    phi_consts(A)
    phi_block(A, V_ACC1, 16, V_BF + 8)
    A(f'v_lshlrev_b32 {v(T)}, 4, v0')
    A(f's_lshl_b32 s{S_A}, s10, 2'); A(f's_lshl_b32 s{S_B}, s8, 1'); A(f's_add_u32 s{S_A}, s{S_A}, s{S_B}')
    A(f's_lshl_b32 s{S_A}, s{S_A}, 6')
    A(f's_lshl_b32 s{S_B}, s9, 2'); A(f's_add_u32 s{S_A}, s{S_A}, s{S_B}'); A(f's_add_u32 s{S_A}, s{S_A}, s7')
    A(f's_lshl_b32 s{S_A}, s{S_A}, 10'); A(f's_add_u32 s{S_A}, s{S_A}, {QO}')
    for hh in range(2):
        for tb2 in range(2):
            q = V_ACC1 + (hh*2+tb2)*4
            P = V_BF + (hh*2+tb2)*2
            A(f'v_cvt_pk_bf16_f32 {v(P)}, {v(q)}, {v(q+1)}')
            A(f'v_cvt_pk_bf16_f32 {v(P+1)}, {v(q+2)}, {v(q+3)}')
        A(f's_add_u32 s{S_B}, s{S_A}, {hh*65536}')
        ws_store(A, 4, V_BF + hh*4, T, f's{S_B}', SF)
    vm.issue('q', 2)

def p1_win_epi0(A, vm, extras):
    c1v = V_BF + 30
    gelu_consts(A, c1v)
    SP = Sprinkle(A, extras, 8)
    gelu_block(SP, V_ACC0, 24, V_BF, c1v)
    SP.flush()
    stamp(A, 'e0gelu')
    ST = V_BF + 8
    P1 = [ST, ST+2]; P2 = [ST+4, ST+6]
    for i in range(8): A(f'v_mov_b32 {v(ST+i)}, 0')
    for bi in range(3):
        def body(bi=bi):
            for tb2 in range(2):
                z = V_ACC0 + (bi*2+tb2)*4
                for h in range(2):
                    A(f'v_pk_add_f32 {v(P1[tb2],2)}, {v(P1[tb2],2)}, {v(z+2*h,2)}')
                    A(f'v_pk_fma_f32 {v(P2[tb2],2)}, {v(z+2*h,2)}, {v(z+2*h,2)}, {v(P2[tb2],2)}')
        if_s(A, ('gt', 's13', bi), body)
    a0, a1, b0, b1 = ST+8, ST+9, ST+10, ST+11
    A(f'v_add_f32 {v(a0)}, {v(P1[0])}, {v(P1[0]+1)}'); A(f'v_add_f32 {v(a1)}, {v(P1[1])}, {v(P1[1]+1)}')
    A(f'v_add_f32 {v(b0)}, {v(P2[0])}, {v(P2[0]+1)}'); A(f'v_add_f32 {v(b1)}, {v(P2[1])}, {v(P2[1]+1)}')
    A(f'v_permlane32_swap_b32 {v(a0)}, {v(a1)}'); A(f'v_permlane32_swap_b32 {v(b0)}, {v(b1)}')
    A(f'v_add_f32 {v(a0)}, {v(a0)}, {v(a1)}'); A(f'v_add_f32 {v(b0)}, {v(b0)}, {v(b1)}')
    A(f'v_permlane16_swap_b32 {v(a0)}, {v(b0)}')
    A(f'v_add_f32 {v(a0)}, {v(a0)}, {v(b0)}')
    T = V_T
    A(f'v_lshlrev_b32 {v(T)}, 2, v0')
    A(f's_lshl_b32 s{S_A}, s7, 8'); A(f's_add_u32 s{S_A}, s{S_A}, {SCR}')
    A(f'v_add_u32 {v(T+1)}, s{S_A}, {v(T)}')
    A(f'v_mov_b32 {v(T+6)}, {v(a0)}')
    def w1():
        A(f'ds_write_b32 {v(T+1)}, {v(a0)}')
        A('s_waitcnt lgkmcnt(0)')
    if_s(A, ('lg', 's8', 0), w1)

def p1_win_epi0b(A, vm):
    T = V_T
    def body():
        A(f'ds_read_b32 {v(T+2)}, {v(T+1)}')
        A(f's_lshl_b32 s{S_A}, s9, 2'); A(f's_add_u32 s{S_A}, s{S_A}, s7'); A(f's_lshl_b32 s{S_A}, s{S_A}, 3')
        A(f's_add_u32 s{S_A}, s{S_A}, s14'); A(f's_lshl_b32 s{S_A}, s{S_A}, 8'); A(f's_add_u32 s{S_A}, s{S_A}, {STATS}')
        A('s_waitcnt lgkmcnt(0)')
        A(f'v_add_f32 {v(T+2)}, {v(T+2)}, {v(T+6)}')
        ws_store(A, 1, T+2, T, f's{S_A}', 'sc1')
    if_s(A, ('eq', 's8', 0), body)

def flag_load(A):
    def body():
        A(f'v_mov_b32 {v(V_FLAG+0)}, 0')
        A(f'buffer_load_dword {v(V_FLAG)}, {v(V_FLAG)}, {SR(SRD_DBG)}, 0 offen sc1')
    if_s(A, ('eq', 's6', 0), body)
def flag_check(A, tmp):
    L = A.label('fl')
    A(f'v_readfirstlane_b32 s{S_E}, {v(V_FLAG)}')
    A(f's_cmp_lg_u32 s{S_E}, 0'); A(f's_cbranch_scc1 {L}')
    poll(A, SRD_DBG, '0', 1, tmp, 'flp')
    A(f'{L}:')

SREC = [92, 93, 94, 95, 102, 103, 104, 105]
def win_stats_poll_issue(A, vm):
    def body():
        A(f's_lshl_b32 s{S_POLL}, s9, 8'); A(f's_add_u32 s{S_POLL}, s{S_POLL}, {cnt(C_STATS)}')
        A('v_mov_b32 v3, 0')
        A(f's_mov_b32 s{S_K4}, 0')
        A(f'buffer_load_dword v2, v3, {SR(SRD_WS)}, s{S_POLL} offen sc1')
    if_s(A, ('eq', 's8', 0), body)
def stats_rec_loads(A):
    A('v_lshlrev_b32 v3, 2, v0')
    A(f's_lshl_b32 s{S_A}, s9, 2'); A(f's_add_u32 s{S_A}, s{S_A}, s7'); A(f's_lshl_b32 s{S_A}, s{S_A}, 11')
    A(f's_add_u32 s{S_A}, s{S_A}, {STATS}')
    for p in range(8):
        A(f'buffer_load_dword {v(SREC[p])}, v3, {SR(SRD_WS)}, s{S_A} offen offset:{p*256} sc1')
def win_stats_load(A, vm, again):
    def body():
        L = A.label('sr'); LN = A.label('srn')
        if not again: pass
        A(f's_cmp_lg_u32 s{S_K4}, 0'); A(f's_cbranch_scc1 {L}')
        A('s_waitcnt vmcnt(0)')
        A(f'v_readfirstlane_b32 s{S_E}, v2')
        A(f's_cmp_lt_u32 s{S_E}, 8'); A(f's_cbranch_scc1 {LN}')
        stats_rec_loads(A)
        A(f's_mov_b32 s{S_K4}, 1')
        A(f's_branch {L}')
        A(f'{LN}:')
        if again:
            A('v_mov_b32 v3, 0')
            A(f'buffer_load_dword v2, v3, {SR(SRD_WS)}, s{S_POLL} offen sc1')
        A(f'{L}:')
    if_s(A, ('eq', 's8', 0), body)

def win_tail(A, vm):
    SF = CFG['sf']
    T = V_T + 1
    ST = V_BF
    ch0 = lambda body: if_s(A, ('eq', 's8', 0), body)
    ch1 = lambda body: if_s(A, ('lg', 's8', 0), body)
    p1_gate(A)
    win_stats_load(A, vm, False)
    A(f'v_lshlrev_b32 {v(T)}, 4, v0')
    A(f's_lshl_b32 s{S_A}, s7, 10'); A(f's_add_u32 s{S_A}, s{S_A}, {SCR}')
    A(f'v_add_u32 {v(T+1)}, s{S_A}, {v(T)}')
    def st():
        L = A.label('sp')
        A(f's_cmp_lg_u32 s{S_K4}, 0'); A(f's_cbranch_scc1 {L}')
        poll(A, SRD_WS, f's{S_POLL}', 8, 2, 'pst')
        stats_rec_loads(A)
        A(f'{L}:')
        A('s_waitcnt vmcnt(0)')
        R = SREC
        for (x, y) in ((0,1),(2,3),(4,5),(6,7),(0,2),(4,6),(0,4)):
            A(f'v_add_f32 {v(R[x])}, {v(R[x])}, {v(R[y])}')
        A(f'v_mul_f32 {v(ST)}, {hex(f2u(1.0/688.0))}, {v(R[0])}')
        A(f'v_mov_b32 {v(ST+1)}, {v(ST)}')
        A(f'v_permlane16_swap_b32 {v(ST)}, {v(ST+1)}')
        A(f'v_fma_f32 {v(ST+1)}, -{v(ST)}, {v(ST)}, {v(ST+1)}')
        A(f'v_add_f32 {v(ST+1)}, {hex(f2u(1e-5))}, {v(ST+1)}')
        A(f'v_rsq_f32 {v(ST+1)}, {v(ST+1)}')
        A(f'v_mul_f32 {v(ST)}, {v(ST)}, {v(ST+1)}')
        A(f'v_mov_b32 {v(ST+2)}, {v(ST)}'); A(f'v_mov_b32 {v(ST+3)}, {v(ST+1)}')
        A(f'v_permlane32_swap_b32 {v(ST)}, {v(ST+2)}')
        A(f'v_permlane32_swap_b32 {v(ST+1)}, {v(ST+3)}')
        A(f'ds_write_b128 {v(T+1)}, {v(ST,4)}')
        A('s_waitcnt lgkmcnt(0)')
    ch0(st)
    A(f'v_and_b32 {v(T+3)}, 15, v0'); A(f'v_lshrrev_b32 {v(T+4)}, 4, v0')
    A(f'v_lshlrev_b32 {v(T+4)}, 2, {v(T+4)}')
    A(f'v_sub_u32 {v(T+3)}, {v(T+3)}, {v(T+4)}')
    A(f'v_mov_b32 {v(T+4)}, 0x3f80'); A(f'v_mov_b32 {v(T+5)}, 0x3f800000')
    for half in range(2):
        A(f'v_cmp_eq_u32 vcc, {2*half}, {v(T+3)}')
        A(f'v_cndmask_b32 {v(V_ID+half)}, 0, {v(T+4)}, vcc')
        A(f'v_cmp_eq_u32 vcc, {2*half+1}, {v(T+3)}')
        A(f'v_cndmask_b32 {v(V_ID+half)}, {v(V_ID+half)}, {v(T+5)}, vcc')
    A('s_barrier')
    stamp(A, 'e1bar')
    def rd():
        A(f'ds_read_b128 {v(ST,4)}, {v(T+1)}')
        A('s_waitcnt lgkmcnt(0)')
    ch1(rd)
    RS = [ST+4, ST+6]; MS = [ST+8, ST+10]
    for tb2 in range(2):
        for h in range(2):
            A(f'v_mov_b32 {v(RS[tb2]+h)}, {v(ST+1+2*tb2)}')
            A(f'v_mov_b32 {v(MS[tb2]+h)}, {v(ST+2*tb2)}')
    PK = V_BF + 12
    DD = V_ACC0
    P = V_BF + 16
    for bi in range(3):
        for tb2 in range(2):
            z = V_ACC0 + (bi*2+tb2)*4
            for h in range(2):
                A(f'v_pk_fma_f32 {v(z+2*h,2)}, {v(z+2*h,2)}, {v(RS[tb2],2)}, {v(MS[tb2],2)} neg_lo:[0,0,1] neg_hi:[0,0,1]')
        pk = [V_BF + 12, V_BF + 28][bi % 2]
        for tb2 in range(2):
            z = V_ACC0 + (bi*2+tb2)*4
            A(f'v_cvt_pk_bf16_f32 {v(pk+tb2*2)}, {v(z)}, {v(z+1)}')
            A(f'v_cvt_pk_bf16_f32 {v(pk+tb2*2+1)}, {v(z+2)}, {v(z+3)}')
        for tb2 in range(2):
            z = V_ACC0 + (bi*2+tb2)*4
            A(f'v_mfma_f32_16x16x16_bf16 {v(z,4)}, {v(pk+tb2*2,2)}, {v(V_ID,2)}, 0')
    for bi in range(3):
        for tb2 in range(2):
            z = V_ACC0 + (bi*2+tb2)*4
            A(f'v_cvt_pk_bf16_f32 {v(P+bi*4+tb2*2)}, {v(z)}, {v(z+1)}')
            A(f'v_cvt_pk_bf16_f32 {v(P+bi*4+tb2*2+1)}, {v(z+2)}, {v(z+3)}')
    A(f's_mul_i32 s{S_A}, s7, 3072'); A(f's_add_u32 s{S_A}, s{S_A}, {SCR + 4096}')
    A(f'v_add_u32 {v(T+1)}, s{S_A}, {v(T)}')
    def wr():
        for bi in range(3): A(f'ds_write_b128 {v(T+1)}, {v(P+bi*4,4)} offset:{bi*1024}')
        n1 = vm.counts(24+3)[1]
        A(f's_waitcnt vmcnt({n1}) lgkmcnt(0)')
    ch1(wr)
    A('s_barrier')
    stamp(A, 'e1b2')
    A(f's_lshl_b32 s{S_K3}, s{S_K2}, 6'); A(f's_lshl_b32 s{S_B}, s9, 2'); A(f's_add_u32 s{S_K3}, s{S_K3}, s{S_B}'); A(f's_add_u32 s{S_K3}, s{S_K3}, s7')
    A(f's_lshl_b32 s{S_K3}, s{S_K3}, 10')
    if Z2T: A(f's_add_u32 s{S_K3}, s{S_K3}, {Z2T}')
    PZ = V_ACC0 + 12
    def z1_store():
        A(f's_lshl_b32 s{S_A}, s9, 2'); A(f's_add_u32 s{S_A}, s{S_A}, s7'); A(f's_mul_i32 s{S_A}, s{S_A}, 43')
        A(f's_mul_i32 s{S_B}, s8, 3'); A(f's_add_u32 s{S_A}, s{S_A}, s{S_B}'); A(f's_add_u32 s{S_A}, s{S_A}, s{S_K1}')
        A(f's_lshl_b32 s{S_A}, s{S_A}, 10'); A(f's_add_u32 s{S_A}, s{S_A}, {Z1}')
        for bi in range(3):
            for tb2 in range(2):
                z = V_ACC1 + (bi*2+tb2)*4
                A(f'v_cvt_pk_bf16_f32 {v(PZ+bi*4+tb2*2)}, {v(z)}, {v(z+1)}')
                A(f'v_cvt_pk_bf16_f32 {v(PZ+bi*4+tb2*2+1)}, {v(z+2)}, {v(z+3)}')
        for bi in range(3):
            A(f's_add_u32 s{S_B}, s{S_A}, {bi*1024}')
            A(f's_cmp_gt_u32 s13, {bi}'); A(f's_cselect_b32 s{S_B}, s{S_B}, {WS_USED}')
            ws_store(A, 4, PZ + bi*4, T, f's{S_B}', SF)
    def c0a():
        Q = V_ACC0
        for bi in range(3): A(f'ds_read_b128 {v(Q+bi*4,4)}, {v(T+1)} offset:{bi*1024}')
        for bi in range(3):
            A(f's_add_u32 s{S_B}, s{S_K3}, {bi*65536}')
            A(f's_cmp_gt_u32 s13, {bi}'); A(f's_cselect_b32 s{S_B}, s{S_B}, {WS_USED}')
            ws_store(A, 4, P+bi*4, T, f's{S_B}', SF)
        A('s_waitcnt lgkmcnt(0)')
        for bi in range(3):
            A(f's_add_u32 s{S_B}, s{S_K3}, {(3+bi)*65536}')
            A(f's_cmp_lg_u32 s14, 7'); A(f's_cselect_b32 s{S_B}, s{S_B}, {WS_USED}')
            ws_store(A, 4, Q+bi*4, T, f's{S_B}', SF)
    ch0(c0a)
    w_issue_ch1(A, vm, [6, 7])
    w_read_addr(A, V_T + 3)
    w_consume(A, 0, W_TMP)
    A('s_waitcnt lgkmcnt(0)')
    A('s_barrier')
    stamp(A, 'e1b3')
    def c0b():
        A('s_waitcnt vmcnt(0)')
        A(f's_mov_b64 s[{S_EX}:{S_EX+1}], exec'); A('s_mov_b64 exec, 1')
        A(f'v_mov_b32 v2, {LCNT}'); A('v_mov_b32 v3, 1')
        A('ds_add_rtn_u32 v2, v2, v3')
        A('s_waitcnt lgkmcnt(0)')
        A(f'v_readfirstlane_b32 s{S_E}, v2')
        A(f's_mov_b64 exec, s[{S_EX}:{S_EX+1}]')
        def sig():
            A(f's_lshl_b32 s{S_A}, s14, 8'); A(f's_add_u32 s{S_A}, s{S_A}, {cnt(C_WIN)}')
            signal(A, S_A, 2)
        if_s(A, ('eq', f's{S_E}', 3), sig)
        stamp(A, 'p1sig')
        z1_store()
    ch0(c0b)
    w_issue_ch1(A, vm, range(8, 12))
    def c1b():
        z1_store()
        A('s_waitcnt vmcnt(19)')
    ch1(c1b)
    A('s_barrier')
    w_consume(A, 1, W_TMP)
    A('s_waitcnt lgkmcnt(0)')
    A('s_barrier')
    w_issue_ch1(A, vm, range(12, 16))
    ch1(lambda: A('s_waitcnt vmcnt(16)'))
    A('s_barrier')
    w_consume(A, 2, W_TMP)
    A('s_waitcnt vmcnt(0)')
    A('s_barrier')
    def sigz():
        A(f's_lshl_b32 s{S_A}, s14, 8'); A(f's_add_u32 s{S_A}, s{S_A}, {cnt(C_Z1)}')
        signal(A, S_A, 2)
    if_s(A, ('eq', 's6', 0), sigz)
    w_consume(A, 3, W_TMP)
    A('s_waitcnt lgkmcnt(0)')

def qkv_tail(A, vm, U, state):
    A('s_barrier')
    stamp(A, 'e1bar')
    p1_qkv_epi1(A, vm)
    while state['issued'] < 32:
        for f in p1_issue_list(A, 'qkv', vm, state['issued'], U): f()
        state['issued'] += 1
    w_read_addr(A, V_T)
    vm.wait(A, 24+3)
    A('s_barrier')
    w_consume(A, 0, W_TMP)
    A('s_waitcnt vmcnt(0)')
    A('s_barrier')
    def sig():
        A(f's_lshl_b32 s{S_A}, s10, 8'); A(f's_add_u32 s{S_A}, s{S_A}, {cnt(C_QKV)}')
        signal(A, S_A, V_T+7)
    if_s(A, ('eq', 's6', 0), sig)
    stamp(A, 'p1sig')
    w_consume(A, 1, W_TMP)
    A('s_waitcnt lgkmcnt(0)')
    A('s_barrier')
    vm2 = VM2()
    for k in range(8, 16):
        for f in w_issue_list(A, vm2, k, k % 8, ('w', k)): f()
    vm2.wait(A, ('w', 11))
    A('s_barrier')
    w_consume(A, 2, W_TMP)
    A('s_waitcnt vmcnt(0)')
    A('s_barrier')
    w_consume(A, 3, W_TMP)
    A('s_waitcnt lgkmcnt(0)')

def p1_gate(A):
    SF = CFG['sf']
    T = V_T
    def body():
        srd(A, SRD_M, P_GW, 1024)
        A(f'v_and_b32 {v(T+7)}, 0x30, v0')
        G = V_BF
        ACC = V_ACC0
        for half in range(2):
            for k in range(8):
                A(f's_lshl_b32 s{S_A}, s{S_C0}, 1'); A(f's_add_u32 s{S_A}, s{S_A}, {half*8+k}'); A(f's_and_b32 s{S_A}, s{S_A}, 15'); A(f's_lshl_b32 s{S_A}, s{S_A}, 6')
                A(f'buffer_load_dwordx4 {v(G+4*k,4)}, {v(T+7)}, {SR(SRD_M)}, s{S_A} offen')
            A('s_waitcnt vmcnt(0)')
            for k in range(8):
                ks = half*8 + k
                for tb2 in range(2):
                    acc = ACC + tb2*4
                    cin = '0' if ks == 0 else v(acc,4)
                    A(f'v_mfma_f32_16x16x32_bf16 {v(acc,4)}, {a(XF(tb2,ks),4)}, {v(G+4*k,4)}, {cin}')
        for i in range(8): A(f'v_mul_f32 {v(ACC+i)}, {hex(f2u(-LOG2E))}, {v(ACC+i)}')
        for i in range(8): A(f'v_exp_f32 {v(ACC+i)}, {v(ACC+i)}')
        for i in range(8): A(f'v_add_f32 {v(ACC+i)}, 1.0, {v(ACC+i)}')
        for i in range(8): A(f'v_rcp_f32 {v(ACC+i)}, {v(ACC+i)}')
        A(f's_lshl_b32 s{S_A}, s9, 9'); A(f's_lshl_b32 s{S_B}, s7, 7'); A(f's_add_u32 s{S_A}, s{S_A}, s{S_B}')
        A(f's_add_u32 s{S_A}, s{S_A}, {GATE}')
        A(f's_mov_b64 s[{S_EX}:{S_EX+1}], exec')
        A(f's_mov_b32 exec_lo, 0x00010001'); A(f's_mov_b32 exec_hi, 0x00010001')
        for tb2 in range(2):
            A(f'buffer_store_dwordx4 {v(ACC+4*tb2,4)}, {v(T+7)}, {SR(SRD_WS)}, s{S_A} offen offset:{tb2*64} {SF}')
        A(f's_mov_b64 exec, s[{S_EX}:{S_EX+1}]')
    L = A.label('gate')
    A('s_cmp_lg_u32 s14, 7'); A(f's_cbranch_scc1 {L}')
    A('s_cmp_eq_u32 s8, 0'); A(f's_cbranch_scc1 {L}')
    body()
    A(f'{L}:')

def p1_decode(A):
    A('s_and_b32 s60, s2, 7'); A('s_lshr_b32 s61, s2, 3')
    A('s_and_b32 s62, s60, 1'); A('s_lshl_b32 s62, s62, 3'); A('s_and_b32 s63, s61, 7'); A('s_add_u32 s9, s62, s63')
    A('s_lshr_b32 s62, s60, 1'); A('s_lshl_b32 s62, s62, 2'); A('s_lshr_b32 s63, s61, 3'); A('s_add_u32 s10, s62, s63')
    A('s_and_b32 s62, s61, 7'); A('s_lshr_b32 s63, s61, 3'); A('s_add_u32 s62, s62, s63')
    A(f's_and_b32 s62, s62, {CFG["rot"]-1}'); A(f's_mul_i32 s{S_C0}, s62, {8//CFG["rot"]}')

W_RA = 102
W_TMP = 60
def w_read_addr(A, T):
    A(f'v_lshrrev_b32 {v(T)}, 4, v0'); A(f'v_and_b32 {v(T+1)}, 15, v0')
    A(f'v_lshrrev_b32 {v(T+2)}, 1, {v(T)}')
    A(f'v_xor_b32 {v(T+2)}, {v(T+2)}, {v(T+1)}')
    A(f'v_lshlrev_b32 {v(T+2)}, 4, {v(T+2)}')
    A(f'v_and_b32 {v(T+3)}, 1, {v(T)}')
    A(f'v_lshl_add_u32 {v(T+2)}, {v(T+3)}, 3, {v(T+2)}')
    A(f'v_lshl_add_u32 {v(T+2)}, {v(T+1)}, 8, {v(T+2)}')
    A(f's_lshl_b32 s{S_A}, s8, 13')
    A(f'v_add_u32 {v(W_RA)}, s{S_A}, {v(T+2)}')
    for i in range(1, 8): A(f'v_xor_b32 {v(W_RA+i)}, {32*i}, {v(W_RA)}')
def w_consume(A, r, T):
    slot0 = (4*r) % 8
    A(f's_lshl_b32 s{S_A}, s7, 14'); A(f's_add_u32 s{S_A}, s{S_A}, {slot0*UNIT}')
    for i in range(8): A(f'v_add_u32 {v(T+i)}, s{S_A}, {v(W_RA+i)}')
    n = 0
    for sp in range(4):
        for tb2 in range(2):
            d = XF(tb2, 4*r + sp)
            A(f'ds_read_b64 {a(d,2)}, {v(T+2*sp)} offset:{tb2*4096}')
            A(f'ds_read_b64 {a(d+2,2)}, {v(T+2*sp+1)} offset:{tb2*4096}')
            n += 2
            if n == 12: A('s_waitcnt lgkmcnt(6)')

def emit_p1(A):
    LW = A.label('p1win'); LE = A.label('p1end')
    A('s_cmp_ge_u32 s10, 8'); A(f's_cbranch_scc1 {LW}')
    for typ in ('qkv', 'win'):
        U = p1_units()
        vm = VM2()
        if typ == 'qkv':
            srd(A, SRD_WB, P_WQKV, 512*3072)
            A(f's_movk_i32 s{S_K3}, 896'); A(f's_movk_i32 s{S_K4}, 3072')
        else:
            A(f'{LW}:')
            srd(A, SRD_WB, P_WIN, 512*2752)
            A('s_sub_u32 s14, s10, 8')
            A('s_mul_i32 s11, s14, 192'); A('s_mov_b32 s12, s11'); A('s_add_u32 s11, s11, 1408')
            def lo():
                A('s_mov_b32 s11, 1376'); A('s_mov_b32 s12, 1344')
            if_s(A, ('eq', 's14', 7), lo)
        rb_ = 3072 if typ == 'qkv' else 2752
        A(f's_mul_i32 s{S_B0O}, s{S_C0}, {64*rb_}'); A(f's_mov_b32 s{S_B1O}, s{S_B0O}')
        p1_b_dma_addr(A, typ)
        NPRO = CFG['npro']
        for n in range(1, NPRO):
            for f in p1_issue_list(A, typ, vm, n, U): f()
        if False: pass
        vm.v[0].q = [0, 0] + vm.v[0].q; vm.v[1].q = [0, 0] + vm.v[1].q
        stamp(A, 'pro')
        late_setup(A)
        if typ == 'qkv': p1_q_dma_addr(A)
        else:
            A(f's_mul_i32 s{S_K1}, s14, 6'); A(f's_add_u32 s{S_K2}, s{S_K1}, 1')
            A('s_mov_b32 s13, 3')
            def lo2():
                A(f's_mov_b32 s{S_K1}, 42'); A(f's_mov_b32 s{S_K2}, 0'); A('s_xor_b32 s13, s8, 1')
            if_s(A, ('eq', 's14', 7), lo2)
        p1_read_addr(A, typ)
        stamp(A, 'addr')
        state = dict(issued=NPRO, maxper=CFG['maxper'])
        if typ == 'qkv': state['hooks'] = {(0, 4): lambda: emit_init_flag(A)}
        blocks = p1_blocks(A, typ, 0, vm, U, state, {c: c for c in range(8)}, 16)
        if CFG['prof']:
            for c in (0, 3, 7): blocks[2*c+1]['post'] = (lambda c=c: stamp(A, f'g0s{c}'))
        pipeline(A, blocks)
        ex = []
        for n in range(16, 22): ex += p1_issue_list(A, typ, vm, n, U)
        state['issued'] = 22
        if typ == 'qkv': p1_qkv_epi0(A, vm, ex)
        else: p1_win_epi0(A, vm, ex)
        if typ == 'qkv': w_dma_addr(A, V_WD, V_T + 2)
        else: w_dma_addr4(A, V_WD, V_T + 2)
        stamp(A, 'epi0')
        state['maxper'] = 2
        def hook0():
            if typ == 'qkv': p1_qkv_epi0b(A, vm)
            else: p1_win_epi0b(A, vm); vm.issue('stst', who=(0,))
            flag_load(A)
            vm.mark('pub')
        def hook2():
            def body():
                flag_check(A, V_T+7)
                if typ == 'win':
                    A(f's_lshl_b32 s{S_A}, s9, 8'); A(f's_add_u32 s{S_A}, s{S_A}, {cnt(C_STATS)}')
                    signal(A, S_A, V_T+7)
            if_s(A, ('eq', 's6', 0), body)
        state['hooks'] = {(1, 0): hook0, (1, 2): hook2}
        if typ == 'win':
            state['hooks'][(1, 4)] = lambda: win_stats_poll_issue(A, vm)
            state['hooks'][(1, 6)] = lambda: win_stats_load(A, vm, True)
        state['also_mark'] = {(1, 2): 'pub'}
        lim = 32 if typ == 'qkv' else 30
        blocks = p1_blocks(A, typ, 1, vm, U, state, {0: 1, 2: 3, 4: 5, 6: 7}, lim)
        if CFG['prof']:
            for c in (1, 3, 7): blocks[2*c+1]['post'] = (lambda c=c: stamp(A, f'g1s{c}'))
        pipeline(A, blocks)
        if typ == 'win': win_tail(A, vm)
        else: qkv_tail(A, vm, U, state)
        stamp(A, 'wdone')
        if typ == 'qkv': A(f's_branch {LE}')
    A(f'{LE}:')

P2_ACC = 4; P2_BF = 52
P2_ZD = 108; P2_ZR = 111; P2_T = 114
ZST = 24576; NZ = 6
def WF(tb2, s_): return XF(tb2, s_)

def p2_decode(A):
    A('s_and_b32 s60, s2, 7'); A('s_lshr_b32 s61, s2, 3')
    A(f's_mov_b32 s9, s{S_T2}')
    A('s_and_b32 s62, s60, 1'); A('s_lshl_b32 s62, s62, 2'); A('s_lshr_b32 s63, s61, 3'); A('s_add_u32 s10, s62, s63')
    A('s_mul_i32 s11, s10, 6'); A('s_add_u32 s11, s11, 1')
    A('s_cmp_eq_u32 s10, 7'); A('s_cselect_b32 s11, 0, s11')

def p2_z_addr(A):
    T = P2_T
    A(f'v_lshlrev_b32 {v(T)}, 4, v0')
    A(f's_mul_i32 s{S_A}, s8, 3'); A(f's_add_u32 s{S_A}, s{S_A}, s11'); A(f's_lshl_b32 s{S_A}, s{S_A}, 16')
    A(f's_lshl_b32 s{S_B}, s7, 14'); A(f's_add_u32 s{S_A}, s{S_A}, s{S_B}')
    for i in range(3):
        A(f's_add_u32 s{S_B}, s{S_A}, {i*65536 - i*1024}')
        A(f'v_add_u32 {v(P2_ZD+i)}, s{S_B}, {v(T)}')
    A(f's_mul_i32 s{S_A}, s7, 6144')
    A(f'v_add_u32 {v(P2_ZR)}, s{S_A}, {v(T)}')
    A(f's_mul_i32 s{S_K1}, s7, 6144'); A(f's_mul_i32 s{S_B}, s8, 3072'); A(f's_add_u32 s{S_K1}, s{S_K1}, s{S_B}')

def p2_z_issue_list(A, vm, st, nf):
    out = []
    for i in range(3 if nf == 6 else 1):
        def f(i=i):
            def body():
                A(f's_add_u32 m0, s{S_K1}, {(st % NZ)*ZST}')
                A(f's_lshl_b32 s{S_SOFF}, s{S_R0}, 2'); A(f's_add_u32 s{S_SOFF}, s{S_SOFF}, {st}'); A(f's_and_b32 s{S_SOFF}, s{S_SOFF}, 15'); A(f's_lshl_b32 s{S_SOFF}, s{S_SOFF}, 10')
                if Z2T: A(f's_add_u32 s{S_SOFF}, s{S_SOFF}, {Z2T}')
                A(f'buffer_load_dwordx4 {v(P2_ZD+i)}, {SR(SRD_WS)}, s{S_SOFF} offen offset:{i*1024} {CFG["zlf"]} lds')
            if nf == 1: if_s(A, ('eq', 's8', 0), body)
            else: body()
            vm.issue(('z', st))
        out.append(f)
    return out

def p2_main(A, vm, nf, hooks):
    blocks = []
    issued = 2
    for st in range(16):
        blk = dict(reads=[], mfmas=[], extra=[])
        base = (st % NZ) * ZST
        hi = base + 6144 > 65535 - 6144
        def pre(st=st, base=base, hi=hi):
            A(f's_waitcnt vmcnt({vm.wait_n(("z", st))})')
            A('s_barrier')
            if hi: A(f'v_add_u32 {v(P2_T)}, {base}, {v(P2_ZR)}')
            if st in hooks: hooks[st]()
        blk['pre'] = pre
        todo = []
        while issued < 16 and issued <= st + NZ - 1 and len(todo) < 2:
            todo.append(issued); issued += 1
        blk['stages'] = todo
        for fbi in range(nf):
            r0 = P2_BF + (st % 2)*24 + fbi*4
            if hi: blk['reads'].append(f'ds_read_b128 {v(r0,4)}, {v(P2_T)} offset:{fbi*1024}')
            else: blk['reads'].append(f'ds_read_b128 {v(r0,4)}, {v(P2_ZR)} offset:{base + fbi*1024}')
        for fbi in range(nf):
            for tb2 in range(2):
                acc = P2_ACC + (tb2*6+fbi)*4
                cin = '0' if st == 0 else v(acc,4)
                blk['mfmas'].append(f'v_mfma_f32_16x16x32_bf16 {v(acc,4)}, {v(P2_BF + (st%2)*24 + fbi*4,4)}, {a(WF(tb2,st),4)}, {cin}')
        blocks.append(blk)
    for blk in blocks:
        ex = []
        for st in blk['stages']: ex += p2_z_issue_list(A, vm, st, nf)
        blk['extra'] = ex
    return blocks

J_REG = [116, 121]
def p2_job_scalars(A, job, nf):
    if nf == 6:
        A(f's_add_u32 s{S_A}, s7, {4*job}')
        A(f's_cmp_ge_u32 s{S_A}, 3'); A(f's_cselect_b32 s{S_B}, 1, 0')
        A(f's_mul_i32 s{S_C}, s{S_B}, 3'); A(f's_sub_u32 s{12+job}, s{S_A}, s{S_C}')
    else:
        A(f's_mov_b32 s{S_B}, s7'); A(f's_mov_b32 s{12+job}, 0')
    A(f's_lshl_b32 s{S_D}, s9, 2'); A(f's_lshl_b32 s{S_E}, s8, 1'); A(f's_add_u32 s{S_D}, s{S_D}, s{S_E}'); A(f's_add_u32 s{S_K3+job}, s{S_D}, s{S_B}')

def p2_epi_loads(A, job, J, nf, T):
    LF = CFG['lf']
    A(f's_lshr_b32 s{S_D}, s{S_K3+job}, 1')
    A(f's_mul_i32 s{S_E}, s{S_D}, 43'); A(f's_add_u32 s{S_E}, s{S_E}, s11'); A(f's_lshl_b32 s{S_C}, s{12+job}, 1'); A(f's_add_u32 s{S_E}, s{S_E}, s{S_C}')
    A(f's_lshl_b32 s{S_E}, s{S_E}, 10'); A(f's_add_u32 s{S_E}, s{S_E}, {Z1}')
    A(f's_and_b32 s{S_D}, s{S_K3+job}, 1'); A(f's_lshl_b32 s{S_D}, s{S_D}, 3'); A(f's_add_u32 s{S_E}, s{S_E}, s{S_D}')
    A(f'v_lshlrev_b32 {v(T)}, 4, v0')
    A(f'buffer_load_dwordx2 {v(J,2)}, {v(T)}, {SR(SRD_WS)}, s{S_E} offen {LF}')
    if nf == 6: A(f'buffer_load_dwordx2 {v(J+2,2)}, {v(T)}, {SR(SRD_WS)}, s{S_E} offen offset:1024 {LF}')
    A(f'v_and_b32 {v(T+1)}, 15, v0')
    A(f'v_lshlrev_b32 {v(T)}, 2, {v(T+1)}')
    A(f's_lshl_b32 s{S_E}, s{S_K3+job}, 6'); A(f's_add_u32 s{S_E}, s{S_E}, {GATE}')
    A(f'buffer_load_dword {v(J+4)}, {v(T)}, {SR(SRD_WS)}, s{S_E} offen {LF}')
    A(f'v_lshlrev_b32 {v(T+1)}, 1, {v(T+1)}')
    A(f's_lshl_b32 s{S_E}, s{S_K3+job}, 5')
    A(f'buffer_load_ushort {v(J+5)}, {v(T+1)}, {SR(SRD_M)}, s{S_E} offen')

def p2_epilogue(A, nf):
    SF = CFG['sf']
    T = P2_T
    JA = P2_BF; JB = P2_BF + 8
    srd(A, SRD_M, P_BSP, 4096)
    def pl():
        A(f's_lshl_b32 s{S_A}, s10, 8'); A(f's_add_u32 s{S_A}, s{S_A}, {cnt(C_Z1)}')
        A(f's_add_u32 s{S_B}, s10, 1'); A(f's_and_b32 s{S_B}, s{S_B}, 7'); A(f's_lshl_b32 s{S_B}, s{S_B}, 8'); A(f's_add_u32 s{S_B}, s{S_B}, {cnt(C_Z1)}')
        A(f's_mov_b32 s{S_C}, {cnt(C_Z1+7)}')
        pollN(A, [(f's{S_A}', 16), (f's{S_B}', 16), (f's{S_C}', 16)], T+6, 'pz1')
    if_s(A, ('eq', 's6', 0), pl)
    A('s_barrier')
    owners = (lambda body: body()) if nf == 6 else (lambda body: if_s(A, ('lt', 's7', 2), body))
    def ld0():
        p2_job_scalars(A, 0, nf); p2_epi_loads(A, 0, JA, nf, T)
    owners(ld0)
    if nf == 6:
        def ld1():
            p2_job_scalars(A, 1, nf); p2_epi_loads(A, 1, JB, nf, T)
        if_s(A, ('lt', 's7', 2), ld1)
    A(f'v_lshlrev_b32 {v(T+4)}, 4, v0')
    A(f's_mul_i32 s{S_A}, s8, 49152'); A(f's_lshl_b32 s{S_B}, s7, 11'); A(f's_add_u32 s{S_A}, s{S_A}, s{S_B}')
    A(f'v_add_u32 {v(T+5)}, s{S_A}, {v(T+4)}')
    if nf == 6:
        for tb2 in range(2):
            for fbi in range(6):
                phi = tb2*3 + fbi//2
                A(f'ds_write_b128 {v(T+5)}, {v(P2_ACC + (tb2*6+fbi)*4,4)} offset:{phi*8192 + (fbi%2)*1024}')
    else:
        for tb2 in range(2):
            A(f'ds_write_b128 {v(T+5)}, {v(P2_ACC + (tb2*6)*4,4)} offset:{tb2*8192}')
    c1v = P2_BF + 46
    gelu_consts(A, c1v)
    nb = 2 if nf == 6 else 1
    def prep(j, J):
        Z = P2_BF + 16 + j*8
        for b in range(nb):
            for h in range(2):
                src = J + b*2 + h
                A(f'v_lshlrev_b32 {v(Z+b*4+2*h)}, 16, {v(src)}')
                A(f'v_and_b32 {v(Z+b*4+2*h+1)}, 0xffff0000, {v(src)}')
        gelu_block(A, Z, 4*nb, P2_BF + 32, c1v)
        A(f'v_lshlrev_b32 {v(J+5)}, 16, {v(J+5)}')
        A(f'v_sub_f32 {v(J+4)}, 1.0, {v(J+4)}')
        A(f'v_mov_b32 {v(J+6)}, {v(J+5)}'); A(f'v_mov_b32 {v(J+7)}, {v(J+5)}')
        A(f'v_mov_b32 {v(J+5)}, {v(J+4)}')
        for b in range(nb):
            for h in range(2):
                A(f'v_pk_mul_f32 {v(Z+b*4+2*h,2)}, {v(Z+b*4+2*h,2)}, {v(J+4,2)}')
    A('s_waitcnt vmcnt(0)')
    owners(lambda: prep(0, JA))
    if nf == 6: if_s(A, ('lt', 's7', 2), lambda: prep(1, JB))
    A('s_waitcnt lgkmcnt(0)')
    A('s_barrier')
    def job(j, J):
        R = P2_ACC
        Z = P2_BF + 16 + j*8
        A(f's_add_u32 s{S_A}, s7, {4*j}'); A(f's_lshl_b32 s{S_A}, s{S_A}, 13')
        A(f's_mul_i32 s{S_B}, s8, 49152'); A(f's_add_u32 s{S_A}, s{S_A}, s{S_B}')
        A(f'v_add_u32 {v(T+5)}, s{S_A}, {v(T+4)}')
        for b in range(nb):
            for k in range(4):
                A(f'ds_read_b128 {v(R + (b*4+k)*4,4)}, {v(T+5)} offset:{k*2048 + b*1024}')
        if nf == 6:
            A(f's_mul_i32 s{S_A}, s{S_K3+j}, 21'); A(f's_mul_i32 s{S_B}, s10, 3'); A(f's_add_u32 s{S_A}, s{S_A}, s{S_B}')
            A(f's_add_u32 s{S_A}, s{S_A}, s{12+j}'); A(f's_lshl_b32 s{S_A}, s{S_A}, 10'); A(f's_add_u32 s{S_A}, s{S_A}, {UO}')
        else:
            A(f's_lshl_b32 s{S_A}, s{S_K3+j}, 9'); A(f's_add_u32 s{S_A}, s{S_A}, {U0}')
        A('s_waitcnt lgkmcnt(0)')
        O = P2_ACC + 32 + j*4
        for b in range(nb):
            R0 = R + b*16
            for h in range(2):
                A(f'v_pk_add_f32 {v(R0+2*h,2)}, {v(R0+2*h,2)}, {v(R0+4+2*h,2)}')
                A(f'v_pk_add_f32 {v(R0+8+2*h,2)}, {v(R0+8+2*h,2)}, {v(R0+12+2*h,2)}')
            for h in range(2): A(f'v_pk_add_f32 {v(R0+2*h,2)}, {v(R0+2*h,2)}, {v(J+6,2)}')
            for h in range(2): A(f'v_pk_add_f32 {v(R0+2*h,2)}, {v(R0+2*h,2)}, {v(R0+8+2*h,2)}')
            for h in range(2): A(f'v_pk_mul_f32 {v(R0+2*h,2)}, {v(R0+2*h,2)}, {v(Z+b*4+2*h,2)}')
            for h in range(2): A(f'v_cvt_pk_bf16_f32 {v(O+b*2+h)}, {v(R0+2*h)}, {v(R0+2*h+1)}')
        if nf == 6:
            ws_store(A, 4, O, T+4, f's{S_A}', SF)
        else:
            A(f'v_lshlrev_b32 {v(T+6)}, 3, v0')
            ws_store(A, 2, O, T+6, f's{S_A}', SF)
    owners(lambda: job(0, JA))
    if nf == 6: if_s(A, ('lt', 's7', 2), lambda: job(1, JB))

def p2_ojob(A):
    SF = CFG['sf']; LF = CFG['lf']
    T = P2_T
    A(f's_lshr_b32 s12, s9, 1')
    def pl():
        A(f's_lshr_b32 s{S_A}, s9, 2'); A(f's_lshl_b32 s{S_A}, s{S_A}, 8'); A(f's_add_u32 s{S_A}, s{S_A}, {cnt(C_QKV)}')
        pollN(A, [(f's{S_A}', 16)], T+6, 'pq')
    if_s(A, ('eq', 's6', 0), pl)
    A('s_barrier')
    A(f's_and_b32 s13, s9, 1'); A(f's_lshl_b32 s13, s13, 6'); A(f's_lshl_b32 s{S_A}, s6, 3'); A(f's_add_u32 s13, s13, s{S_A}')
    A(f's_lshl_b32 s{S_A}, s12, 1'); A(f's_add_u32 s{S_A}, s{S_A}, s8')
    A(f's_lshl_b32 s{S_B}, s7, 7'); A(f's_add_u32 s{S_B}, s{S_B}, s{S_A}')
    A(f's_lshl_b32 s{S_C}, s{S_B}, 6'); A(f's_add_u32 s{S_C}, s{S_C}, {KZ}')
    A(f's_lshl_b32 s{S_B}, s{S_B}, 10'); A(f's_add_u32 s{S_B}, s{S_B}, {KVP}')
    A(f'v_lshlrev_b32 {v(T)}, 4, v0'); A(f'v_and_b32 {v(T+1)}, 0x30, v0')
    R = P2_ACC
    for i in range(4):
        A(f'buffer_load_dwordx4 {v(R+4*i,4)}, {v(T)}, {SR(SRD_WS)}, s{S_B} offen {LF}')
        A(f'buffer_load_dwordx4 {v(R+16+4*i,4)}, {v(T+1)}, {SR(SRD_WS)}, s{S_C} offen {LF}')
        A(f's_add_u32 s{S_B}, s{S_B}, {32*1024}'); A(f's_add_u32 s{S_C}, s{S_C}, {32*64}')
    Q = P2_BF; G = P2_BF + 32
    A(f'v_lshlrev_b32 {v(T+2)}, 3, v0')
    A(f'v_and_b32 {v(T+3)}, 15, v0'); A(f'v_lshlrev_b32 {v(T+3)}, 2, {v(T+3)}')
    A(f's_lshl_b32 s{S_A}, s12, 7'); A(f's_lshr_b32 s{S_B}, s13, 1'); A(f's_add_u32 s{S_A}, s{S_A}, s{S_B}'); A(f's_lshl_b32 s{S_A}, s{S_A}, 10'); A(f's_add_u32 s{S_A}, s{S_A}, {QO}')
    for hh in range(2):
        A(f's_add_u32 s{S_B}, s{S_A}, {hh*65536}')
        for i in range(4):
            A(f'buffer_load_dwordx4 {v(Q+hh*16+i*4,4)}, {v(T)}, {SR(SRD_WS)}, s{S_B} offen offset:{i*1024} {LF}')
    A(f's_lshl_b32 s{S_B}, s13, 6'); A(f's_add_u32 s{S_B}, s{S_B}, {GATE}')
    for i in range(8):
        A(f'buffer_load_dword {v(G+i)}, {v(T+3)}, {SR(SRD_WS)}, s{S_B} offen offset:{i*64} {LF}')
    A('s_waitcnt vmcnt(16)')
    for base in (R, R+16):
        for h in range(2):
            A(f'v_pk_add_f32 {v(base+2*h,2)}, {v(base+2*h,2)}, {v(base+4+2*h,2)}')
            A(f'v_pk_add_f32 {v(base+8+2*h,2)}, {v(base+8+2*h,2)}, {v(base+12+2*h,2)}')
        for h in range(2): A(f'v_pk_add_f32 {v(base+2*h,2)}, {v(base+2*h,2)}, {v(base+8+2*h,2)}')
    A(f's_lshl_b32 s{S_A}, s6, 11')
    A(f'v_add_u32 {v(T+4)}, s{S_A}, {v(T)}')
    A(f'ds_write_b128 {v(T+4)}, {v(R,4)}')
    A(f'ds_write_b128 {v(T+4)}, {v(R+16,4)} offset:1024')
    A('s_waitcnt lgkmcnt(0)')
    A('s_barrier')
    KB = [P2_ACC+40, P2_ACC+42]; ZB = [P2_ACC+44, P2_ACC+46]
    for hh in range(2):
        for k in range(4):
            A(f'ds_read_b128 {v(R+4*k,4)}, {v(T)} offset:{(hh*4+k)*2048}')
            A(f'ds_read_b128 {v(R+16+4*k,4)}, {v(T)} offset:{(hh*4+k)*2048 + 1024}')
        A('s_waitcnt lgkmcnt(0)')
        for base, dst in ((R, KB[hh]), (R+16, ZB[hh])):
            for h in range(2):
                A(f'v_pk_add_f32 {v(base+2*h,2)}, {v(base+2*h,2)}, {v(base+4+2*h,2)}')
                A(f'v_pk_add_f32 {v(base+8+2*h,2)}, {v(base+8+2*h,2)}, {v(base+12+2*h,2)}')
            for h in range(2): A(f'v_pk_add_f32 {v(base+2*h,2)}, {v(base+2*h,2)}, {v(base+8+2*h,2)}')
            for h in range(2): A(f'v_cvt_pk_bf16_f32 {v(dst+h)}, {v(base+2*h)}, {v(base+2*h+1)}')
    A('s_waitcnt vmcnt(0)')
    A(f's_mov_b32 s{S_PAIR}, {hex(f2u(1e-6))}')
    for i0 in range(0, 8, 2):
        for di in range(2):
            i = i0 + di
            N = P2_ACC + di*16
            for hh in range(2):
                A(f'v_mfma_f32_16x16x16_bf16 {v(N+hh*4,4)}, {v(KB[hh],2)}, {v(Q+hh*16+i*2,2)}, 0')
                A(f'v_mfma_f32_16x16x16_bf16 {v(N+8+hh*4,4)}, {v(ZB[hh],2)}, {v(Q+hh*16+i*2,2)}, 0')
        for di in range(2):
            N = P2_ACC + di*16
            for hh in range(2): A(f'v_add_f32 {v(N+8+hh*4)}, s{S_PAIR}, {v(N+8+hh*4)}')
        for di in range(2):
            N = P2_ACC + di*16
            for hh in range(2): A(f'v_rcp_f32 {v(N+8+hh*4)}, {v(N+8+hh*4)}')
        for di in range(2):
            N = P2_ACC + di*16
            for hh in range(2):
                A(f'v_mul_f32 {v(N+8+hh*4)}, {v(N+8+hh*4)}, {v(G+i0+di)}')
            for hh in range(2):
                A(f'v_mov_b32 {v(N+8+hh*4+1)}, {v(N+8+hh*4)}')
        for di in range(2):
            N = P2_ACC + di*16
            for hh in range(2):
                for h in range(2):
                    A(f'v_pk_mul_f32 {v(N+hh*4+2*h,2)}, {v(N+hh*4+2*h,2)}, {v(N+8+hh*4,2)}')
        for di in range(2):
            N = P2_ACC + di*16
            X = P2_ACC + 32 + di*4
            for hh in range(2):
                for h in range(2):
                    A(f'v_cvt_pk_bf16_f32 {v(X+hh*2+h)}, {v(N+hh*4+2*h)}, {v(N+hh*4+2*h+1)}')
            A(f's_add_u32 s{S_A}, s13, {i0+di}'); A(f's_lshl_b32 s{S_A}, s{S_A}, 4'); A(f's_add_u32 s{S_A}, s{S_A}, s12')
            A(f's_lshl_b32 s{S_A}, s{S_A}, 10'); A(f's_add_u32 s{S_A}, s{S_A}, {OO}')
            ws_store(A, 4, X, T, f's{S_A}', SF)

P3_A = 4; P3_ACC = 80; P3_BR = 100; P3_BD = 104; P3_T = 112
def p3_b_setup(A):
    T = P3_T
    A(f'v_lshrrev_b32 {v(T)}, 3, v0'); A(f'v_and_b32 {v(T+1)}, 7, v0'); A(f'v_lshrrev_b32 {v(T+2)}, 4, v0')
    A(f'v_lshrrev_b32 {v(T+3)}, 1, {v(T+1)}')
    A(f'v_xor_b32 {v(T+3)}, {v(T+3)}, {v(T+2)}')
    A(f'v_lshlrev_b32 {v(T+3)}, 5, {v(T+3)}')
    A(f'v_and_b32 {v(T+4)}, 1, v0')
    A(f'v_lshl_add_u32 {v(T+3)}, {v(T+4)}, 4, {v(T+3)}')
    A(f'v_lshl_add_u32 {v(T+3)}, {v(T)}, 10, {v(T+3)}')
    A(f's_lshl_b32 s{S_A}, s{S_N3}, 7'); A(f's_lshl_b32 s{S_B}, s6, 13'); A(f's_add_u32 s{S_A}, s{S_A}, s{S_B}')
    A(f'v_add_u32 {v(P3_BD)}, s{S_A}, {v(T+3)}')
    A(f'v_and_b32 {v(T+4)}, 15, v0')
    A(f'v_lshrrev_b32 {v(T+5)}, 2, {v(T+4)}')
    A(f'v_lshl_add_u32 {v(T+5)}, {v(T+2)}, 2, {v(T+5)}')
    A(f'v_lshrrev_b32 {v(T+6)}, 1, {v(T+5)}'); A(f'v_and_b32 {v(T+6)}, 3, {v(T+6)}')
    A(f'v_and_b32 {v(T+4)}, 3, {v(T+4)}'); A(f'v_lshlrev_b32 {v(T+4)}, 3, {v(T+4)}')
    A(f'v_lshl_add_u32 {v(T+4)}, {v(T+5)}, 7, {v(T+4)}')
    for b in range(4):
        A(f'v_xor_b32 {v(T+7)}, {b}, {v(T+6)}')
        A(f'v_lshl_add_u32 {v(P3_BR+b)}, {v(T+7)}, 5, {v(T+4)}')
def p3_b_issue(A, m0_, m1_):
    for m in range(m0_, m1_):
        def body(m=m):
            A(f's_add_u32 m0, s{S_LW1}, {m*8192}')
            if m < 8:
                A(f's_mov_b32 s{S_SOFF}, {m*65536}')
                A(f'buffer_load_dwordx4 {v(P3_BD)}, {SR(SRD_X)}, s{S_SOFF} offen {CFG["b3f"]} lds')
            else:
                A(f's_mov_b32 s{S_SOFF}, {(m-8)*65536}')
                A(f'buffer_load_dwordx4 {v(P3_BD)}, {SR(SRD_WB)}, s{S_SOFF} offen {CFG["b3f"]} lds')
        if m == 18: if_s(A, ('lt', 's6', 6), body)
        else: body()

def p2_finish(A, nf):
    T = P2_T
    srd(A, SRD_X, P_WO, 512*1024)
    srd(A, SRD_WB, P_WOUT, 688*1024)
    A('s_barrier')
    p3_b_setup(A)
    p3_b_issue(A, 0, 8)
    A('s_waitcnt vmcnt(8)')
    A('s_barrier')
    def sig():
        A(f's_lshl_b32 s{S_A}, s9, 8'); A(f's_add_u32 s{S_A}, s{S_A}, {cnt(C_U)}')
        signal(A, S_A, T+8)
        if nf == 1:
            A(f's_and_b32 s{S_A}, s9, 1'); A(f's_lshl_b32 s{S_A}, s{S_A}, 10'); A(f's_add_u32 s{S_A}, s{S_A}, {cnt(C_O)}')
            signal(A, S_A, T+8, lanes=4, stride=256)
    if_s(A, ('eq', 's6', 0), sig)
    stamp(A, 'p2sig')
    p3_b_issue(A, 8, 19)

def emit_p2(A):
    p2_decode(A)
    p2_z_addr(A)
    def pl():
        A(f's_lshl_b32 s{S_A}, s10, 8'); A(f's_add_u32 s{S_A}, s{S_A}, {cnt(C_WIN)}')
        pollN(A, [(f's{S_A}', 16)], P2_T+6, 'pz2')
    if_s(A, ('eq', 's6', 0), pl)
    A('s_barrier')
    stamp(A, 'p2go')
    LL = A.label('p2left'); LE = A.label('p2end')
    A('s_cmp_eq_u32 s10, 7'); A(f's_cbranch_scc1 {LL}')
    for nf in (6, 1):
        if nf == 1: A(f'{LL}:')
        vm = VM()
        for st in range(2):
            for f in p2_z_issue_list(A, vm, st, nf): f()
        blocks = p2_main(A, vm, nf, {})
        if CFG['prof']:
            for st in (0, 7, 15): blocks[st]['post'] = (lambda st=st: stamp(A, f'p2s{st}'))
        pipeline(A, blocks)
        p2_epilogue(A, nf)
        stamp(A, 'p2epi')
        if nf == 1: p2_ojob(A)
        stamp(A, 'p2o')
        p2_finish(A, nf)
        if nf == 6: A(f's_branch {LE}')
    A(f'{LE}:')

def p3_steps(kh):
    allsteps = [('o', hp, 32*hp) for hp in range(16)] + [('u', p, 512 + 16 + 32*p) for p in range(21)] + [('u0', 0, 512)]
    return allsteps[:19] if kh == 0 else allsteps[19:]

def emit_p3(A):
    LF = CFG['lf']
    T = P3_T
    A(f's_mov_b32 s9, s{S_T3}'); A(f's_mov_b32 s10, s{S_N3}')
    def pl():
        A(f's_lshl_b32 s{S_A}, s9, 8'); A(f's_add_u32 s{S_A}, s{S_A}, {cnt(C_U)}')
        A(f's_lshr_b32 s{S_B}, s9, 4'); A(f's_lshl_b32 s{S_B}, s{S_B}, 2'); A(f's_and_b32 s{S_C}, s9, 3'); A(f's_add_u32 s{S_B}, s{S_B}, s{S_C}')
        A(f's_lshl_b32 s{S_B}, s{S_B}, 8'); A(f's_add_u32 s{S_B}, s{S_B}, {cnt(C_O)}')
        pollN(A, [(f's{S_A}', 8), (f's{S_B}', 16)], T+8, 'pu')
    A(f'v_lshlrev_b32 {v(T)}, 4, v0'); A(f'v_lshlrev_b32 {v(T+1)}, 3, v0')
    A(f's_lshl_b32 s11, s9, 2'); A(f's_add_u32 s11, s11, s7')
    A(f's_lshl_b32 s{S_K1}, s11, 14'); A(f's_add_u32 s{S_K1}, s{S_K1}, {OO}')
    A(f's_mul_i32 s{S_K2}, s11, {21*1024}'); A(f's_add_u32 s{S_K2}, s{S_K2}, {UO}')
    A(f's_lshl_b32 s{S_K3}, s11, 9'); A(f's_add_u32 s{S_K3}, s{S_K3}, {U0}')
    if_s(A, ('eq', 's6', 0), pl)
    A('s_waitcnt vmcnt(0)')
    A('s_barrier')
    stamp(A, 'p3go')
    LK = A.label('p3k1'); LJ = A.label('p3join')
    A('s_cmp_lg_u32 s8, 0'); A(f's_cbranch_scc1 {LK}')
    for kh in range(2):
        if kh == 1: A(f'{LK}:')
        steps = p3_steps(kh)
        vm = VM()
        def aload(i):
            kind, idx, row0 = steps[i]
            if kind == 'o':
                A(f's_add_u32 s{S_D}, s{S_K1}, {idx*1024}')
                A(f'buffer_load_dwordx4 {v(P3_A+4*i,4)}, {v(T)}, {SR(SRD_WS)}, s{S_D} offen {LF}')
            elif kind == 'u':
                A(f's_add_u32 s{S_D}, s{S_K2}, {idx*1024}')
                A(f'buffer_load_dwordx4 {v(P3_A+4*i,4)}, {v(T)}, {SR(SRD_WS)}, s{S_D} offen {LF}')
            else:
                A(f'buffer_load_dwordx2 {v(P3_A+4*i,2)}, {v(T+1)}, {SR(SRD_WS)}, s{S_K3} offen {LF}')
            vm.issue(i)
        NA = CFG['p3pro']
        for i in range(NA): aload(i)
        blocks = []
        nxt = NA
        for i, (kind, idx, row0) in enumerate(steps):
            blk = dict(reads=[], mfmas=[], extra=[])
            base = row0 * 128
            par = i % 2
            hi = base + 16*128 + 512 > 65535
            def pre(i=i, base=base, hi=hi, par=par):
                if hi:
                    for b in range(4): A(f'v_add_u32 {v(T+2+par*4+b)}, {base}, {v(P3_BR+b)}')
            blk['pre'] = pre
            for _ in range(CFG['p3per']):
                if nxt < len(steps):
                    blk['extra'].append(lambda n=nxt: aload(n)); nxt += 1
            for b in range(4):
                ad = (T+2+par*4+b, 0) if hi else (P3_BR+b, base)
                d = par*16 + b*4
                blk['reads'].append(f'ds_read_b64_tr_b16 {a(d,2)}, {v(ad[0])} offset:{ad[1]}')
                if kind != 'u0':
                    blk['reads'].append(f'ds_read_b64_tr_b16 {a(d+2,2)}, {v(ad[0])} offset:{ad[1] + 16*128}')
            for b in range(4):
                acc = P3_ACC + 4*b
                cin = '0' if i == 0 else v(acc,4)
                d = par*16 + b*4
                if kind == 'u0':
                    blk['mfmas'].append(f'v_mfma_f32_16x16x16_bf16 {v(acc,4)}, {a(d,2)}, {v(P3_A+4*i,2)}, {cin}')
                else:
                    blk['mfmas'].append(f'v_mfma_f32_16x16x32_bf16 {v(acc,4)}, {a(d,4)}, {v(P3_A+4*i,4)}, {cin}')
            blk['start'] = (lambda i=i: A(f's_waitcnt vmcnt({vm.wait_n(i)}) lgkmcnt(0)'))
            blocks.append(blk)
        pipeline(A, blocks)
        if kh == 0: A(f's_branch {LJ}')
    A(f'{LJ}:')
    stamp(A, 'p3main')
    A('s_barrier')
    A(f's_lshl_b32 s{S_A}, s7, 12'); A(f's_lshl_b32 s{S_B}, s8, 11'); A(f's_add_u32 s{S_A}, s{S_A}, s{S_B}')
    A(f'v_add_u32 {v(T+2)}, s{S_A}, {v(T)}')
    A(f's_xor_b32 s{S_B}, s{S_A}, 2048')
    A(f'v_add_u32 {v(T+3)}, s{S_B}, {v(T)}')
    LA = A.label('r0'); LB = A.label('r1')
    A('s_cmp_lg_u32 s8, 0'); A(f's_cbranch_scc1 {LA}')
    for b in (2, 3): A(f'ds_write_b128 {v(T+2)}, {v(P3_ACC+4*b,4)} offset:{(b-2)*1024}')
    A(f's_branch {LB}')
    A(f'{LA}:')
    for b in (0, 1): A(f'ds_write_b128 {v(T+2)}, {v(P3_ACC+4*b,4)} offset:{b*1024}')
    for b in (0, 1):
        for r in range(4): A(f'v_mov_b32 {v(P3_ACC+4*b+r)}, {v(P3_ACC+8+4*b+r)}')
    A(f'{LB}:')
    A('s_waitcnt lgkmcnt(0)')
    A('s_barrier')
    R = P3_A
    for b in range(2): A(f'ds_read_b128 {v(R+4*b,4)}, {v(T+3)} offset:{b*1024}')
    srd(A, SRD_M, P_OUT, 2048*1024)
    A(f'v_and_b32 {v(T+4)}, 15, v0'); A(f'v_lshlrev_b32 {v(T+4)}, 10, {v(T+4)}')
    A(f'v_lshrrev_b32 {v(T+5)}, 4, v0'); A(f'v_lshl_add_u32 {v(T+4)}, {v(T+5)}, 3, {v(T+4)}')
    A(f's_lshl_b32 s{S_A}, s11, 14'); A(f's_lshl_b32 s{S_B}, s10, 7'); A(f's_add_u32 s{S_A}, s{S_A}, s{S_B}')
    A(f's_lshl_b32 s{S_B}, s8, 6'); A(f's_add_u32 s{S_A}, s{S_A}, s{S_B}')
    A('s_waitcnt lgkmcnt(0)')
    for b in range(2):
        for h in range(2):
            A(f'v_pk_add_f32 {v(P3_ACC+4*b+2*h,2)}, {v(P3_ACC+4*b+2*h,2)}, {v(R+4*b+2*h,2)}')
    for b in range(2):
        for h in range(2):
            A(f'v_cvt_pk_bf16_f32 {v(R+8+2*b+h)}, {v(P3_ACC+4*b+2*h)}, {v(P3_ACC+4*b+2*h+1)}')
    for b in range(2):
        A(f'buffer_store_dwordx2 {v(R+8+2*b,2)}, {v(T+4)}, {SR(SRD_M)}, s{S_A} offen offset:{b*32}')
    stamp(A, 'p3end')
    stamp(A, 'rt1')

def wg0w0(A, body):
    L = A.label('init')
    A('s_cmp_lg_u32 s2, 0'); A(f's_cbranch_scc1 {L}')
    A('s_cmp_lg_u32 s6, 0'); A(f's_cbranch_scc1 {L}')
    body()
    A(f'{L}:')
def emit_init(A):
    def body():
        A('v_lshlrev_b32 v2, 8, v0'); A('v_mov_b32 v3, 0')
        A(f's_mov_b32 s{S_A}, {CNT}')
        A(f'buffer_store_dword v3, v2, {SR(SRD_WS)}, s{S_A} offen sc1')
        A(f's_add_u32 s{S_A}, s{S_A}, {64*256}')
        A(f'buffer_store_dword v3, v2, {SR(SRD_WS)}, s{S_A} offen sc1')
    wg0w0(A, body)
def emit_init_flag(A):
    def body():
        A('v_mov_b32 v2, 0'); A('v_mov_b32 v3, 1')
        A('s_mov_b64 exec, 1')
        A(f'buffer_store_dword v3, v2, {SR(SRD_DBG)}, 0 offen sc1')
        A('s_mov_b64 exec, -1')
    wg0w0(A, body)

def late_setup(A):
    srd(A, SRD_WS, P_WS, WS_USED)
    srd(A, SRD_DBG, P_DBG, 256)
    srd(A, SRD_WSP, P_WSP, 2048*4096)
    emit_init(A)
    def z():
        A(f'v_mov_b32 v2, {LCNT}'); A('v_mov_b32 v3, 0'); A('ds_write_b32 v2, v3')
    if_s(A, ('eq', 's6', 0), z)
    A('s_and_b32 s60, s2, 7'); A('s_lshr_b32 s61, s2, 3')
    A('s_lshr_b32 s62, s60, 1'); A('s_lshl_b32 s62, s62, 3'); A('s_and_b32 s63, s61, 7'); A(f's_add_u32 s{S_T2}, s62, s63')
    A('s_lshl_b32 s62, s60, 2'); A('s_and_b32 s63, s61, 3'); A(f's_add_u32 s{S_T3}, s62, s63')
    A(f's_lshr_b32 s{S_N3}, s61, 2')
    A('s_lshr_b32 s63, s61, 3'); A(f's_add_u32 s62, s{S_T2}, s63'); A(f's_and_b32 s{S_R0}, s62, {CFG["rot2"]-1}')

def build():
    A = Asm()
    hdr = open('gated_mix__linear_attn_block__mixer_gmlp__prompt.s.ref').read().split('; Override launch geometry')[0]
    A(hdr.rstrip())
    A(f'; @launch grid=(256,1,1) block=(512,1,1) lds={LDS_BYTES}')
    A('.amdgcn_target "amdgcn-amd-amdhsa--gfx950"')
    A('.text')
    kernel_header(A, KNAME)
    A('s_cmp_ge_u32 s2, 256')
    A(f's_cbranch_scc1 k_exit')
    A('s_load_dwordx16 s[16:31], s[0:1], 0')
    A('s_load_dwordx8 s[32:39], s[0:1], 64')
    A('v_lshrrev_b32 v1, 6, v0')
    A('v_and_b32 v0, 63, v0')
    A('v_readfirstlane_b32 s6, v1')
    A('s_and_b32 s7, s6, 3'); A('s_lshr_b32 s8, s6, 2')
    A(f's_lshl_b32 s{S_LW}, s6, 11'); A(f's_lshl_b32 s{S_LW1}, s6, 10')
    p1_decode(A)
    p1_x_addr(A)
    A('s_waitcnt lgkmcnt(0)')
    stamp(A, 'start')
    stamp(A, 'rt0')
    srd(A, SRD_X, P_X, 2048*1024)
    A(f's_lshl_b32 s{S_XO}, s{S_C0}, 7')
    for f in p1_issue_list(A, 'qkv', VM2(), 0, p1_units()): f()
    emit_p1(A)
    emit_p2(A)
    emit_p3(A)
    stamp_flush(A)
    A('k_exit:')
    A('s_endpgm')
    A('.section .rodata,"a"')
    A('.p2align 6')
    A(kernel_desc(KNAME, 256, accum=128))
    return A

if __name__ == '__main__':
    out = sys.argv[1]
    for a_ in sys.argv[2:]:
        k_, v_ = a_.split('=')
        CFG[k_] = int(v_) if v_.lstrip('-').isdigit() else v_.replace('_', ' ')
    A = build()
    t = A.text()
    open(out, 'w').write(t)
    if CFG['prof']: open(out + '.names', 'w').write(' '.join(_stamps))
    print('lines', t.count(chr(10)), 'nops inserted', A.nops_inserted)
```

```python
import sys, struct
from asmgen import *
from layout import *

UNIT = 16384
NU = 8
SCR = NU * UNIT
LDS_BYTES = 163840
KNAME = 'gated_mix__linear_attn_block__mixer_gmlp__prompt_kernel'

P_X, P_WQKV, P_WO, P_BX, P_WIN, P_WSP, P_BSP, P_WOUT = 16, 18, 20, 22, 24, 26, 28, 30
P_GW, P_OUT, P_DBG, P_WS = 32, 34, 36, 38
SRD_X, SRD_WB, SRD_WS, SRD_WSP, SRD_M = 40, 44, 48, 52, 56
S_A, S_B, S_C, S_D, S_E, S_F = 60, 61, 62, 63, 64, 65
S_SOFF = 66
S_POLL = 67
S_EX = 68
S_K1, S_K2, S_K3, S_K4 = 70, 71, 72, 73
S_LW, S_LW1 = 74, 75
S_PAIR = 76
SRD_DBG = 92
S_T2, S_T3, S_N3 = 96, 97, 98
S_XO, S_B0O, S_B1O = 99, 100, 101
S_C0 = 15
S_R0 = 5

C_STATS, C_WIN, C_QKV, C_U, C_O, C_Z1 = 0, 16, 24, 32, 64, 72
LCNT = NU*UNIT + 28672
def cnt(i): return CNT + i * 256

def f2u(x): return struct.unpack('<I', struct.pack('<f', x))[0]
LOG2E = 1.4426950408889634
GK = -2.0 * 0.7978845608028654 * LOG2E
GC = 0.044715

CFG = dict(prof=False, sf='sc1', lf='sc1', zlf='sc1', xf='', wf='', wspf='', b3f='', npro=4, maxper=2, codepf=1, p3pro=6, p3per=2, rot=8, rot2=4)
_stamps = []
PROF = 0x1000000
def stamp(A, name):
    if not CFG['prof']: return
    if name in _stamps: idx = _stamps.index(name)
    else: idx = len(_stamps); _stamps.append(name)
    A('s_waitcnt lgkmcnt(0)')
    A('s_memrealtime s[84:85]' if name.startswith('rt') else 's_memtime s[84:85]')
    A('s_waitcnt lgkmcnt(0)')
    A(f'v_writelane_b32 v127, s84, {idx}')
def stamp_flush(A):
    if not CFG['prof']: return
    A('s_waitcnt vmcnt(0)')
    A('s_lshl_b32 s84, s2, 3'); A('s_add_u32 s84, s84, s6'); A('s_lshl_b32 s84, s84, 8')
    A('v_lshlrev_b32 v126, 2, v0')
    A(f's_mov_b32 s88, s38'); A('s_and_b32 s89, s39, 0xffff'); A('s_mov_b32 s90, 0x2000000'); A('s_mov_b32 s91, 0x00020000')
    A(f's_add_u32 s84, s84, {PROF}')
    A('buffer_store_dword v127, v126, s[88:91], s84 offen')

class VM:
    def __init__(self): self.q = []; self.marks = {}
    def issue(self, tag, n=1): self.q += [tag] * n
    def wait_n(self, tag):
        idx = max(i for i, t in enumerate(self.q) if t == tag)
        return len(self.q) - 1 - idx
    def mark(self, name): self.marks[name] = len(self.q)
    def since(self, name): return len(self.q) - self.marks[name]

class VM2:
    def __init__(self): self.v = [VM(), VM()]
    def issue(self, tag, n=1, who=(0, 1)):
        for w in who: self.v[w].issue(tag, n)
    def mark(self, name):
        for x in self.v: x.mark(name)
    def counts(self, tag, mark=None):
        out = []
        for x in self.v:
            N = x.wait_n(tag) if (tag is not None and tag in x.q) else 63
            if mark is not None: N = min(N, x.since(mark))
            out.append(N)
        return out
    def wait(self, A, tag, mark=None):
        n0, n1 = self.counts(tag, mark)
        if n0 == n1: A(f's_waitcnt vmcnt({min(n0,63)})'); return
        L0 = A.label('vw'); L1 = A.label('vw')
        A('s_cmp_eq_u32 s8, 0'); A(f's_cbranch_scc1 {L0}')
        A(f's_waitcnt vmcnt({min(n1,63)})'); A(f's_branch {L1}')
        A(f'{L0}:'); A(f's_waitcnt vmcnt({min(n0,63)})'); A(f'{L1}:')

class Sprinkle:
    def __init__(self, A, extras, every):
        self.A = A; self.ex = list(extras); self.every = every; self.n = 0
    def __call__(self, t):
        self.A(t); self.n += 1
        if self.ex and self.n % self.every == 0: self.ex.pop(0)()
    def label(self, b='L'): return self.A.label(b)
    def flush(self):
        while self.ex: self.ex.pop(0)()

def SR(d): return f's[{d}:{d+3}]'
def srd(A, d, p, nbytes):
    A(f's_mov_b32 s{d}, s{p}')
    A(f's_and_b32 s{d+1}, s{p+1}, 0xffff')
    A(f's_mov_b32 s{d+2}, {hex(nbytes)}')
    A(f's_mov_b32 s{d+3}, 0x00020000')

def if_s(A, cond, body, name='if'):
    L = A.label(name)
    inv = {'eq': 'lg', 'lg': 'eq', 'lt': 'ge', 'ge': 'lt', 'gt': 'le', 'le': 'gt'}[cond[0]]
    A(f's_cmp_{inv}_u32 {cond[1]}, {cond[2]}'); A(f's_cbranch_scc1 {L}')
    body()
    A(f'{L}:')

def pipeline(A, blocks):
    n = len(blocks)
    b0 = blocks[0]
    if b0.get('pre'): b0['pre']()
    for r in b0['reads']: A(r)
    for x in b0.get('extra', []): x()
    for i in range(n):
        if blocks[i].get('start'): blocks[i]['start']()
        else: A('s_waitcnt lgkmcnt(0)')
        nxt = blocks[i+1] if i+1 < n else None
        fill = []; ex = []
        if nxt is not None:
            if nxt.get('pre'): nxt['pre']()
            fill = [(lambda r=r: A(r)) for r in nxt['reads']]
            ex = list(nxt.get('extra', []))
        m = blocks[i]['mfmas']
        slots = [[] for _ in m]
        k = 0
        for j in range(len(m)):
            for _ in range(2):
                if k < len(fill): slots[j].append(fill[k]); k += 1
        while k < len(fill): slots[-1].append(fill[k]); k += 1
        if ex:
            for e_i, e in enumerate(ex):
                pos = min(len(m)-1, (e_i * len(m)) // len(ex) + (len(m)//len(ex))//2)
                slots[pos].append(e)
        for j, t in enumerate(m):
            A(t)
            for f in slots[j]: f()
        if blocks[i].get('post'): blocks[i]['post']()

def ws_store(A, n, data, vaddr, soff, flags, off=0):
    nm = {1: 'dword', 2: 'dwordx2', 4: 'dwordx4'}[n]
    A(f'buffer_store_{nm} {v(data,n)}, {v(vaddr)}, {SR(SRD_WS)}, {soff} offen offset:{off} {flags}')

def signal(A, soff_sgpr, tmp, lanes=1, stride=0):
    A(f's_mov_b64 s[{S_EX}:{S_EX+1}], exec')
    A(f's_mov_b64 exec, {(1<<lanes)-1}')
    A(f'v_mov_b32 {v(tmp)}, 1')
    if stride: A(f'v_mul_u32_u24 {v(tmp+1)}, {stride}, v0')
    else: A(f'v_mov_b32 {v(tmp+1)}, 0')
    A(f'buffer_atomic_add {v(tmp)}, {v(tmp+1)}, {SR(SRD_WS)}, s{soff_sgpr} offen sc1')
    A(f's_mov_b64 exec, s[{S_EX}:{S_EX+1}]')

def poll(A, srd_, soff, target, tmp, name, cmp='ge'):
    A(f'v_mov_b32 {v(tmp+1)}, 0')
    A(f's_mov_b32 s{S_F}, 0')
    L = A.label(name); LO = A.label(name + 'ok')
    A(f'{L}:')
    A(f'buffer_load_dword {v(tmp)}, {v(tmp+1)}, {SR(srd_)}, {soff} offen sc1')
    A('s_waitcnt vmcnt(0)')
    A(f'v_readfirstlane_b32 s{S_E}, {v(tmp)}')
    A(f's_add_u32 s{S_F}, s{S_F}, 1')
    A(f's_cmp_ge_u32 s{S_E}, {target}')
    A(f's_cbranch_scc1 {LO}')
    A(f's_cmp_lt_u32 s{S_F}, 100000')
    A(f's_cbranch_scc0 {LO}')
    A('s_sleep 1')
    A(f's_branch {L}')
    A(f'{LO}:')

def pollN(A, items, tmp, name):
    n = len(items)
    A(f's_mov_b64 s[{S_EX}:{S_EX+1}], exec')
    A(f'v_mov_b32 {v(tmp+1)}, 0'); A(f'v_mov_b32 {v(tmp+2)}, 0')
    for i, (so, tg) in enumerate(items):
        A(f'v_writelane_b32 {v(tmp+1)}, {so}, {i}')
        A(f's_movk_i32 s{S_E}, {tg}')
        A(f'v_writelane_b32 {v(tmp+2)}, s{S_E}, {i}')
    A(f's_mov_b64 exec, {(1<<n)-1}')
    A(f's_mov_b32 s{S_F}, 0')
    L = A.label(name); LO = A.label(name + 'ok')
    A(f'{L}:')
    A(f'buffer_load_dword {v(tmp)}, {v(tmp+1)}, {SR(SRD_WS)}, 0 offen sc1')
    A('s_waitcnt vmcnt(0)')
    A(f'v_cmp_lt_u32 vcc, {v(tmp)}, {v(tmp+2)}')
    A(f's_add_u32 s{S_F}, s{S_F}, 1')
    A(f's_cmp_lt_u32 s{S_F}, 100000')
    A(f's_cbranch_scc0 {LO}')
    A(f's_cbranch_vccz {LO}')
    A('s_sleep 1')
    A(f's_branch {L}')
    A(f'{LO}:')
    A(f's_mov_b64 exec, s[{S_EX}:{S_EX+1}]')

def gelu_block(A, base, n, tmp, c1v):
    npairs = n // 2
    G = 4
    for p0 in range(0, npairs, G):
        ps = list(range(p0, min(p0 + G, npairs)))
        T = lambda p: tmp + 2 * (p - p0)
        X = lambda p: base + 2 * p
        for p in ps: A(f'v_pk_mul_f32 {v(T(p),2)}, {v(X(p),2)}, {v(X(p),2)}')
        for p in ps: A(f'v_pk_fma_f32 {v(T(p),2)}, {v(T(p),2)}, {s(S_PAIR,2)}, {v(c1v,2)}')
        for p in ps: A(f'v_pk_mul_f32 {v(T(p),2)}, {v(T(p),2)}, {v(X(p),2)}')
        for p in ps:
            A(f'v_exp_f32 {v(T(p))}, {v(T(p))}')
            A(f'v_exp_f32 {v(T(p)+1)}, {v(T(p)+1)}')
        for p in ps: A(f'v_pk_add_f32 {v(T(p),2)}, {v(T(p),2)}, {s(S_PAIR+2,2)}')
        for p in ps:
            A(f'v_rcp_f32 {v(T(p))}, {v(T(p))}')
            A(f'v_rcp_f32 {v(T(p)+1)}, {v(T(p)+1)}')
        for p in ps: A(f'v_pk_mul_f32 {v(X(p),2)}, {v(X(p),2)}, {v(T(p),2)}')
def gelu_consts(A, c1v):
    A(f's_mov_b32 s{S_PAIR}, {hex(f2u(GK*GC))}'); A(f's_mov_b32 s{S_PAIR+1}, {hex(f2u(GK*GC))}')
    A(f's_mov_b32 s{S_PAIR+2}, 1.0'); A(f's_mov_b32 s{S_PAIR+3}, 1.0')
    A(f'v_mov_b32 {v(c1v)}, {hex(f2u(GK))}'); A(f'v_mov_b32 {v(c1v+1)}, {hex(f2u(GK))}')
def phi_block(A, base, n, tmp):
    npairs = n // 2
    G = 4
    for p0 in range(0, npairs, G):
        ps = list(range(p0, min(p0 + G, npairs)))
        T = lambda p: tmp + 2 * (p - p0)
        X = lambda p: base + 2 * p
        for p in ps: A(f'v_pk_mul_f32 {v(T(p),2)}, {v(X(p),2)}, {s(S_PAIR,2)}')
        for p in ps:
            A(f'v_exp_f32 {v(T(p))}, {v(T(p))} clamp')
            A(f'v_exp_f32 {v(T(p)+1)}, {v(T(p)+1)} clamp')
        for p in ps:
            A(f'v_max_f32 {v(X(p))}, 0, {v(X(p))}')
            A(f'v_max_f32 {v(X(p)+1)}, 0, {v(X(p)+1)}')
        for p in ps: A(f'v_pk_add_f32 {v(T(p),2)}, {v(T(p),2)}, {s(S_PAIR+2,2)}')
        for p in ps: A(f'v_pk_add_f32 {v(X(p),2)}, {v(X(p),2)}, {v(T(p),2)}')
def phi_consts(A):
    A(f's_mov_b32 s{S_PAIR}, {hex(f2u(LOG2E))}'); A(f's_mov_b32 s{S_PAIR+1}, {hex(f2u(LOG2E))}')
    A(f's_mov_b32 s{S_PAIR+2}, {hex(f2u(1e-6))}'); A(f's_mov_b32 s{S_PAIR+3}, {hex(f2u(1e-6))}')

V_ACC0 = 4; V_ACC1 = 36; V_BF = 60
V_XD = 92; V_B0D = 94; V_B1D = 96; V_WD = 98
V_XR = 100; V_B0R = 102; V_B1R = 106; V_TA = 109; V_T = 115
V_FLAG = 123; V_ID = 124
def XF(tb2, ks): return (tb2 * 16 + ks) * 4

def p1_x_addr(A):
    T0, T1, T2, T3 = V_T, V_T+1, V_T+2, V_T+3
    A(f'v_lshrrev_b32 {v(T0)}, 3, v0'); A(f'v_and_b32 {v(T1)}, 7, v0')
    A(f'v_lshrrev_b32 {v(T2)}, 4, v0'); A(f'v_and_b32 {v(T3)}, 15, v0')
    A(f's_lshl_b32 s{S_A}, s9, 17'); A(f's_lshl_b32 s{S_B}, s6, 14'); A(f's_add_u32 s{S_A}, s{S_A}, s{S_B}')
    A(f'v_xor_b32 {v(V_XD)}, {v(T1)}, {v(T2)}')
    A(f'v_lshlrev_b32 {v(V_XD)}, 4, {v(V_XD)}')
    A(f'v_lshl_add_u32 {v(V_XD)}, {v(T0)}, 10, {v(V_XD)}')
    A(f'v_add_u32 {v(V_XD)}, s{S_A}, {v(V_XD)}')
    A(f'v_xor_b32 {v(V_XD+1)}, 64, {v(V_XD)}')
    A(f'v_add_u32 {v(V_XD+1)}, {8192-1024}, {v(V_XD+1)}')

def p1_b_dma_addr(A, typ):
    T0, T1, T2, T3, T4, T5 = V_T, V_T+1, V_T+2, V_T+3, V_T+4, V_T+5
    A(f's_and_b32 s{S_C}, s6, 1'); A(f's_lshl_b32 s{S_C}, s{S_C}, 2')
    A(f'v_lshrrev_b32 {v(T4)}, 1, {v(T3)}')
    A(f'v_xor_b32 {v(T4)}, {v(T4)}, {v(T2)}')
    A(f'v_xor_b32 {v(T4)}, s{S_C}, {v(T4)}')
    A(f'v_and_b32 {v(T5)}, 1, v0')
    if typ == 'qkv':
        A(f'v_lshlrev_b32 {v(V_B0D)}, 5, {v(T4)}')
        A(f'v_lshl_add_u32 {v(V_B0D)}, {v(T5)}, 4, {v(V_B0D)}')
        A(f'v_lshrrev_b32 {v(T4)}, 2, {v(T4)}')
        A(f'v_mad_u32_u24 {v(V_B0D)}, {v(T4)}, s{S_K3}, {v(V_B0D)}')
        A(f'v_mad_u32_u24 {v(V_B0D)}, {v(T2)}, s{S_K4}, {v(V_B0D)}')
        A(f's_mul_i32 s{S_B}, s6, {8*3072}')
        A(f's_lshl_b32 s{S_D}, s10, 7')
        A(f's_add_u32 s{S_B}, s{S_B}, s{S_D}')
        A(f's_add_u32 s{S_D}, s{S_B}, 1024')
        A(f'v_add_u32 {v(V_B0D)}, s{S_D}, {v(V_B0D)}')
        A(f'v_add_u32 {v(V_B0D+1)}, {4*3072-1024}, {v(V_B0D)}')
    else:
        A(f'v_lshlrev_b32 {v(T4)}, 5, {v(T4)}')
        A(f'v_lshl_add_u32 {v(T4)}, {v(T5)}, 4, {v(T4)}')
        A(f's_mul_i32 s{S_B}, s6, {8*2752}')
        A(f'v_mul_u32_u24 {v(T5)}, 2752, {v(T2)}')
        for (sc, VD) in ((11, V_B0D), (12, V_B1D)):
            A(f's_add_u32 s{S_D}, s{S_B}, s{sc}')
            A(f'v_add_u32 {v(VD)}, s{S_D}, {v(T5)}')
            A(f'v_add_u32 {v(VD+1)}, {4*2752}, {v(VD)}')
            A(f'v_and_b32 {v(VD)}, 0xffffff80, {v(VD)}')
            A(f'v_and_b32 {v(VD+1)}, 0xffffff80, {v(VD+1)}')
            A(f'v_add_u32 {v(VD)}, {v(VD)}, {v(T4)}')
            A(f'v_add_u32 {v(VD+1)}, {v(VD+1)}, {v(T4)}')
            A(f'v_subrev_u32 {v(VD+1)}, 1024, {v(VD+1)}')

def p1_q_dma_addr(A):
    T0, T1, T2, T3, T4, T5 = V_T, V_T+1, V_T+2, V_T+3, V_T+4, V_T+5
    A(f's_and_b32 s{S_C}, s6, 1'); A(f's_lshl_b32 s{S_C}, s{S_C}, 1')
    A(f'v_lshrrev_b32 {v(T4)}, 1, {v(T1)}')
    A(f'v_and_b32 {v(V_B1D)}, 1, {v(T2)}')
    A(f'v_xor_b32 {v(T4)}, {v(T4)}, {v(V_B1D)}')
    A(f'v_xor_b32 {v(T4)}, s{S_C}, {v(T4)}')
    A(f'v_lshlrev_b32 {v(T4)}, 5, {v(T4)}')
    A(f'v_and_b32 {v(T5)}, 1, v0')
    A(f'v_lshl_add_u32 {v(T4)}, {v(T5)}, 4, {v(T4)}')
    A(f'v_mad_u32_u24 {v(T4)}, {v(T0)}, s{S_K4}, {v(T4)}')
    A(f's_mul_i32 s{S_B}, s6, {8*3072}'); A(f's_lshl_b32 s{S_D}, s10, 7'); A(f's_add_u32 s{S_B}, s{S_B}, s{S_D}')
    A(f'v_add_u32 {v(V_B1D)}, s{S_B}, {v(T4)}')

def w_dma_addr(A, WD, T):
    A(f'v_lshrrev_b32 {v(T)}, 4, v0'); A(f'v_and_b32 {v(T+1)}, 15, v0')
    A(f's_and_b32 s{S_A}, s6, 1'); A(f's_lshl_b32 s{S_A}, s{S_A}, 3')
    A(f'v_xor_b32 {v(T+2)}, {v(T+1)}, {v(T)}')
    A(f'v_xor_b32 {v(T+2)}, s{S_A}, {v(T+2)}')
    A(f'v_lshlrev_b32 {v(T+2)}, 4, {v(T+2)}')
    A(f'v_lshl_add_u32 {v(T+2)}, {v(T)}, 12, {v(T+2)}')
    A(f's_lshl_b32 s{S_A}, s{S_T2}, 18'); A(f's_lshl_b32 s{S_B}, s6, 15'); A(f's_add_u32 s{S_A}, s{S_A}, s{S_B}')
    A(f'v_add_u32 {v(WD)}, s{S_A}, {v(T+2)}')
    A(f'v_xor_b32 {v(WD+1)}, 64, {v(WD)}')
    A(f'v_add_u32 {v(WD+1)}, {4*4096-1024}, {v(WD+1)}')

def w_dma_addr4(A, WD, T):
    A(f'v_lshrrev_b32 {v(T)}, 4, v0'); A(f'v_and_b32 {v(T+1)}, 15, v0')
    A(f'v_xor_b32 {v(T+2)}, {v(T+1)}, {v(T)}')
    A(f'v_lshlrev_b32 {v(T+2)}, 4, {v(T+2)}')
    A(f'v_lshl_add_u32 {v(T+2)}, {v(T)}, 12, {v(T+2)}')
    A(f's_lshl_b32 s{S_A}, s{S_T2}, 18'); A(f's_lshl_b32 s{S_B}, s7, 16'); A(f's_add_u32 s{S_A}, s{S_A}, s{S_B}')
    A(f'v_add_u32 {v(WD)}, s{S_A}, {v(T+2)}')
    for e in range(1, 4):
        A(f'v_xor_b32 {v(WD+e)}, {64*e}, {v(WD)}')
        A(f'v_add_u32 {v(WD+e)}, {e*(4*4096-1024)}, {v(WD+e)}')

def p1_read_addr(A, typ):
    T0, T1, T2, T3, T4, T5 = V_T, V_T+1, V_T+2, V_T+3, V_T+4, V_T+5
    A(f'v_lshrrev_b32 {v(T4)}, 1, {v(T3)}')
    A(f'v_xor_b32 {v(T4)}, {v(T4)}, {v(T2)}')
    A(f'v_lshlrev_b32 {v(T4)}, 4, {v(T4)}')
    A(f'v_lshl_add_u32 {v(T4)}, {v(T3)}, 7, {v(T4)}')
    A(f's_lshl_b32 s{S_B}, s7, 12')
    A(f'v_add_u32 {v(V_XR)}, s{S_B}, {v(T4)}')
    A(f'v_xor_b32 {v(V_XR+1)}, 64, {v(V_XR)}')
    RI, KEY, INR = V_TA, V_TA+1, V_TA+2
    A(f'v_lshrrev_b32 {v(RI)}, 2, {v(T3)}')
    A(f'v_and_b32 {v(KEY)}, 1, {v(T2)}')
    A(f'v_lshl_or_b32 {v(KEY)}, {v(KEY)}, 2, {v(RI)}')
    A(f'v_and_b32 {v(INR)}, 3, {v(T3)}')
    A(f'v_lshlrev_b32 {v(INR)}, 3, {v(INR)}')
    A(f'v_lshl_add_u32 {v(RI)}, {v(T2)}, 3, {v(RI)}')
    if typ == 'qkv':
        A(f'v_lshl_add_u32 {v(T5)}, {v(RI)}, 8, {v(INR)}')
        A(f's_lshl_b32 s{S_B}, s8, 1')
        A(f'v_xor_b32 {v(T4)}, s{S_B}, {v(KEY)}')
        for bi in range(4):
            x = [0, 1, 4, 5][bi]
            if x: A(f'v_xor_b32 {v(V_B0R+bi)}, {x}, {v(T4)}')
            else: A(f'v_mov_b32 {v(V_B0R+bi)}, {v(T4)}')
            A(f'v_lshl_add_u32 {v(V_B0R+bi)}, {v(V_B0R+bi)}, 5, {v(T5)}')
        A(f'v_lshrrev_b32 {v(T5)}, 3, {v(T3)}')
        A(f'v_and_b32 {v(T4)}, 1, {v(T2)}')
        A(f'v_lshl_or_b32 {v(T5)}, {v(T4)}, 1, {v(T5)}')
        A(f'v_xor_b32 {v(T5)}, s{S_B}, {v(T5)}')
        A(f'v_lshl_add_u32 {v(T4)}, {v(RI)}, 7, {v(INR)}')
        A(f'v_lshl_add_u32 {v(V_B1R)}, {v(T5)}, 5, {v(T4)}')
        A(f'v_xor_b32 {v(V_B1R+1)}, 32, {v(V_B1R)}')
    else:
        A(f'v_lshl_add_u32 {v(T1)}, {v(RI)}, 8, {v(INR)}')
        A(f'v_mul_u32_u24 {v(T0)}, 2752, {v(RI)}')
        A(f's_mul_i32 s{S_B}, s8, 3')
        for (sc, VR) in ((11, V_B0R), (12, V_B1R)):
            A(f'v_add_u32 {v(T4)}, s{sc}, {v(T0)}')
            A(f'v_bfe_u32 {v(T4)}, {v(T4)}, 5, 2')
            A(f'v_add_u32 {v(T4)}, s{S_B}, {v(T4)}')
            for bi in range(3):
                A(f'v_add_u32 {v(T5)}, {bi}, {v(T4)}')
                A(f'v_and_b32 {v(T5)}, 7, {v(T5)}')
                A(f'v_xor_b32 {v(T5)}, {v(T5)}, {v(KEY)}')
                A(f'v_lshl_add_u32 {v(VR+bi)}, {v(T5)}, 5, {v(T1)}')

W_ORDER = [0,4,8,12, 1,5,9,13, 2,6,10,14, 3,7,11,15]
def w_issue_list(A, vm, k, slot, tag, form=2):
    kq, r = k % 4, k // 4
    out = []
    for e in range(form):
        def f(e=e):
            def body():
                if form == 2: A(f's_add_u32 m0, s{S_LW}, {slot*UNIT}')
                else: A(f's_lshl_b32 m0, s7, 12'); A(f's_add_u32 m0, m0, {slot*UNIT}')
                A(f's_add_u32 s{S_SOFF}, s{S_R0}, {r}'); A(f's_and_b32 s{S_SOFF}, s{S_SOFF}, 3'); A(f's_lshl_b32 s{S_SOFF}, s{S_SOFF}, 8')
                if kq: A(f's_add_u32 s{S_SOFF}, s{S_SOFF}, {1024*kq}')
                A(f'buffer_load_dwordx4 {v(V_WD+e)}, {SR(SRD_WSP)}, s{S_SOFF} offen offset:{e*1024} {CFG["wspf"]} lds')
            if form == 2:
                body(); vm.issue(tag)
            else:
                if_s(A, ('lg', 's8', 0), body); vm.issue(tag, who=(1,))
        out.append(f)
    return out
def w_issue_ch1(A, vm, ks):
    def body():
        for k in ks:
            kq, r = k % 4, k // 4
            A(f's_lshl_b32 m0, s7, 12'); A(f's_add_u32 m0, m0, {(k % 8)*UNIT}')
            A(f's_add_u32 s{S_SOFF}, s{S_R0}, {r}'); A(f's_and_b32 s{S_SOFF}, s{S_SOFF}, 3'); A(f's_lshl_b32 s{S_SOFF}, s{S_SOFF}, 8')
            if kq: A(f's_add_u32 s{S_SOFF}, s{S_SOFF}, {1024*kq}')
            for e in range(4):
                A(f'buffer_load_dwordx4 {v(V_WD+e)}, {SR(SRD_WSP)}, s{S_SOFF} offen offset:{e*1024} {CFG["wspf"]} lds')
            vm.issue(('w', k), 4, who=(1,))
    if_s(A, ('lg', 's8', 0), body)

def p1_units():
    U = []
    for c in range(8): U.append(('x', c)); U.append(('b0', c))
    for c in range(8): U.append(('b1', c))
    for k in range(16): U.append(('w', k))
    return U
def unit_addr(n): return (n % NU) * UNIT

def p1_issue_list(A, typ, vm, n, U):
    kind, c = U[n]
    base = unit_addr(n)
    if kind == 'w': return w_issue_list(A, vm, c, n % NU, n, form=(2 if typ == 'qkv' else 4))
    rowbytes = 3072 if typ == 'qkv' else 2752
    if kind == 'x': VD, srd_, so, step, cnt_, lw, fl = V_XD, SRD_X, S_XO, 128, 2, S_LW, CFG['xf']
    elif kind == 'b0': VD, srd_, so, step, cnt_, lw, fl = V_B0D, SRD_WB, S_B0O, 64*rowbytes, 2, S_LW, CFG['wf']
    elif typ == 'win': VD, srd_, so, step, cnt_, lw, fl = V_B1D, SRD_WB, S_B1O, 64*rowbytes, 2, S_LW, CFG['wf']
    else: VD, srd_, so, step, cnt_, lw, fl = V_B1D, SRD_WB, S_B1O, 64*rowbytes, 1, S_LW1, CFG['wf']
    out = []
    for e in range(cnt_):
        def f(e=e):
            A(f's_add_u32 m0, s{lw}, {base}')
            A('s_nop 0')
            A(f'buffer_load_dwordx4 {v(VD+e)}, {SR(srd_)}, s{so} offen offset:{e*1024} {fl} lds')
            if e == cnt_ - 1:
                A(f's_add_u32 s{so}, s{so}, {step}')
                A(f's_cmp_eq_u32 s{so}, {8*step}')
                A(f's_cselect_b32 s{so}, 0, s{so}')
            vm.issue(n)
        out.append(f)
    return out

def p1_blocks(A, typ, grp, vm, U, state, sync_at, limit):
    nblk = {('qkv',0):4, ('qkv',1):2, ('win',0):3, ('win',1):3}[(typ, grp)]
    rowb = 128 if (typ, grp) == ('qkv', 1) else 256
    VR = V_B0R if grp == 0 else V_B1R
    ACC = V_ACC0 if grp == 0 else V_ACC1
    swapped = not (typ == 'qkv' and grp == 0)
    blocks = []
    pend = []
    for c in range(8):
        need = [2*c, 2*c+1] if grp == 0 else [16 + c]
        bbase = unit_addr(need[-1]); xb = unit_addr(need[0])
        hiB = (bbase + 16384 > 65536); hiX = (xb + 16384 > 65536)
        for kk in range(2):
            ks = 2*c + kk
            blk = dict(reads=[], mfmas=[], extra=[])
            if kk == 0:
                def pre(c=c, bbase=bbase, xb=xb, hiB=hiB, hiX=hiX):
                    if c in sync_at:
                        tag = (16 + sync_at[c]) if grp else (2*sync_at[c] + 1)
                        vm.wait(A, tag, state.get('also_mark', {}).get((grp, c)))
                        A('s_barrier')
                        if grp == 0 and c < 4 and CFG.get('finestamp'): stamp(A, f'sy{c}')
                    if (grp, c) in state.get('hooks', {}): state['hooks'][(grp, c)]()
                    if hiB:
                        for bi in range(nblk): A(f'v_add_u32 {v(V_TA+bi)}, {bbase}, {v(VR+bi)}')
                    if grp == 0 and hiX:
                        for k in range(2): A(f'v_add_u32 {v(V_TA+4+k)}, {xb}, {v(V_XR+k)}')
                blk['pre'] = pre
                if c in sync_at:
                    todo = []
                    while state['issued'] < limit and state['issued'] - NU <= need[0] - 1 and len(todo) < state['maxper']:
                        todo.append(state['issued']); state['issued'] += 1
                    pend = [('u', n) for n in todo]
                h = (len(pend) + 1) // 2
                blk['units'] = [p[1] for p in pend[:h]]; pend = pend[h:]
            else:
                blk['units'] = [p[1] for p in pend]; pend = []
            baddr = [((V_TA+bi, 0) if hiB else (VR+bi, bbase)) for bi in range(nblk)]
            if grp == 0:
                xa = (V_TA+4+kk, 0) if hiX else (V_XR+kk, xb)
                for tb2 in range(2):
                    blk['reads'].append(f'ds_read_b128 {a(XF(tb2,ks),4)}, {v(xa[0])} offset:{xa[1] + tb2*2048}')
            for bi in range(nblk):
                r0 = V_BF + kk*16 + bi*4
                off = baddr[bi][1] + kk*32*rowb
                blk['reads'].append(f'ds_read_b64_tr_b16 {v(r0,2)}, {v(baddr[bi][0])} offset:{off}')
                blk['reads'].append(f'ds_read_b64_tr_b16 {v(r0+2,2)}, {v(baddr[bi][0])} offset:{off + 4*rowb}')
            for bi in range(nblk):
                for tb2 in range(2):
                    acc = ACC + (bi*2 + tb2)*4
                    cin = '0' if ks == 0 else v(acc,4)
                    xf = a(XF(tb2,ks),4); bf = v(V_BF + kk*16 + bi*4, 4)
                    blk['mfmas'].append(f'v_mfma_f32_16x16x32_bf16 {v(acc,4)}, {bf}, {xf}, {cin}' if swapped
                                        else f'v_mfma_f32_16x16x32_bf16 {v(acc,4)}, {xf}, {bf}, {cin}')
            blocks.append(blk)
    for blk in blocks:
        ex = []
        for n in blk['units']: ex += p1_issue_list(A, typ, vm, n, U)
        blk['extra'] = ex
    return blocks

def p1_qkv_epi0(A, vm, extras):
    SF = CFG['sf']
    phi_consts(A)
    SP = Sprinkle(A, extras, 4)
    phi_block(SP, V_ACC0, 16, V_BF)
    SP.flush()
    PK = V_BF + 8; PV = V_BF + 16; ONE = V_BF + 24; D = V_ACC1
    for hh in range(2):
        for tb2 in range(2):
            k = V_ACC0 + (hh*2+tb2)*4; vv = V_ACC0 + ((2+hh)*2+tb2)*4
            A(f'v_cvt_pk_bf16_f32 {v(PK+hh*4+tb2*2)}, {v(k)}, {v(k+1)}')
            A(f'v_cvt_pk_bf16_f32 {v(PK+hh*4+tb2*2+1)}, {v(k+2)}, {v(k+3)}')
            A(f'v_cvt_pk_bf16_f32 {v(PV+hh*4+tb2*2)}, {v(vv)}, {v(vv+1)}')
            A(f'v_cvt_pk_bf16_f32 {v(PV+hh*4+tb2*2+1)}, {v(vv+2)}, {v(vv+3)}')
    for i in range(4): A(f'v_mov_b32 {v(ONE+i)}, 0x3f803f80')
    for hh in range(2):
        A(f'v_mfma_f32_16x16x32_bf16 {v(D+hh*8,4)}, {v(PK+hh*4,4)}, {v(PV+hh*4,4)}, 0')
        A(f'v_mfma_f32_16x16x32_bf16 {v(D+hh*8+4,4)}, {v(PK+hh*4,4)}, {v(ONE,4)}, 0')
    T = V_T
    A(f's_lshl_b32 s{S_A}, s8, 13'); A(f's_lshl_b32 s{S_B}, s7, 10')
    A(f's_add_u32 s{S_A}, s{S_A}, s{S_B}'); A(f's_add_u32 s{S_A}, s{S_A}, {SCR}')
    A(f'v_lshlrev_b32 {v(T)}, 4, v0')
    A(f'v_add_u32 {v(T+1)}, s{S_A}, {v(T)}')
    for hh in range(2):
        A(f'ds_write_b128 {v(T+1)}, {v(D+hh*8,4)} offset:{hh*4096}')
        A(f'ds_write_b128 {v(T+1)}, {v(D+hh*8+4,4)} offset:{16384 + hh*4096}')
    A('s_waitcnt lgkmcnt(0)')

def p1_qkv_epi0b(A, vm):
    SF = CFG['sf']
    T = V_T
    A(f's_lshl_b32 s{S_A}, s7, 12'); A(f's_lshl_b32 s{S_B}, s8, 14'); A(f's_add_u32 s{S_A}, s{S_A}, s{S_B}')
    A(f's_add_u32 s{S_A}, s{S_A}, {SCR}')
    A(f'v_lshlrev_b32 {v(T)}, 4, v0')
    A(f'v_add_u32 {v(T+1)}, s{S_A}, {v(T)}')
    R = V_ACC0
    for i in range(4): A(f'ds_read_b128 {v(R+4*i,4)}, {v(T+1)} offset:{i*1024}')
    A(f's_lshl_b32 s{S_A}, s9, 5'); A(f's_lshl_b32 s{S_C}, s10, 2'); A(f's_add_u32 s{S_A}, s{S_A}, s{S_C}'); A(f's_add_u32 s{S_A}, s{S_A}, s7')
    A('s_waitcnt lgkmcnt(0)')
    for h in range(2):
        A(f'v_pk_add_f32 {v(R+2*h,2)}, {v(R+2*h,2)}, {v(R+4+2*h,2)}')
        A(f'v_pk_add_f32 {v(R+8+2*h,2)}, {v(R+8+2*h,2)}, {v(R+12+2*h,2)}')
    for h in range(2): A(f'v_pk_add_f32 {v(R+2*h,2)}, {v(R+2*h,2)}, {v(R+8+2*h,2)}')
    LZ = A.label('kz'); LJ = A.label('kzj')
    A('s_cmp_lg_u32 s8, 0'); A(f's_cbranch_scc1 {LZ}')
    A(f's_lshl_b32 s{S_A}, s{S_A}, 10'); A(f's_add_u32 s{S_A}, s{S_A}, {KVP}')
    ws_store(A, 4, R, T, f's{S_A}', SF)
    A(f's_branch {LJ}')
    A(f'{LZ}:')
    A(f's_lshl_b32 s{S_A}, s{S_A}, 6'); A(f's_add_u32 s{S_A}, s{S_A}, {KZ}')
    A(f'v_and_b32 {v(T+2)}, 0x30, v0')
    A(f's_mov_b64 s[{S_EX}:{S_EX+1}], exec')
    A(f's_mov_b32 exec_lo, 0x00010001'); A(f's_mov_b32 exec_hi, 0x00010001')
    ws_store(A, 4, R, T+2, f's{S_A}', SF)
    A(f's_mov_b64 exec, s[{S_EX}:{S_EX+1}]')
    A(f'{LJ}:')
    vm.issue('kvp')

def p1_qkv_epi1(A, vm):
    SF = CFG['sf']
    T = V_T
    phi_consts(A)
    phi_block(A, V_ACC1, 16, V_BF + 8)
    A(f'v_lshlrev_b32 {v(T)}, 4, v0')
    A(f's_lshl_b32 s{S_A}, s10, 2'); A(f's_lshl_b32 s{S_B}, s8, 1'); A(f's_add_u32 s{S_A}, s{S_A}, s{S_B}')
    A(f's_lshl_b32 s{S_A}, s{S_A}, 6')
    A(f's_lshl_b32 s{S_B}, s9, 2'); A(f's_add_u32 s{S_A}, s{S_A}, s{S_B}'); A(f's_add_u32 s{S_A}, s{S_A}, s7')
    A(f's_lshl_b32 s{S_A}, s{S_A}, 10'); A(f's_add_u32 s{S_A}, s{S_A}, {QO}')
    for hh in range(2):
        for tb2 in range(2):
            q = V_ACC1 + (hh*2+tb2)*4
            P = V_BF + (hh*2+tb2)*2
            A(f'v_cvt_pk_bf16_f32 {v(P)}, {v(q)}, {v(q+1)}')
            A(f'v_cvt_pk_bf16_f32 {v(P+1)}, {v(q+2)}, {v(q+3)}')
        A(f's_add_u32 s{S_B}, s{S_A}, {hh*65536}')
        ws_store(A, 4, V_BF + hh*4, T, f's{S_B}', SF)
    vm.issue('q', 2)

def p1_win_epi0(A, vm, extras):
    c1v = V_BF + 30
    gelu_consts(A, c1v)
    SP = Sprinkle(A, extras, 8)
    gelu_block(SP, V_ACC0, 24, V_BF, c1v)
    SP.flush()
    stamp(A, 'e0gelu')
    ST = V_BF + 8
    P1 = [ST, ST+2]; P2 = [ST+4, ST+6]
    for i in range(8): A(f'v_mov_b32 {v(ST+i)}, 0')
    for bi in range(3):
        def body(bi=bi):
            for tb2 in range(2):
                z = V_ACC0 + (bi*2+tb2)*4
                for h in range(2):
                    A(f'v_pk_add_f32 {v(P1[tb2],2)}, {v(P1[tb2],2)}, {v(z+2*h,2)}')
                    A(f'v_pk_fma_f32 {v(P2[tb2],2)}, {v(z+2*h,2)}, {v(z+2*h,2)}, {v(P2[tb2],2)}')
        if_s(A, ('gt', 's13', bi), body)
    a0, a1, b0, b1 = ST+8, ST+9, ST+10, ST+11
    A(f'v_add_f32 {v(a0)}, {v(P1[0])}, {v(P1[0]+1)}'); A(f'v_add_f32 {v(a1)}, {v(P1[1])}, {v(P1[1]+1)}')
    A(f'v_add_f32 {v(b0)}, {v(P2[0])}, {v(P2[0]+1)}'); A(f'v_add_f32 {v(b1)}, {v(P2[1])}, {v(P2[1]+1)}')
    A(f'v_permlane32_swap_b32 {v(a0)}, {v(a1)}'); A(f'v_permlane32_swap_b32 {v(b0)}, {v(b1)}')
    A(f'v_add_f32 {v(a0)}, {v(a0)}, {v(a1)}'); A(f'v_add_f32 {v(b0)}, {v(b0)}, {v(b1)}')
    A(f'v_permlane16_swap_b32 {v(a0)}, {v(b0)}')
    A(f'v_add_f32 {v(a0)}, {v(a0)}, {v(b0)}')
    T = V_T
    A(f'v_lshlrev_b32 {v(T)}, 2, v0')
    A(f's_lshl_b32 s{S_A}, s7, 8'); A(f's_add_u32 s{S_A}, s{S_A}, {SCR}')
    A(f'v_add_u32 {v(T+1)}, s{S_A}, {v(T)}')
    A(f'v_mov_b32 {v(T+6)}, {v(a0)}')
    def w1():
        A(f'ds_write_b32 {v(T+1)}, {v(a0)}')
        A('s_waitcnt lgkmcnt(0)')
    if_s(A, ('lg', 's8', 0), w1)

def p1_win_epi0b(A, vm):
    T = V_T
    def body():
        A(f'ds_read_b32 {v(T+2)}, {v(T+1)}')
        A(f's_lshl_b32 s{S_A}, s9, 2'); A(f's_add_u32 s{S_A}, s{S_A}, s7'); A(f's_lshl_b32 s{S_A}, s{S_A}, 3')
        A(f's_add_u32 s{S_A}, s{S_A}, s14'); A(f's_lshl_b32 s{S_A}, s{S_A}, 8'); A(f's_add_u32 s{S_A}, s{S_A}, {STATS}')
        A('s_waitcnt lgkmcnt(0)')
        A(f'v_add_f32 {v(T+2)}, {v(T+2)}, {v(T+6)}')
        ws_store(A, 1, T+2, T, f's{S_A}', 'sc1')
    if_s(A, ('eq', 's8', 0), body)

def flag_load(A):
    def body():
        A(f'v_mov_b32 {v(V_FLAG+0)}, 0')
        A(f'buffer_load_dword {v(V_FLAG)}, {v(V_FLAG)}, {SR(SRD_DBG)}, 0 offen sc1')
    if_s(A, ('eq', 's6', 0), body)
def flag_check(A, tmp):
    L = A.label('fl')
    A(f'v_readfirstlane_b32 s{S_E}, {v(V_FLAG)}')
    A(f's_cmp_lg_u32 s{S_E}, 0'); A(f's_cbranch_scc1 {L}')
    poll(A, SRD_DBG, '0', 1, tmp, 'flp')
    A(f'{L}:')

SREC = [92, 93, 94, 95, 102, 103, 104, 105]
def win_stats_poll_issue(A, vm):
    def body():
        A(f's_lshl_b32 s{S_POLL}, s9, 8'); A(f's_add_u32 s{S_POLL}, s{S_POLL}, {cnt(C_STATS)}')
        A('v_mov_b32 v3, 0')
        A(f's_mov_b32 s{S_K4}, 0')
        A(f'buffer_load_dword v2, v3, {SR(SRD_WS)}, s{S_POLL} offen sc1')
    if_s(A, ('eq', 's8', 0), body)
def stats_rec_loads(A):
    A('v_lshlrev_b32 v3, 2, v0')
    A(f's_lshl_b32 s{S_A}, s9, 2'); A(f's_add_u32 s{S_A}, s{S_A}, s7'); A(f's_lshl_b32 s{S_A}, s{S_A}, 11')
    A(f's_add_u32 s{S_A}, s{S_A}, {STATS}')
    for p in range(8):
        A(f'buffer_load_dword {v(SREC[p])}, v3, {SR(SRD_WS)}, s{S_A} offen offset:{p*256} sc1')
def win_stats_load(A, vm, again):
    def body():
        L = A.label('sr'); LN = A.label('srn')
        if not again: pass
        A(f's_cmp_lg_u32 s{S_K4}, 0'); A(f's_cbranch_scc1 {L}')
        A('s_waitcnt vmcnt(0)')
        A(f'v_readfirstlane_b32 s{S_E}, v2')
        A(f's_cmp_lt_u32 s{S_E}, 8'); A(f's_cbranch_scc1 {LN}')
        stats_rec_loads(A)
        A(f's_mov_b32 s{S_K4}, 1')
        A(f's_branch {L}')
        A(f'{LN}:')
        if again:
            A('v_mov_b32 v3, 0')
            A(f'buffer_load_dword v2, v3, {SR(SRD_WS)}, s{S_POLL} offen sc1')
        A(f'{L}:')
    if_s(A, ('eq', 's8', 0), body)

def win_tail(A, vm):
    SF = CFG['sf']
    T = V_T + 1
    ST = V_BF
    ch0 = lambda body: if_s(A, ('eq', 's8', 0), body)
    ch1 = lambda body: if_s(A, ('lg', 's8', 0), body)
    p1_gate(A)
    win_stats_load(A, vm, False)
    A(f'v_lshlrev_b32 {v(T)}, 4, v0')
    A(f's_lshl_b32 s{S_A}, s7, 10'); A(f's_add_u32 s{S_A}, s{S_A}, {SCR}')
    A(f'v_add_u32 {v(T+1)}, s{S_A}, {v(T)}')
    def st():
        L = A.label('sp')
        A(f's_cmp_lg_u32 s{S_K4}, 0'); A(f's_cbranch_scc1 {L}')
        poll(A, SRD_WS, f's{S_POLL}', 8, 2, 'pst')
        stats_rec_loads(A)
        A(f'{L}:')
        A('s_waitcnt vmcnt(0)')
        R = SREC
        for (x, y) in ((0,1),(2,3),(4,5),(6,7),(0,2),(4,6),(0,4)):
            A(f'v_add_f32 {v(R[x])}, {v(R[x])}, {v(R[y])}')
        A(f'v_mul_f32 {v(ST)}, {hex(f2u(1.0/688.0))}, {v(R[0])}')
        A(f'v_mov_b32 {v(ST+1)}, {v(ST)}')
        A(f'v_permlane16_swap_b32 {v(ST)}, {v(ST+1)}')
        A(f'v_fma_f32 {v(ST+1)}, -{v(ST)}, {v(ST)}, {v(ST+1)}')
        A(f'v_add_f32 {v(ST+1)}, {hex(f2u(1e-5))}, {v(ST+1)}')
        A(f'v_rsq_f32 {v(ST+1)}, {v(ST+1)}')
        A(f'v_mul_f32 {v(ST)}, {v(ST)}, {v(ST+1)}')
        A(f'v_mov_b32 {v(ST+2)}, {v(ST)}'); A(f'v_mov_b32 {v(ST+3)}, {v(ST+1)}')
        A(f'v_permlane32_swap_b32 {v(ST)}, {v(ST+2)}')
        A(f'v_permlane32_swap_b32 {v(ST+1)}, {v(ST+3)}')
        A(f'ds_write_b128 {v(T+1)}, {v(ST,4)}')
        A('s_waitcnt lgkmcnt(0)')
    ch0(st)
    A(f'v_and_b32 {v(T+3)}, 15, v0'); A(f'v_lshrrev_b32 {v(T+4)}, 4, v0')
    A(f'v_lshlrev_b32 {v(T+4)}, 2, {v(T+4)}')
    A(f'v_sub_u32 {v(T+3)}, {v(T+3)}, {v(T+4)}')
    A(f'v_mov_b32 {v(T+4)}, 0x3f80'); A(f'v_mov_b32 {v(T+5)}, 0x3f800000')
    for half in range(2):
        A(f'v_cmp_eq_u32 vcc, {2*half}, {v(T+3)}')
        A(f'v_cndmask_b32 {v(V_ID+half)}, 0, {v(T+4)}, vcc')
        A(f'v_cmp_eq_u32 vcc, {2*half+1}, {v(T+3)}')
        A(f'v_cndmask_b32 {v(V_ID+half)}, {v(V_ID+half)}, {v(T+5)}, vcc')
    A('s_barrier')
    stamp(A, 'e1bar')
    def rd():
        A(f'ds_read_b128 {v(ST,4)}, {v(T+1)}')
        A('s_waitcnt lgkmcnt(0)')
    ch1(rd)
    RS = [ST+4, ST+6]; MS = [ST+8, ST+10]
    for tb2 in range(2):
        for h in range(2):
            A(f'v_mov_b32 {v(RS[tb2]+h)}, {v(ST+1+2*tb2)}')
            A(f'v_mov_b32 {v(MS[tb2]+h)}, {v(ST+2*tb2)}')
    PK = V_BF + 12
    DD = V_ACC0
    P = V_BF + 16
    for bi in range(3):
        for tb2 in range(2):
            z = V_ACC0 + (bi*2+tb2)*4
            for h in range(2):
                A(f'v_pk_fma_f32 {v(z+2*h,2)}, {v(z+2*h,2)}, {v(RS[tb2],2)}, {v(MS[tb2],2)} neg_lo:[0,0,1] neg_hi:[0,0,1]')
        pk = [V_BF + 12, V_BF + 28][bi % 2]
        for tb2 in range(2):
            z = V_ACC0 + (bi*2+tb2)*4
            A(f'v_cvt_pk_bf16_f32 {v(pk+tb2*2)}, {v(z)}, {v(z+1)}')
            A(f'v_cvt_pk_bf16_f32 {v(pk+tb2*2+1)}, {v(z+2)}, {v(z+3)}')
        for tb2 in range(2):
            z = V_ACC0 + (bi*2+tb2)*4
            A(f'v_mfma_f32_16x16x16_bf16 {v(z,4)}, {v(pk+tb2*2,2)}, {v(V_ID,2)}, 0')
    for bi in range(3):
        for tb2 in range(2):
            z = V_ACC0 + (bi*2+tb2)*4
            A(f'v_cvt_pk_bf16_f32 {v(P+bi*4+tb2*2)}, {v(z)}, {v(z+1)}')
            A(f'v_cvt_pk_bf16_f32 {v(P+bi*4+tb2*2+1)}, {v(z+2)}, {v(z+3)}')
    A(f's_mul_i32 s{S_A}, s7, 3072'); A(f's_add_u32 s{S_A}, s{S_A}, {SCR + 4096}')
    A(f'v_add_u32 {v(T+1)}, s{S_A}, {v(T)}')
    def wr():
        for bi in range(3): A(f'ds_write_b128 {v(T+1)}, {v(P+bi*4,4)} offset:{bi*1024}')
        n1 = vm.counts(24+3)[1]
        A(f's_waitcnt vmcnt({n1}) lgkmcnt(0)')
    ch1(wr)
    A('s_barrier')
    stamp(A, 'e1b2')
    A(f's_lshl_b32 s{S_K3}, s{S_K2}, 6'); A(f's_lshl_b32 s{S_B}, s9, 2'); A(f's_add_u32 s{S_K3}, s{S_K3}, s{S_B}'); A(f's_add_u32 s{S_K3}, s{S_K3}, s7')
    A(f's_lshl_b32 s{S_K3}, s{S_K3}, 10')
    if Z2T: A(f's_add_u32 s{S_K3}, s{S_K3}, {Z2T}')
    PZ = V_ACC0 + 12
    def z1_store():
        A(f's_lshl_b32 s{S_A}, s9, 2'); A(f's_add_u32 s{S_A}, s{S_A}, s7'); A(f's_mul_i32 s{S_A}, s{S_A}, 43')
        A(f's_mul_i32 s{S_B}, s8, 3'); A(f's_add_u32 s{S_A}, s{S_A}, s{S_B}'); A(f's_add_u32 s{S_A}, s{S_A}, s{S_K1}')
        A(f's_lshl_b32 s{S_A}, s{S_A}, 10'); A(f's_add_u32 s{S_A}, s{S_A}, {Z1}')
        for bi in range(3):
            for tb2 in range(2):
                z = V_ACC1 + (bi*2+tb2)*4
                A(f'v_cvt_pk_bf16_f32 {v(PZ+bi*4+tb2*2)}, {v(z)}, {v(z+1)}')
                A(f'v_cvt_pk_bf16_f32 {v(PZ+bi*4+tb2*2+1)}, {v(z+2)}, {v(z+3)}')
        for bi in range(3):
            A(f's_add_u32 s{S_B}, s{S_A}, {bi*1024}')
            A(f's_cmp_gt_u32 s13, {bi}'); A(f's_cselect_b32 s{S_B}, s{S_B}, {WS_USED}')
            ws_store(A, 4, PZ + bi*4, T, f's{S_B}', SF)
    def c0a():
        Q = V_ACC0
        for bi in range(3): A(f'ds_read_b128 {v(Q+bi*4,4)}, {v(T+1)} offset:{bi*1024}')
        for bi in range(3):
            A(f's_add_u32 s{S_B}, s{S_K3}, {bi*65536}')
            A(f's_cmp_gt_u32 s13, {bi}'); A(f's_cselect_b32 s{S_B}, s{S_B}, {WS_USED}')
            ws_store(A, 4, P+bi*4, T, f's{S_B}', SF)
        A('s_waitcnt lgkmcnt(0)')
        for bi in range(3):
            A(f's_add_u32 s{S_B}, s{S_K3}, {(3+bi)*65536}')
            A(f's_cmp_lg_u32 s14, 7'); A(f's_cselect_b32 s{S_B}, s{S_B}, {WS_USED}')
            ws_store(A, 4, Q+bi*4, T, f's{S_B}', SF)
    ch0(c0a)
    w_issue_ch1(A, vm, [6, 7])
    w_read_addr(A, V_T + 3)
    w_consume(A, 0, W_TMP)
    A('s_waitcnt lgkmcnt(0)')
    A('s_barrier')
    stamp(A, 'e1b3')
    def c0b():
        A('s_waitcnt vmcnt(0)')
        A(f's_mov_b64 s[{S_EX}:{S_EX+1}], exec'); A('s_mov_b64 exec, 1')
        A(f'v_mov_b32 v2, {LCNT}'); A('v_mov_b32 v3, 1')
        A('ds_add_rtn_u32 v2, v2, v3')
        A('s_waitcnt lgkmcnt(0)')
        A(f'v_readfirstlane_b32 s{S_E}, v2')
        A(f's_mov_b64 exec, s[{S_EX}:{S_EX+1}]')
        def sig():
            A(f's_lshl_b32 s{S_A}, s14, 8'); A(f's_add_u32 s{S_A}, s{S_A}, {cnt(C_WIN)}')
            signal(A, S_A, 2)
        if_s(A, ('eq', f's{S_E}', 3), sig)
        stamp(A, 'p1sig')
        z1_store()
    ch0(c0b)
    w_issue_ch1(A, vm, range(8, 12))
    def c1b():
        z1_store()
        A('s_waitcnt vmcnt(19)')
    ch1(c1b)
    A('s_barrier')
    w_consume(A, 1, W_TMP)
    A('s_waitcnt lgkmcnt(0)')
    A('s_barrier')
    w_issue_ch1(A, vm, range(12, 16))
    ch1(lambda: A('s_waitcnt vmcnt(16)'))
    A('s_barrier')
    w_consume(A, 2, W_TMP)
    A('s_waitcnt vmcnt(0)')
    A('s_barrier')
    def sigz():
        A(f's_lshl_b32 s{S_A}, s14, 8'); A(f's_add_u32 s{S_A}, s{S_A}, {cnt(C_Z1)}')
        signal(A, S_A, 2)
    if_s(A, ('eq', 's6', 0), sigz)
    w_consume(A, 3, W_TMP)
    A('s_waitcnt lgkmcnt(0)')

def qkv_tail(A, vm, U, state):
    A('s_barrier')
    stamp(A, 'e1bar')
    p1_qkv_epi1(A, vm)
    while state['issued'] < 32:
        for f in p1_issue_list(A, 'qkv', vm, state['issued'], U): f()
        state['issued'] += 1
    w_read_addr(A, V_T)
    vm.wait(A, 24+3)
    A('s_barrier')
    w_consume(A, 0, W_TMP)
    A('s_waitcnt vmcnt(0)')
    A('s_barrier')
    def sig():
        A(f's_lshl_b32 s{S_A}, s10, 8'); A(f's_add_u32 s{S_A}, s{S_A}, {cnt(C_QKV)}')
        signal(A, S_A, V_T+7)
    if_s(A, ('eq', 's6', 0), sig)
    stamp(A, 'p1sig')
    w_consume(A, 1, W_TMP)
    A('s_waitcnt lgkmcnt(0)')
    A('s_barrier')
    vm2 = VM2()
    for k in range(8, 16):
        for f in w_issue_list(A, vm2, k, k % 8, ('w', k)): f()
    vm2.wait(A, ('w', 11))
    A('s_barrier')
    w_consume(A, 2, W_TMP)
    A('s_waitcnt vmcnt(0)')
    A('s_barrier')
    w_consume(A, 3, W_TMP)
    A('s_waitcnt lgkmcnt(0)')

def p1_gate(A):
    SF = CFG['sf']
    T = V_T
    def body():
        srd(A, SRD_M, P_GW, 1024)
        A(f'v_and_b32 {v(T+7)}, 0x30, v0')
        G = V_BF
        ACC = V_ACC0
        for half in range(2):
            for k in range(8):
                A(f's_lshl_b32 s{S_A}, s{S_C0}, 1'); A(f's_add_u32 s{S_A}, s{S_A}, {half*8+k}'); A(f's_and_b32 s{S_A}, s{S_A}, 15'); A(f's_lshl_b32 s{S_A}, s{S_A}, 6')
                A(f'buffer_load_dwordx4 {v(G+4*k,4)}, {v(T+7)}, {SR(SRD_M)}, s{S_A} offen')
            A('s_waitcnt vmcnt(0)')
            for k in range(8):
                ks = half*8 + k
                for tb2 in range(2):
                    acc = ACC + tb2*4
                    cin = '0' if ks == 0 else v(acc,4)
                    A(f'v_mfma_f32_16x16x32_bf16 {v(acc,4)}, {a(XF(tb2,ks),4)}, {v(G+4*k,4)}, {cin}')
        for i in range(8): A(f'v_mul_f32 {v(ACC+i)}, {hex(f2u(-LOG2E))}, {v(ACC+i)}')
        for i in range(8): A(f'v_exp_f32 {v(ACC+i)}, {v(ACC+i)}')
        for i in range(8): A(f'v_add_f32 {v(ACC+i)}, 1.0, {v(ACC+i)}')
        for i in range(8): A(f'v_rcp_f32 {v(ACC+i)}, {v(ACC+i)}')
        A(f's_lshl_b32 s{S_A}, s9, 9'); A(f's_lshl_b32 s{S_B}, s7, 7'); A(f's_add_u32 s{S_A}, s{S_A}, s{S_B}')
        A(f's_add_u32 s{S_A}, s{S_A}, {GATE}')
        A(f's_mov_b64 s[{S_EX}:{S_EX+1}], exec')
        A(f's_mov_b32 exec_lo, 0x00010001'); A(f's_mov_b32 exec_hi, 0x00010001')
        for tb2 in range(2):
            A(f'buffer_store_dwordx4 {v(ACC+4*tb2,4)}, {v(T+7)}, {SR(SRD_WS)}, s{S_A} offen offset:{tb2*64} {SF}')
        A(f's_mov_b64 exec, s[{S_EX}:{S_EX+1}]')
    L = A.label('gate')
    A('s_cmp_lg_u32 s14, 7'); A(f's_cbranch_scc1 {L}')
    A('s_cmp_eq_u32 s8, 0'); A(f's_cbranch_scc1 {L}')
    body()
    A(f'{L}:')

def p1_decode(A):
    A('s_and_b32 s60, s2, 7'); A('s_lshr_b32 s61, s2, 3')
    A('s_and_b32 s62, s60, 1'); A('s_lshl_b32 s62, s62, 3'); A('s_and_b32 s63, s61, 7'); A('s_add_u32 s9, s62, s63')
    A('s_lshr_b32 s62, s60, 1'); A('s_lshl_b32 s62, s62, 2'); A('s_lshr_b32 s63, s61, 3'); A('s_add_u32 s10, s62, s63')
    A('s_and_b32 s62, s61, 7'); A('s_lshr_b32 s63, s61, 3'); A('s_add_u32 s62, s62, s63')
    A(f's_and_b32 s62, s62, {CFG["rot"]-1}'); A(f's_mul_i32 s{S_C0}, s62, {8//CFG["rot"]}')

W_RA = 102
W_TMP = 60
def w_read_addr(A, T):
    A(f'v_lshrrev_b32 {v(T)}, 4, v0'); A(f'v_and_b32 {v(T+1)}, 15, v0')
    A(f'v_lshrrev_b32 {v(T+2)}, 1, {v(T)}')
    A(f'v_xor_b32 {v(T+2)}, {v(T+2)}, {v(T+1)}')
    A(f'v_lshlrev_b32 {v(T+2)}, 4, {v(T+2)}')
    A(f'v_and_b32 {v(T+3)}, 1, {v(T)}')
    A(f'v_lshl_add_u32 {v(T+2)}, {v(T+3)}, 3, {v(T+2)}')
    A(f'v_lshl_add_u32 {v(T+2)}, {v(T+1)}, 8, {v(T+2)}')
    A(f's_lshl_b32 s{S_A}, s8, 13')
    A(f'v_add_u32 {v(W_RA)}, s{S_A}, {v(T+2)}')
    for i in range(1, 8): A(f'v_xor_b32 {v(W_RA+i)}, {32*i}, {v(W_RA)}')
def w_consume(A, r, T):
    slot0 = (4*r) % 8
    A(f's_lshl_b32 s{S_A}, s7, 14'); A(f's_add_u32 s{S_A}, s{S_A}, {slot0*UNIT}')
    for i in range(8): A(f'v_add_u32 {v(T+i)}, s{S_A}, {v(W_RA+i)}')
    n = 0
    for sp in range(4):
        for tb2 in range(2):
            d = XF(tb2, 4*r + sp)
            A(f'ds_read_b64 {a(d,2)}, {v(T+2*sp)} offset:{tb2*4096}')
            A(f'ds_read_b64 {a(d+2,2)}, {v(T+2*sp+1)} offset:{tb2*4096}')
            n += 2
            if n == 12: A('s_waitcnt lgkmcnt(6)')

def emit_p1(A):
    LW = A.label('p1win'); LE = A.label('p1end')
    A('s_cmp_ge_u32 s10, 8'); A(f's_cbranch_scc1 {LW}')
    for typ in ('qkv', 'win'):
        U = p1_units()
        vm = VM2()
        if typ == 'qkv':
            srd(A, SRD_WB, P_WQKV, 512*3072)
            A(f's_movk_i32 s{S_K3}, 896'); A(f's_movk_i32 s{S_K4}, 3072')
        else:
            A(f'{LW}:')
            srd(A, SRD_WB, P_WIN, 512*2752)
            A('s_sub_u32 s14, s10, 8')
            A('s_mul_i32 s11, s14, 192'); A('s_mov_b32 s12, s11'); A('s_add_u32 s11, s11, 1408')
            def lo():
                A('s_mov_b32 s11, 1376'); A('s_mov_b32 s12, 1344')
            if_s(A, ('eq', 's14', 7), lo)
        rb_ = 3072 if typ == 'qkv' else 2752
        A(f's_mul_i32 s{S_B0O}, s{S_C0}, {64*rb_}'); A(f's_mov_b32 s{S_B1O}, s{S_B0O}')
        p1_b_dma_addr(A, typ)
        NPRO = CFG['npro']
        for n in range(1, NPRO):
            for f in p1_issue_list(A, typ, vm, n, U): f()
        if False: pass
        vm.v[0].q = [0, 0] + vm.v[0].q; vm.v[1].q = [0, 0] + vm.v[1].q
        stamp(A, 'pro')
        late_setup(A)
        if typ == 'qkv': p1_q_dma_addr(A)
        else:
            A(f's_mul_i32 s{S_K1}, s14, 6'); A(f's_add_u32 s{S_K2}, s{S_K1}, 1')
            A('s_mov_b32 s13, 3')
            def lo2():
                A(f's_mov_b32 s{S_K1}, 42'); A(f's_mov_b32 s{S_K2}, 0'); A('s_xor_b32 s13, s8, 1')
            if_s(A, ('eq', 's14', 7), lo2)
        p1_read_addr(A, typ)
        stamp(A, 'addr')
        state = dict(issued=NPRO, maxper=CFG['maxper'])
        if typ == 'qkv': state['hooks'] = {(0, 4): lambda: emit_init_flag(A)}
        blocks = p1_blocks(A, typ, 0, vm, U, state, {c: c for c in range(8)}, 16)
        if CFG['prof']:
            for c in (0, 3, 7): blocks[2*c+1]['post'] = (lambda c=c: stamp(A, f'g0s{c}'))
        pipeline(A, blocks)
        ex = []
        for n in range(16, 22): ex += p1_issue_list(A, typ, vm, n, U)
        state['issued'] = 22
        if typ == 'qkv': p1_qkv_epi0(A, vm, ex)
        else: p1_win_epi0(A, vm, ex)
        if typ == 'qkv': w_dma_addr(A, V_WD, V_T + 2)
        else: w_dma_addr4(A, V_WD, V_T + 2)
        stamp(A, 'epi0')
        state['maxper'] = 2
        def hook0():
            if typ == 'qkv': p1_qkv_epi0b(A, vm)
            else: p1_win_epi0b(A, vm); vm.issue('stst', who=(0,))
            flag_load(A)
            vm.mark('pub')
        def hook2():
            def body():
                flag_check(A, V_T+7)
                if typ == 'win':
                    A(f's_lshl_b32 s{S_A}, s9, 8'); A(f's_add_u32 s{S_A}, s{S_A}, {cnt(C_STATS)}')
                    signal(A, S_A, V_T+7)
            if_s(A, ('eq', 's6', 0), body)
        state['hooks'] = {(1, 0): hook0, (1, 2): hook2}
        if typ == 'win':
            state['hooks'][(1, 4)] = lambda: win_stats_poll_issue(A, vm)
            state['hooks'][(1, 6)] = lambda: win_stats_load(A, vm, True)
        state['also_mark'] = {(1, 2): 'pub'}
        lim = 32 if typ == 'qkv' else 30
        blocks = p1_blocks(A, typ, 1, vm, U, state, {0: 1, 2: 3, 4: 5, 6: 7}, lim)
        if CFG['prof']:
            for c in (1, 3, 7): blocks[2*c+1]['post'] = (lambda c=c: stamp(A, f'g1s{c}'))
        pipeline(A, blocks)
        if typ == 'win': win_tail(A, vm)
        else: qkv_tail(A, vm, U, state)
        stamp(A, 'wdone')
        if typ == 'qkv': A(f's_branch {LE}')
    A(f'{LE}:')

P2_ACC = 4; P2_BF = 52
P2_ZD = 108; P2_ZR = 111; P2_T = 114
ZST = 24576; NZ = 6
def WF(tb2, s_): return XF(tb2, s_)

def p2_decode(A):
    A('s_and_b32 s60, s2, 7'); A('s_lshr_b32 s61, s2, 3')
    A(f's_mov_b32 s9, s{S_T2}')
    A('s_and_b32 s62, s60, 1'); A('s_lshl_b32 s62, s62, 2'); A('s_lshr_b32 s63, s61, 3'); A('s_add_u32 s10, s62, s63')
    A('s_mul_i32 s11, s10, 6'); A('s_add_u32 s11, s11, 1')
    A('s_cmp_eq_u32 s10, 7'); A('s_cselect_b32 s11, 0, s11')

def p2_z_addr(A):
    T = P2_T
    A(f'v_lshlrev_b32 {v(T)}, 4, v0')
    A(f's_mul_i32 s{S_A}, s8, 3'); A(f's_add_u32 s{S_A}, s{S_A}, s11'); A(f's_lshl_b32 s{S_A}, s{S_A}, 16')
    A(f's_lshl_b32 s{S_B}, s7, 14'); A(f's_add_u32 s{S_A}, s{S_A}, s{S_B}')
    for i in range(3):
        A(f's_add_u32 s{S_B}, s{S_A}, {i*65536 - i*1024}')
        A(f'v_add_u32 {v(P2_ZD+i)}, s{S_B}, {v(T)}')
    A(f's_mul_i32 s{S_A}, s7, 6144')
    A(f'v_add_u32 {v(P2_ZR)}, s{S_A}, {v(T)}')
    A(f's_mul_i32 s{S_K1}, s7, 6144'); A(f's_mul_i32 s{S_B}, s8, 3072'); A(f's_add_u32 s{S_K1}, s{S_K1}, s{S_B}')

def p2_z_issue_list(A, vm, st, nf):
    out = []
    for i in range(3 if nf == 6 else 1):
        def f(i=i):
            def body():
                A(f's_add_u32 m0, s{S_K1}, {(st % NZ)*ZST}')
                A(f's_lshl_b32 s{S_SOFF}, s{S_R0}, 2'); A(f's_add_u32 s{S_SOFF}, s{S_SOFF}, {st}'); A(f's_and_b32 s{S_SOFF}, s{S_SOFF}, 15'); A(f's_lshl_b32 s{S_SOFF}, s{S_SOFF}, 10')
                if Z2T: A(f's_add_u32 s{S_SOFF}, s{S_SOFF}, {Z2T}')
                A(f'buffer_load_dwordx4 {v(P2_ZD+i)}, {SR(SRD_WS)}, s{S_SOFF} offen offset:{i*1024} {CFG["zlf"]} lds')
            if nf == 1: if_s(A, ('eq', 's8', 0), body)
            else: body()
            vm.issue(('z', st))
        out.append(f)
    return out

def p2_main(A, vm, nf, hooks):
    blocks = []
    issued = 2
    for st in range(16):
        blk = dict(reads=[], mfmas=[], extra=[])
        base = (st % NZ) * ZST
        hi = base + 6144 > 65535 - 6144
        def pre(st=st, base=base, hi=hi):
            A(f's_waitcnt vmcnt({vm.wait_n(("z", st))})')
            A('s_barrier')
            if hi: A(f'v_add_u32 {v(P2_T)}, {base}, {v(P2_ZR)}')
            if st in hooks: hooks[st]()
        blk['pre'] = pre
        todo = []
        while issued < 16 and issued <= st + NZ - 1 and len(todo) < 2:
            todo.append(issued); issued += 1
        blk['stages'] = todo
        for fbi in range(nf):
            r0 = P2_BF + (st % 2)*24 + fbi*4
            if hi: blk['reads'].append(f'ds_read_b128 {v(r0,4)}, {v(P2_T)} offset:{fbi*1024}')
            else: blk['reads'].append(f'ds_read_b128 {v(r0,4)}, {v(P2_ZR)} offset:{base + fbi*1024}')
        for fbi in range(nf):
            for tb2 in range(2):
                acc = P2_ACC + (tb2*6+fbi)*4
                cin = '0' if st == 0 else v(acc,4)
                blk['mfmas'].append(f'v_mfma_f32_16x16x32_bf16 {v(acc,4)}, {v(P2_BF + (st%2)*24 + fbi*4,4)}, {a(WF(tb2,st),4)}, {cin}')
        blocks.append(blk)
    for blk in blocks:
        ex = []
        for st in blk['stages']: ex += p2_z_issue_list(A, vm, st, nf)
        blk['extra'] = ex
    return blocks

J_REG = [116, 121]
def p2_job_scalars(A, job, nf):
    if nf == 6:
        A(f's_add_u32 s{S_A}, s7, {4*job}')
        A(f's_cmp_ge_u32 s{S_A}, 3'); A(f's_cselect_b32 s{S_B}, 1, 0')
        A(f's_mul_i32 s{S_C}, s{S_B}, 3'); A(f's_sub_u32 s{12+job}, s{S_A}, s{S_C}')
    else:
        A(f's_mov_b32 s{S_B}, s7'); A(f's_mov_b32 s{12+job}, 0')
    A(f's_lshl_b32 s{S_D}, s9, 2'); A(f's_lshl_b32 s{S_E}, s8, 1'); A(f's_add_u32 s{S_D}, s{S_D}, s{S_E}'); A(f's_add_u32 s{S_K3+job}, s{S_D}, s{S_B}')

def p2_epi_loads(A, job, J, nf, T):
    LF = CFG['lf']
    A(f's_lshr_b32 s{S_D}, s{S_K3+job}, 1')
    A(f's_mul_i32 s{S_E}, s{S_D}, 43'); A(f's_add_u32 s{S_E}, s{S_E}, s11'); A(f's_lshl_b32 s{S_C}, s{12+job}, 1'); A(f's_add_u32 s{S_E}, s{S_E}, s{S_C}')
    A(f's_lshl_b32 s{S_E}, s{S_E}, 10'); A(f's_add_u32 s{S_E}, s{S_E}, {Z1}')
    A(f's_and_b32 s{S_D}, s{S_K3+job}, 1'); A(f's_lshl_b32 s{S_D}, s{S_D}, 3'); A(f's_add_u32 s{S_E}, s{S_E}, s{S_D}')
    A(f'v_lshlrev_b32 {v(T)}, 4, v0')
    A(f'buffer_load_dwordx2 {v(J,2)}, {v(T)}, {SR(SRD_WS)}, s{S_E} offen {LF}')
    if nf == 6: A(f'buffer_load_dwordx2 {v(J+2,2)}, {v(T)}, {SR(SRD_WS)}, s{S_E} offen offset:1024 {LF}')
    A(f'v_and_b32 {v(T+1)}, 15, v0')
    A(f'v_lshlrev_b32 {v(T)}, 2, {v(T+1)}')
    A(f's_lshl_b32 s{S_E}, s{S_K3+job}, 6'); A(f's_add_u32 s{S_E}, s{S_E}, {GATE}')
    A(f'buffer_load_dword {v(J+4)}, {v(T)}, {SR(SRD_WS)}, s{S_E} offen {LF}')
    A(f'v_lshlrev_b32 {v(T+1)}, 1, {v(T+1)}')
    A(f's_lshl_b32 s{S_E}, s{S_K3+job}, 5')
    A(f'buffer_load_ushort {v(J+5)}, {v(T+1)}, {SR(SRD_M)}, s{S_E} offen')

def p2_epilogue(A, nf):
    SF = CFG['sf']
    T = P2_T
    JA = P2_BF; JB = P2_BF + 8
    srd(A, SRD_M, P_BSP, 4096)
    def pl():
        A(f's_lshl_b32 s{S_A}, s10, 8'); A(f's_add_u32 s{S_A}, s{S_A}, {cnt(C_Z1)}')
        A(f's_add_u32 s{S_B}, s10, 1'); A(f's_and_b32 s{S_B}, s{S_B}, 7'); A(f's_lshl_b32 s{S_B}, s{S_B}, 8'); A(f's_add_u32 s{S_B}, s{S_B}, {cnt(C_Z1)}')
        A(f's_mov_b32 s{S_C}, {cnt(C_Z1+7)}')
        pollN(A, [(f's{S_A}', 16), (f's{S_B}', 16), (f's{S_C}', 16)], T+6, 'pz1')
    if_s(A, ('eq', 's6', 0), pl)
    A('s_barrier')
    owners = (lambda body: body()) if nf == 6 else (lambda body: if_s(A, ('lt', 's7', 2), body))
    def ld0():
        p2_job_scalars(A, 0, nf); p2_epi_loads(A, 0, JA, nf, T)
    owners(ld0)
    if nf == 6:
        def ld1():
            p2_job_scalars(A, 1, nf); p2_epi_loads(A, 1, JB, nf, T)
        if_s(A, ('lt', 's7', 2), ld1)
    A(f'v_lshlrev_b32 {v(T+4)}, 4, v0')
    A(f's_mul_i32 s{S_A}, s8, 49152'); A(f's_lshl_b32 s{S_B}, s7, 11'); A(f's_add_u32 s{S_A}, s{S_A}, s{S_B}')
    A(f'v_add_u32 {v(T+5)}, s{S_A}, {v(T+4)}')
    if nf == 6:
        for tb2 in range(2):
            for fbi in range(6):
                phi = tb2*3 + fbi//2
                A(f'ds_write_b128 {v(T+5)}, {v(P2_ACC + (tb2*6+fbi)*4,4)} offset:{phi*8192 + (fbi%2)*1024}')
    else:
        for tb2 in range(2):
            A(f'ds_write_b128 {v(T+5)}, {v(P2_ACC + (tb2*6)*4,4)} offset:{tb2*8192}')
    c1v = P2_BF + 46
    gelu_consts(A, c1v)
    nb = 2 if nf == 6 else 1
    def prep(j, J):
        Z = P2_BF + 16 + j*8
        for b in range(nb):
            for h in range(2):
                src = J + b*2 + h
                A(f'v_lshlrev_b32 {v(Z+b*4+2*h)}, 16, {v(src)}')
                A(f'v_and_b32 {v(Z+b*4+2*h+1)}, 0xffff0000, {v(src)}')
        gelu_block(A, Z, 4*nb, P2_BF + 32, c1v)
        A(f'v_lshlrev_b32 {v(J+5)}, 16, {v(J+5)}')
        A(f'v_sub_f32 {v(J+4)}, 1.0, {v(J+4)}')
        A(f'v_mov_b32 {v(J+6)}, {v(J+5)}'); A(f'v_mov_b32 {v(J+7)}, {v(J+5)}')
        A(f'v_mov_b32 {v(J+5)}, {v(J+4)}')
        for b in range(nb):
            for h in range(2):
                A(f'v_pk_mul_f32 {v(Z+b*4+2*h,2)}, {v(Z+b*4+2*h,2)}, {v(J+4,2)}')
    A('s_waitcnt vmcnt(0)')
    owners(lambda: prep(0, JA))
    if nf == 6: if_s(A, ('lt', 's7', 2), lambda: prep(1, JB))
    A('s_waitcnt lgkmcnt(0)')
    A('s_barrier')
    def job(j, J):
        R = P2_ACC
        Z = P2_BF + 16 + j*8
        A(f's_add_u32 s{S_A}, s7, {4*j}'); A(f's_lshl_b32 s{S_A}, s{S_A}, 13')
        A(f's_mul_i32 s{S_B}, s8, 49152'); A(f's_add_u32 s{S_A}, s{S_A}, s{S_B}')
        A(f'v_add_u32 {v(T+5)}, s{S_A}, {v(T+4)}')
        for b in range(nb):
            for k in range(4):
                A(f'ds_read_b128 {v(R + (b*4+k)*4,4)}, {v(T+5)} offset:{k*2048 + b*1024}')
        if nf == 6:
            A(f's_mul_i32 s{S_A}, s{S_K3+j}, 21'); A(f's_mul_i32 s{S_B}, s10, 3'); A(f's_add_u32 s{S_A}, s{S_A}, s{S_B}')
            A(f's_add_u32 s{S_A}, s{S_A}, s{12+j}'); A(f's_lshl_b32 s{S_A}, s{S_A}, 10'); A(f's_add_u32 s{S_A}, s{S_A}, {UO}')
        else:
            A(f's_lshl_b32 s{S_A}, s{S_K3+j}, 9'); A(f's_add_u32 s{S_A}, s{S_A}, {U0}')
        A('s_waitcnt lgkmcnt(0)')
        O = P2_ACC + 32 + j*4
        for b in range(nb):
            R0 = R + b*16
            for h in range(2):
                A(f'v_pk_add_f32 {v(R0+2*h,2)}, {v(R0+2*h,2)}, {v(R0+4+2*h,2)}')
                A(f'v_pk_add_f32 {v(R0+8+2*h,2)}, {v(R0+8+2*h,2)}, {v(R0+12+2*h,2)}')
            for h in range(2): A(f'v_pk_add_f32 {v(R0+2*h,2)}, {v(R0+2*h,2)}, {v(J+6,2)}')
            for h in range(2): A(f'v_pk_add_f32 {v(R0+2*h,2)}, {v(R0+2*h,2)}, {v(R0+8+2*h,2)}')
            for h in range(2): A(f'v_pk_mul_f32 {v(R0+2*h,2)}, {v(R0+2*h,2)}, {v(Z+b*4+2*h,2)}')
            for h in range(2): A(f'v_cvt_pk_bf16_f32 {v(O+b*2+h)}, {v(R0+2*h)}, {v(R0+2*h+1)}')
        if nf == 6:
            ws_store(A, 4, O, T+4, f's{S_A}', SF)
        else:
            A(f'v_lshlrev_b32 {v(T+6)}, 3, v0')
            ws_store(A, 2, O, T+6, f's{S_A}', SF)
    owners(lambda: job(0, JA))
    if nf == 6: if_s(A, ('lt', 's7', 2), lambda: job(1, JB))

def p2_ojob(A):
    SF = CFG['sf']; LF = CFG['lf']
    T = P2_T
    A(f's_lshr_b32 s12, s9, 1')
    def pl():
        A(f's_lshr_b32 s{S_A}, s9, 2'); A(f's_lshl_b32 s{S_A}, s{S_A}, 8'); A(f's_add_u32 s{S_A}, s{S_A}, {cnt(C_QKV)}')
        pollN(A, [(f's{S_A}', 16)], T+6, 'pq')
    if_s(A, ('eq', 's6', 0), pl)
    A('s_barrier')
    A(f's_and_b32 s13, s9, 1'); A(f's_lshl_b32 s13, s13, 6'); A(f's_lshl_b32 s{S_A}, s6, 3'); A(f's_add_u32 s13, s13, s{S_A}')
    A(f's_lshl_b32 s{S_A}, s12, 1'); A(f's_add_u32 s{S_A}, s{S_A}, s8')
    A(f's_lshl_b32 s{S_B}, s7, 7'); A(f's_add_u32 s{S_B}, s{S_B}, s{S_A}')
    A(f's_lshl_b32 s{S_C}, s{S_B}, 6'); A(f's_add_u32 s{S_C}, s{S_C}, {KZ}')
    A(f's_lshl_b32 s{S_B}, s{S_B}, 10'); A(f's_add_u32 s{S_B}, s{S_B}, {KVP}')
    A(f'v_lshlrev_b32 {v(T)}, 4, v0'); A(f'v_and_b32 {v(T+1)}, 0x30, v0')
    R = P2_ACC
    for i in range(4):
        A(f'buffer_load_dwordx4 {v(R+4*i,4)}, {v(T)}, {SR(SRD_WS)}, s{S_B} offen {LF}')
        A(f'buffer_load_dwordx4 {v(R+16+4*i,4)}, {v(T+1)}, {SR(SRD_WS)}, s{S_C} offen {LF}')
        A(f's_add_u32 s{S_B}, s{S_B}, {32*1024}'); A(f's_add_u32 s{S_C}, s{S_C}, {32*64}')
    Q = P2_BF; G = P2_BF + 32
    A(f'v_lshlrev_b32 {v(T+2)}, 3, v0')
    A(f'v_and_b32 {v(T+3)}, 15, v0'); A(f'v_lshlrev_b32 {v(T+3)}, 2, {v(T+3)}')
    A(f's_lshl_b32 s{S_A}, s12, 7'); A(f's_lshr_b32 s{S_B}, s13, 1'); A(f's_add_u32 s{S_A}, s{S_A}, s{S_B}'); A(f's_lshl_b32 s{S_A}, s{S_A}, 10'); A(f's_add_u32 s{S_A}, s{S_A}, {QO}')
    for hh in range(2):
        A(f's_add_u32 s{S_B}, s{S_A}, {hh*65536}')
        for i in range(4):
            A(f'buffer_load_dwordx4 {v(Q+hh*16+i*4,4)}, {v(T)}, {SR(SRD_WS)}, s{S_B} offen offset:{i*1024} {LF}')
    A(f's_lshl_b32 s{S_B}, s13, 6'); A(f's_add_u32 s{S_B}, s{S_B}, {GATE}')
    for i in range(8):
        A(f'buffer_load_dword {v(G+i)}, {v(T+3)}, {SR(SRD_WS)}, s{S_B} offen offset:{i*64} {LF}')
    A('s_waitcnt vmcnt(16)')
    for base in (R, R+16):
        for h in range(2):
            A(f'v_pk_add_f32 {v(base+2*h,2)}, {v(base+2*h,2)}, {v(base+4+2*h,2)}')
            A(f'v_pk_add_f32 {v(base+8+2*h,2)}, {v(base+8+2*h,2)}, {v(base+12+2*h,2)}')
        for h in range(2): A(f'v_pk_add_f32 {v(base+2*h,2)}, {v(base+2*h,2)}, {v(base+8+2*h,2)}')
    A(f's_lshl_b32 s{S_A}, s6, 11')
    A(f'v_add_u32 {v(T+4)}, s{S_A}, {v(T)}')
    A(f'ds_write_b128 {v(T+4)}, {v(R,4)}')
    A(f'ds_write_b128 {v(T+4)}, {v(R+16,4)} offset:1024')
    A('s_waitcnt lgkmcnt(0)')
    A('s_barrier')
    KB = [P2_ACC+40, P2_ACC+42]; ZB = [P2_ACC+44, P2_ACC+46]
    for hh in range(2):
        for k in range(4):
            A(f'ds_read_b128 {v(R+4*k,4)}, {v(T)} offset:{(hh*4+k)*2048}')
            A(f'ds_read_b128 {v(R+16+4*k,4)}, {v(T)} offset:{(hh*4+k)*2048 + 1024}')
        A('s_waitcnt lgkmcnt(0)')
        for base, dst in ((R, KB[hh]), (R+16, ZB[hh])):
            for h in range(2):
                A(f'v_pk_add_f32 {v(base+2*h,2)}, {v(base+2*h,2)}, {v(base+4+2*h,2)}')
                A(f'v_pk_add_f32 {v(base+8+2*h,2)}, {v(base+8+2*h,2)}, {v(base+12+2*h,2)}')
            for h in range(2): A(f'v_pk_add_f32 {v(base+2*h,2)}, {v(base+2*h,2)}, {v(base+8+2*h,2)}')
            for h in range(2): A(f'v_cvt_pk_bf16_f32 {v(dst+h)}, {v(base+2*h)}, {v(base+2*h+1)}')
    A('s_waitcnt vmcnt(0)')
    A(f's_mov_b32 s{S_PAIR}, {hex(f2u(1e-6))}')
    for i0 in range(0, 8, 2):
        for di in range(2):
            i = i0 + di
            N = P2_ACC + di*16
            for hh in range(2):
                A(f'v_mfma_f32_16x16x16_bf16 {v(N+hh*4,4)}, {v(KB[hh],2)}, {v(Q+hh*16+i*2,2)}, 0')
                A(f'v_mfma_f32_16x16x16_bf16 {v(N+8+hh*4,4)}, {v(ZB[hh],2)}, {v(Q+hh*16+i*2,2)}, 0')
        for di in range(2):
            N = P2_ACC + di*16
            for hh in range(2): A(f'v_add_f32 {v(N+8+hh*4)}, s{S_PAIR}, {v(N+8+hh*4)}')
        for di in range(2):
            N = P2_ACC + di*16
            for hh in range(2): A(f'v_rcp_f32 {v(N+8+hh*4)}, {v(N+8+hh*4)}')
        for di in range(2):
            N = P2_ACC + di*16
            for hh in range(2):
                A(f'v_mul_f32 {v(N+8+hh*4)}, {v(N+8+hh*4)}, {v(G+i0+di)}')
            for hh in range(2):
                A(f'v_mov_b32 {v(N+8+hh*4+1)}, {v(N+8+hh*4)}')
        for di in range(2):
            N = P2_ACC + di*16
            for hh in range(2):
                for h in range(2):
                    A(f'v_pk_mul_f32 {v(N+hh*4+2*h,2)}, {v(N+hh*4+2*h,2)}, {v(N+8+hh*4,2)}')
        for di in range(2):
            N = P2_ACC + di*16
            X = P2_ACC + 32 + di*4
            for hh in range(2):
                for h in range(2):
                    A(f'v_cvt_pk_bf16_f32 {v(X+hh*2+h)}, {v(N+hh*4+2*h)}, {v(N+hh*4+2*h+1)}')
            A(f's_add_u32 s{S_A}, s13, {i0+di}'); A(f's_lshl_b32 s{S_A}, s{S_A}, 4'); A(f's_add_u32 s{S_A}, s{S_A}, s12')
            A(f's_lshl_b32 s{S_A}, s{S_A}, 10'); A(f's_add_u32 s{S_A}, s{S_A}, {OO}')
            ws_store(A, 4, X, T, f's{S_A}', SF)

P3_A = 4; P3_ACC = 80; P3_BR = 100; P3_BD = 104; P3_T = 112
def p3_b_setup(A):
    T = P3_T
    A(f'v_lshrrev_b32 {v(T)}, 3, v0'); A(f'v_and_b32 {v(T+1)}, 7, v0'); A(f'v_lshrrev_b32 {v(T+2)}, 4, v0')
    A(f'v_lshrrev_b32 {v(T+3)}, 1, {v(T+1)}')
    A(f'v_xor_b32 {v(T+3)}, {v(T+3)}, {v(T+2)}')
    A(f'v_lshlrev_b32 {v(T+3)}, 5, {v(T+3)}')
    A(f'v_and_b32 {v(T+4)}, 1, v0')
    A(f'v_lshl_add_u32 {v(T+3)}, {v(T+4)}, 4, {v(T+3)}')
    A(f'v_lshl_add_u32 {v(T+3)}, {v(T)}, 10, {v(T+3)}')
    A(f's_lshl_b32 s{S_A}, s{S_N3}, 7'); A(f's_lshl_b32 s{S_B}, s6, 13'); A(f's_add_u32 s{S_A}, s{S_A}, s{S_B}')
    A(f'v_add_u32 {v(P3_BD)}, s{S_A}, {v(T+3)}')
    A(f'v_and_b32 {v(T+4)}, 15, v0')
    A(f'v_lshrrev_b32 {v(T+5)}, 2, {v(T+4)}')
    A(f'v_lshl_add_u32 {v(T+5)}, {v(T+2)}, 2, {v(T+5)}')
    A(f'v_lshrrev_b32 {v(T+6)}, 1, {v(T+5)}'); A(f'v_and_b32 {v(T+6)}, 3, {v(T+6)}')
    A(f'v_and_b32 {v(T+4)}, 3, {v(T+4)}'); A(f'v_lshlrev_b32 {v(T+4)}, 3, {v(T+4)}')
    A(f'v_lshl_add_u32 {v(T+4)}, {v(T+5)}, 7, {v(T+4)}')
    for b in range(4):
        A(f'v_xor_b32 {v(T+7)}, {b}, {v(T+6)}')
        A(f'v_lshl_add_u32 {v(P3_BR+b)}, {v(T+7)}, 5, {v(T+4)}')
def p3_b_issue(A, m0_, m1_):
    for m in range(m0_, m1_):
        def body(m=m):
            A(f's_add_u32 m0, s{S_LW1}, {m*8192}')
            if m < 8:
                A(f's_mov_b32 s{S_SOFF}, {m*65536}')
                A(f'buffer_load_dwordx4 {v(P3_BD)}, {SR(SRD_X)}, s{S_SOFF} offen {CFG["b3f"]} lds')
            else:
                A(f's_mov_b32 s{S_SOFF}, {(m-8)*65536}')
                A(f'buffer_load_dwordx4 {v(P3_BD)}, {SR(SRD_WB)}, s{S_SOFF} offen {CFG["b3f"]} lds')
        if m == 18: if_s(A, ('lt', 's6', 6), body)
        else: body()

def p2_finish(A, nf):
    T = P2_T
    srd(A, SRD_X, P_WO, 512*1024)
    srd(A, SRD_WB, P_WOUT, 688*1024)
    A('s_barrier')
    p3_b_setup(A)
    p3_b_issue(A, 0, 8)
    A('s_waitcnt vmcnt(8)')
    A('s_barrier')
    def sig():
        A(f's_lshl_b32 s{S_A}, s9, 8'); A(f's_add_u32 s{S_A}, s{S_A}, {cnt(C_U)}')
        signal(A, S_A, T+8)
        if nf == 1:
            A(f's_and_b32 s{S_A}, s9, 1'); A(f's_lshl_b32 s{S_A}, s{S_A}, 10'); A(f's_add_u32 s{S_A}, s{S_A}, {cnt(C_O)}')
            signal(A, S_A, T+8, lanes=4, stride=256)
    if_s(A, ('eq', 's6', 0), sig)
    stamp(A, 'p2sig')
    p3_b_issue(A, 8, 19)

def emit_p2(A):
    p2_decode(A)
    p2_z_addr(A)
    def pl():
        A(f's_lshl_b32 s{S_A}, s10, 8'); A(f's_add_u32 s{S_A}, s{S_A}, {cnt(C_WIN)}')
        pollN(A, [(f's{S_A}', 16)], P2_T+6, 'pz2')
    if_s(A, ('eq', 's6', 0), pl)
    A('s_barrier')
    stamp(A, 'p2go')
    LL = A.label('p2left'); LE = A.label('p2end')
    A('s_cmp_eq_u32 s10, 7'); A(f's_cbranch_scc1 {LL}')
    for nf in (6, 1):
        if nf == 1: A(f'{LL}:')
        vm = VM()
        for st in range(2):
            for f in p2_z_issue_list(A, vm, st, nf): f()
        blocks = p2_main(A, vm, nf, {})
        if CFG['prof']:
            for st in (0, 7, 15): blocks[st]['post'] = (lambda st=st: stamp(A, f'p2s{st}'))
        pipeline(A, blocks)
        p2_epilogue(A, nf)
        stamp(A, 'p2epi')
        if nf == 1: p2_ojob(A)
        stamp(A, 'p2o')
        p2_finish(A, nf)
        if nf == 6: A(f's_branch {LE}')
    A(f'{LE}:')

def p3_steps(kh):
    allsteps = [('o', hp, 32*hp) for hp in range(16)] + [('u', p, 512 + 16 + 32*p) for p in range(21)] + [('u0', 0, 512)]
    return allsteps[:19] if kh == 0 else allsteps[19:]

def emit_p3(A):
    LF = CFG['lf']
    T = P3_T
    A(f's_mov_b32 s9, s{S_T3}'); A(f's_mov_b32 s10, s{S_N3}')
    def pl():
        A(f's_lshl_b32 s{S_A}, s9, 8'); A(f's_add_u32 s{S_A}, s{S_A}, {cnt(C_U)}')
        A(f's_lshr_b32 s{S_B}, s9, 4'); A(f's_lshl_b32 s{S_B}, s{S_B}, 2'); A(f's_and_b32 s{S_C}, s9, 3'); A(f's_add_u32 s{S_B}, s{S_B}, s{S_C}')
        A(f's_lshl_b32 s{S_B}, s{S_B}, 8'); A(f's_add_u32 s{S_B}, s{S_B}, {cnt(C_O)}')
        pollN(A, [(f's{S_A}', 8), (f's{S_B}', 16)], T+8, 'pu')
    A(f'v_lshlrev_b32 {v(T)}, 4, v0'); A(f'v_lshlrev_b32 {v(T+1)}, 3, v0')
    A(f's_lshl_b32 s11, s9, 2'); A(f's_add_u32 s11, s11, s7')
    A(f's_lshl_b32 s{S_K1}, s11, 14'); A(f's_add_u32 s{S_K1}, s{S_K1}, {OO}')
    A(f's_mul_i32 s{S_K2}, s11, {21*1024}'); A(f's_add_u32 s{S_K2}, s{S_K2}, {UO}')
    A(f's_lshl_b32 s{S_K3}, s11, 9'); A(f's_add_u32 s{S_K3}, s{S_K3}, {U0}')
    if_s(A, ('eq', 's6', 0), pl)
    A('s_waitcnt vmcnt(0)')
    A('s_barrier')
    stamp(A, 'p3go')
    LK = A.label('p3k1'); LJ = A.label('p3join')
    A('s_cmp_lg_u32 s8, 0'); A(f's_cbranch_scc1 {LK}')
    for kh in range(2):
        if kh == 1: A(f'{LK}:')
        steps = p3_steps(kh)
        vm = VM()
        def aload(i):
            kind, idx, row0 = steps[i]
            if kind == 'o':
                A(f's_add_u32 s{S_D}, s{S_K1}, {idx*1024}')
                A(f'buffer_load_dwordx4 {v(P3_A+4*i,4)}, {v(T)}, {SR(SRD_WS)}, s{S_D} offen {LF}')
            elif kind == 'u':
                A(f's_add_u32 s{S_D}, s{S_K2}, {idx*1024}')
                A(f'buffer_load_dwordx4 {v(P3_A+4*i,4)}, {v(T)}, {SR(SRD_WS)}, s{S_D} offen {LF}')
            else:
                A(f'buffer_load_dwordx2 {v(P3_A+4*i,2)}, {v(T+1)}, {SR(SRD_WS)}, s{S_K3} offen {LF}')
            vm.issue(i)
        NA = CFG['p3pro']
        for i in range(NA): aload(i)
        blocks = []
        nxt = NA
        for i, (kind, idx, row0) in enumerate(steps):
            blk = dict(reads=[], mfmas=[], extra=[])
            base = row0 * 128
            par = i % 2
            hi = base + 16*128 + 512 > 65535
            def pre(i=i, base=base, hi=hi, par=par):
                if hi:
                    for b in range(4): A(f'v_add_u32 {v(T+2+par*4+b)}, {base}, {v(P3_BR+b)}')
            blk['pre'] = pre
            for _ in range(CFG['p3per']):
                if nxt < len(steps):
                    blk['extra'].append(lambda n=nxt: aload(n)); nxt += 1
            for b in range(4):
                ad = (T+2+par*4+b, 0) if hi else (P3_BR+b, base)
                d = par*16 + b*4
                blk['reads'].append(f'ds_read_b64_tr_b16 {a(d,2)}, {v(ad[0])} offset:{ad[1]}')
                if kind != 'u0':
                    blk['reads'].append(f'ds_read_b64_tr_b16 {a(d+2,2)}, {v(ad[0])} offset:{ad[1] + 16*128}')
            for b in range(4):
                acc = P3_ACC + 4*b
                cin = '0' if i == 0 else v(acc,4)
                d = par*16 + b*4
                if kind == 'u0':
                    blk['mfmas'].append(f'v_mfma_f32_16x16x16_bf16 {v(acc,4)}, {a(d,2)}, {v(P3_A+4*i,2)}, {cin}')
                else:
                    blk['mfmas'].append(f'v_mfma_f32_16x16x32_bf16 {v(acc,4)}, {a(d,4)}, {v(P3_A+4*i,4)}, {cin}')
            blk['start'] = (lambda i=i: A(f's_waitcnt vmcnt({vm.wait_n(i)}) lgkmcnt(0)'))
            blocks.append(blk)
        pipeline(A, blocks)
        if kh == 0: A(f's_branch {LJ}')
    A(f'{LJ}:')
    stamp(A, 'p3main')
    A('s_barrier')
    A(f's_lshl_b32 s{S_A}, s7, 12'); A(f's_lshl_b32 s{S_B}, s8, 11'); A(f's_add_u32 s{S_A}, s{S_A}, s{S_B}')
    A(f'v_add_u32 {v(T+2)}, s{S_A}, {v(T)}')
    A(f's_xor_b32 s{S_B}, s{S_A}, 2048')
    A(f'v_add_u32 {v(T+3)}, s{S_B}, {v(T)}')
    LA = A.label('r0'); LB = A.label('r1')
    A('s_cmp_lg_u32 s8, 0'); A(f's_cbranch_scc1 {LA}')
    for b in (2, 3): A(f'ds_write_b128 {v(T+2)}, {v(P3_ACC+4*b,4)} offset:{(b-2)*1024}')
    A(f's_branch {LB}')
    A(f'{LA}:')
    for b in (0, 1): A(f'ds_write_b128 {v(T+2)}, {v(P3_ACC+4*b,4)} offset:{b*1024}')
    for b in (0, 1):
        for r in range(4): A(f'v_mov_b32 {v(P3_ACC+4*b+r)}, {v(P3_ACC+8+4*b+r)}')
    A(f'{LB}:')
    A('s_waitcnt lgkmcnt(0)')
    A('s_barrier')
    R = P3_A
    for b in range(2): A(f'ds_read_b128 {v(R+4*b,4)}, {v(T+3)} offset:{b*1024}')
    srd(A, SRD_M, P_OUT, 2048*1024)
    A(f'v_and_b32 {v(T+4)}, 15, v0'); A(f'v_lshlrev_b32 {v(T+4)}, 10, {v(T+4)}')
    A(f'v_lshrrev_b32 {v(T+5)}, 4, v0'); A(f'v_lshl_add_u32 {v(T+4)}, {v(T+5)}, 3, {v(T+4)}')
    A(f's_lshl_b32 s{S_A}, s11, 14'); A(f's_lshl_b32 s{S_B}, s10, 7'); A(f's_add_u32 s{S_A}, s{S_A}, s{S_B}')
    A(f's_lshl_b32 s{S_B}, s8, 6'); A(f's_add_u32 s{S_A}, s{S_A}, s{S_B}')
    A('s_waitcnt lgkmcnt(0)')
    for b in range(2):
        for h in range(2):
            A(f'v_pk_add_f32 {v(P3_ACC+4*b+2*h,2)}, {v(P3_ACC+4*b+2*h,2)}, {v(R+4*b+2*h,2)}')
    for b in range(2):
        for h in range(2):
            A(f'v_cvt_pk_bf16_f32 {v(R+8+2*b+h)}, {v(P3_ACC+4*b+2*h)}, {v(P3_ACC+4*b+2*h+1)}')
    for b in range(2):
        A(f'buffer_store_dwordx2 {v(R+8+2*b,2)}, {v(T+4)}, {SR(SRD_M)}, s{S_A} offen offset:{b*32}')
    stamp(A, 'p3end')
    stamp(A, 'rt1')

def wg0w0(A, body):
    L = A.label('init')
    A('s_cmp_lg_u32 s2, 0'); A(f's_cbranch_scc1 {L}')
    A('s_cmp_lg_u32 s6, 0'); A(f's_cbranch_scc1 {L}')
    body()
    A(f'{L}:')
def emit_init(A):
    def body():
        A('v_lshlrev_b32 v2, 8, v0'); A('v_mov_b32 v3, 0')
        A(f's_mov_b32 s{S_A}, {CNT}')
        A(f'buffer_store_dword v3, v2, {SR(SRD_WS)}, s{S_A} offen sc1')
        A(f's_add_u32 s{S_A}, s{S_A}, {64*256}')
        A(f'buffer_store_dword v3, v2, {SR(SRD_WS)}, s{S_A} offen sc1')
    wg0w0(A, body)
def emit_init_flag(A):
    def body():
        A('v_mov_b32 v2, 0'); A('v_mov_b32 v3, 1')
        A('s_mov_b64 exec, 1')
        A(f'buffer_store_dword v3, v2, {SR(SRD_DBG)}, 0 offen sc1')
        A('s_mov_b64 exec, -1')
    wg0w0(A, body)

def late_setup(A):
    srd(A, SRD_WS, P_WS, WS_USED)
    srd(A, SRD_DBG, P_DBG, 256)
    srd(A, SRD_WSP, P_WSP, 2048*4096)
    emit_init(A)
    def z():
        A(f'v_mov_b32 v2, {LCNT}'); A('v_mov_b32 v3, 0'); A('ds_write_b32 v2, v3')
    if_s(A, ('eq', 's6', 0), z)
    A('s_and_b32 s60, s2, 7'); A('s_lshr_b32 s61, s2, 3')
    A('s_lshr_b32 s62, s60, 1'); A('s_lshl_b32 s62, s62, 3'); A('s_and_b32 s63, s61, 7'); A(f's_add_u32 s{S_T2}, s62, s63')
    A('s_lshl_b32 s62, s60, 2'); A('s_and_b32 s63, s61, 3'); A(f's_add_u32 s{S_T3}, s62, s63')
    A(f's_lshr_b32 s{S_N3}, s61, 2')
    A('s_lshr_b32 s63, s61, 3'); A(f's_add_u32 s62, s{S_T2}, s63'); A(f's_and_b32 s{S_R0}, s62, {CFG["rot2"]-1}')

def build():
    A = Asm()
    hdr = open('gated_mix__linear_attn_block__mixer_gmlp__prompt.s.ref').read().split('; Override launch geometry')[0]
    A(hdr.rstrip())
    A(f'; @launch grid=(256,1,1) block=(512,1,1) lds={LDS_BYTES}')
    A('.amdgcn_target "amdgcn-amd-amdhsa--gfx950"')
    A('.text')
    kernel_header(A, KNAME)
    A('s_cmp_ge_u32 s2, 256')
    A(f's_cbranch_scc1 k_exit')
    A('s_load_dwordx16 s[16:31], s[0:1], 0')
    A('s_load_dwordx8 s[32:39], s[0:1], 64')
    A('v_lshrrev_b32 v1, 6, v0')
    A('v_and_b32 v0, 63, v0')
    A('v_readfirstlane_b32 s6, v1')
    A('s_and_b32 s7, s6, 3'); A('s_lshr_b32 s8, s6, 2')
    A(f's_lshl_b32 s{S_LW}, s6, 11'); A(f's_lshl_b32 s{S_LW1}, s6, 10')
    p1_decode(A)
    p1_x_addr(A)
    A('s_waitcnt lgkmcnt(0)')
    stamp(A, 'start')
    stamp(A, 'rt0')
    srd(A, SRD_X, P_X, 2048*1024)
    A(f's_lshl_b32 s{S_XO}, s{S_C0}, 7')
    for f in p1_issue_list(A, 'qkv', VM2(), 0, p1_units()): f()
    if CFG.get('delay'):
        A('s_memtime s[60:61]'); A('s_waitcnt lgkmcnt(0)')
        A('dly_l:'); A('s_memtime s[62:63]'); A('s_waitcnt lgkmcnt(0)'); A('s_sub_u32 s64, s62, s60'); A(f's_cmp_lt_u32 s64, {CFG["delay"]}'); A('s_cbranch_scc1 dly_l')
    emit_p1(A)
    emit_p2(A)
    emit_p3(A)
    stamp_flush(A)
    A('k_exit:')
    A('s_endpgm')
    A('.section .rodata,"a"')
    A('.p2align 6')
    A(kernel_desc(KNAME, 256, accum=128))
    return A

if __name__ == '__main__':
    out = sys.argv[1]
    for a_ in sys.argv[2:]:
        k_, v_ = a_.split('=')
        CFG[k_] = int(v_) if v_.lstrip('-').isdigit() else v_.replace('_', ' ')
    A = build()
    t = A.text()
    open(out, 'w').write(t)
    if CFG['prof']: open(out + '.names', 'w').write(' '.join(_stamps))
    print('lines', t.count(chr(10)), 'nops inserted', A.nops_inserted)
```

```python
import sys, struct
from asmgen import *
from layout import *

UNIT = 16384
NU = 8
SCR = NU * UNIT
LDS_BYTES = 163840
KNAME = 'gated_mix__linear_attn_block__mixer_gmlp__prompt_kernel'

P_X, P_WQKV, P_WO, P_BX, P_WIN, P_WSP, P_BSP, P_WOUT = 16, 18, 20, 22, 24, 26, 28, 30
P_GW, P_OUT, P_DBG, P_WS = 32, 34, 36, 38
SRD_X, SRD_WB, SRD_WS, SRD_WSP, SRD_M = 40, 44, 48, 52, 56
S_A, S_B, S_C, S_D, S_E, S_F = 60, 61, 62, 63, 64, 65
S_SOFF = 66
S_POLL = 67
S_EX = 68
S_K1, S_K2, S_K3, S_K4 = 70, 71, 72, 73
S_LW, S_LW1 = 74, 75
S_PAIR = 76
SRD_DBG = 92
S_T2, S_T3, S_N3 = 96, 97, 98
S_XO, S_B0O, S_B1O = 99, 100, 101
S_C0 = 15
S_R0 = 5

C_STATS, C_WIN, C_QKV, C_U, C_O, C_Z1 = 0, 16, 24, 32, 64, 72
LCNT = NU*UNIT + 28672
def cnt(i): return CNT + i * 256

def f2u(x): return struct.unpack('<I', struct.pack('<f', x))[0]
LOG2E = 1.4426950408889634
GK = -2.0 * 0.7978845608028654 * LOG2E
GC = 0.044715

CFG = dict(prof=False, sf='sc1', lf='sc1', zlf='sc1', xf='', wf='', wspf='', b3f='', npro=4, maxper=2, codepf=1, p3pro=6, p3per=2, rot=8, rot2=4, wtouch=1, b3touch=1)
_stamps = []
PROF = 0x1000000
def stamp(A, name):
    if not CFG['prof']: return
    if name in _stamps: idx = _stamps.index(name)
    else: idx = len(_stamps); _stamps.append(name)
    A('s_waitcnt lgkmcnt(0)')
    A('s_memrealtime s[84:85]' if name.startswith('rt') else 's_memtime s[84:85]')
    A('s_waitcnt lgkmcnt(0)')
    A(f'v_writelane_b32 v127, s84, {idx}')
def stamp_flush(A):
    if not CFG['prof']: return
    A('s_waitcnt vmcnt(0)')
    A('s_lshl_b32 s84, s2, 3'); A('s_add_u32 s84, s84, s6'); A('s_lshl_b32 s84, s84, 8')
    A('v_lshlrev_b32 v126, 2, v0')
    A(f's_mov_b32 s88, s38'); A('s_and_b32 s89, s39, 0xffff'); A('s_mov_b32 s90, 0x2000000'); A('s_mov_b32 s91, 0x00020000')
    A(f's_add_u32 s84, s84, {PROF}')
    A('buffer_store_dword v127, v126, s[88:91], s84 offen')

class VM:
    def __init__(self): self.q = []; self.marks = {}
    def issue(self, tag, n=1): self.q += [tag] * n
    def wait_n(self, tag):
        idx = max(i for i, t in enumerate(self.q) if t == tag)
        return len(self.q) - 1 - idx
    def mark(self, name): self.marks[name] = len(self.q)
    def since(self, name): return len(self.q) - self.marks[name]

class VM2:
    def __init__(self): self.v = [VM(), VM()]
    def issue(self, tag, n=1, who=(0, 1)):
        for w in who: self.v[w].issue(tag, n)
    def mark(self, name):
        for x in self.v: x.mark(name)
    def counts(self, tag, mark=None):
        out = []
        for x in self.v:
            N = x.wait_n(tag) if (tag is not None and tag in x.q) else 63
            if mark is not None: N = min(N, x.since(mark))
            out.append(N)
        return out
    def wait(self, A, tag, mark=None):
        n0, n1 = self.counts(tag, mark)
        if n0 == n1: A(f's_waitcnt vmcnt({min(n0,63)})'); return
        L0 = A.label('vw'); L1 = A.label('vw')
        A('s_cmp_eq_u32 s8, 0'); A(f's_cbranch_scc1 {L0}')
        A(f's_waitcnt vmcnt({min(n1,63)})'); A(f's_branch {L1}')
        A(f'{L0}:'); A(f's_waitcnt vmcnt({min(n0,63)})'); A(f'{L1}:')

class Sprinkle:
    def __init__(self, A, extras, every):
        self.A = A; self.ex = list(extras); self.every = every; self.n = 0
    def __call__(self, t):
        self.A(t); self.n += 1
        if self.ex and self.n % self.every == 0: self.ex.pop(0)()
    def label(self, b='L'): return self.A.label(b)
    def flush(self):
        while self.ex: self.ex.pop(0)()

def SR(d): return f's[{d}:{d+3}]'
def srd(A, d, p, nbytes):
    A(f's_mov_b32 s{d}, s{p}')
    A(f's_and_b32 s{d+1}, s{p+1}, 0xffff')
    A(f's_mov_b32 s{d+2}, {hex(nbytes)}')
    A(f's_mov_b32 s{d+3}, 0x00020000')

def if_s(A, cond, body, name='if'):
    L = A.label(name)
    inv = {'eq': 'lg', 'lg': 'eq', 'lt': 'ge', 'ge': 'lt', 'gt': 'le', 'le': 'gt'}[cond[0]]
    A(f's_cmp_{inv}_u32 {cond[1]}, {cond[2]}'); A(f's_cbranch_scc1 {L}')
    body()
    A(f'{L}:')

def pipeline(A, blocks):
    n = len(blocks)
    b0 = blocks[0]
    if b0.get('pre'): b0['pre']()
    for r in b0['reads']: A(r)
    for x in b0.get('extra', []): x()
    for i in range(n):
        if blocks[i].get('start'): blocks[i]['start']()
        else: A('s_waitcnt lgkmcnt(0)')
        nxt = blocks[i+1] if i+1 < n else None
        fill = []; ex = []
        if nxt is not None:
            if nxt.get('pre'): nxt['pre']()
            fill = [(lambda r=r: A(r)) for r in nxt['reads']]
            ex = list(nxt.get('extra', []))
        m = blocks[i]['mfmas']
        slots = [[] for _ in m]
        k = 0
        for j in range(len(m)):
            for _ in range(2):
                if k < len(fill): slots[j].append(fill[k]); k += 1
        while k < len(fill): slots[-1].append(fill[k]); k += 1
        if ex:
            for e_i, e in enumerate(ex):
                pos = min(len(m)-1, (e_i * len(m)) // len(ex) + (len(m)//len(ex))//2)
                slots[pos].append(e)
        for j, t in enumerate(m):
            A(t)
            for f in slots[j]: f()
        if blocks[i].get('post'): blocks[i]['post']()

def ws_store(A, n, data, vaddr, soff, flags, off=0):
    nm = {1: 'dword', 2: 'dwordx2', 4: 'dwordx4'}[n]
    A(f'buffer_store_{nm} {v(data,n)}, {v(vaddr)}, {SR(SRD_WS)}, {soff} offen offset:{off} {flags}')

def signal(A, soff_sgpr, tmp, lanes=1, stride=0):
    A(f's_mov_b64 s[{S_EX}:{S_EX+1}], exec')
    A(f's_mov_b64 exec, {(1<<lanes)-1}')
    A(f'v_mov_b32 {v(tmp)}, 1')
    if stride: A(f'v_mul_u32_u24 {v(tmp+1)}, {stride}, v0')
    else: A(f'v_mov_b32 {v(tmp+1)}, 0')
    A(f'buffer_atomic_add {v(tmp)}, {v(tmp+1)}, {SR(SRD_WS)}, s{soff_sgpr} offen sc1')
    A(f's_mov_b64 exec, s[{S_EX}:{S_EX+1}]')

def poll(A, srd_, soff, target, tmp, name, cmp='ge'):
    A(f'v_mov_b32 {v(tmp+1)}, 0')
    A(f's_mov_b32 s{S_F}, 0')
    L = A.label(name); LO = A.label(name + 'ok')
    A(f'{L}:')
    A(f'buffer_load_dword {v(tmp)}, {v(tmp+1)}, {SR(srd_)}, {soff} offen sc1')
    A('s_waitcnt vmcnt(0)')
    A(f'v_readfirstlane_b32 s{S_E}, {v(tmp)}')
    A(f's_add_u32 s{S_F}, s{S_F}, 1')
    A(f's_cmp_ge_u32 s{S_E}, {target}')
    A(f's_cbranch_scc1 {LO}')
    A(f's_cmp_lt_u32 s{S_F}, 100000')
    A(f's_cbranch_scc0 {LO}')
    A('s_sleep 1')
    A(f's_branch {L}')
    A(f'{LO}:')

def pollN(A, items, tmp, name):
    n = len(items)
    A(f's_mov_b64 s[{S_EX}:{S_EX+1}], exec')
    A(f'v_mov_b32 {v(tmp+1)}, 0'); A(f'v_mov_b32 {v(tmp+2)}, 0')
    for i, (so, tg) in enumerate(items):
        A(f'v_writelane_b32 {v(tmp+1)}, {so}, {i}')
        A(f's_movk_i32 s{S_E}, {tg}')
        A(f'v_writelane_b32 {v(tmp+2)}, s{S_E}, {i}')
    A(f's_mov_b64 exec, {(1<<n)-1}')
    A(f's_mov_b32 s{S_F}, 0')
    L = A.label(name); LO = A.label(name + 'ok')
    A(f'{L}:')
    A(f'buffer_load_dword {v(tmp)}, {v(tmp+1)}, {SR(SRD_WS)}, 0 offen sc1')
    A('s_waitcnt vmcnt(0)')
    A(f'v_cmp_lt_u32 vcc, {v(tmp)}, {v(tmp+2)}')
    A(f's_add_u32 s{S_F}, s{S_F}, 1')
    A(f's_cmp_lt_u32 s{S_F}, 100000')
    A(f's_cbranch_scc0 {LO}')
    A(f's_cbranch_vccz {LO}')
    A('s_sleep 1')
    A(f's_branch {L}')
    A(f'{LO}:')
    A(f's_mov_b64 exec, s[{S_EX}:{S_EX+1}]')

def gelu_block(A, base, n, tmp, c1v):
    npairs = n // 2
    G = 4
    for p0 in range(0, npairs, G):
        ps = list(range(p0, min(p0 + G, npairs)))
        T = lambda p: tmp + 2 * (p - p0)
        X = lambda p: base + 2 * p
        for p in ps: A(f'v_pk_mul_f32 {v(T(p),2)}, {v(X(p),2)}, {v(X(p),2)}')
        for p in ps: A(f'v_pk_fma_f32 {v(T(p),2)}, {v(T(p),2)}, {s(S_PAIR,2)}, {v(c1v,2)}')
        for p in ps: A(f'v_pk_mul_f32 {v(T(p),2)}, {v(T(p),2)}, {v(X(p),2)}')
        for p in ps:
            A(f'v_exp_f32 {v(T(p))}, {v(T(p))}')
            A(f'v_exp_f32 {v(T(p)+1)}, {v(T(p)+1)}')
        for p in ps: A(f'v_pk_add_f32 {v(T(p),2)}, {v(T(p),2)}, {s(S_PAIR+2,2)}')
        for p in ps:
            A(f'v_rcp_f32 {v(T(p))}, {v(T(p))}')
            A(f'v_rcp_f32 {v(T(p)+1)}, {v(T(p)+1)}')
        for p in ps: A(f'v_pk_mul_f32 {v(X(p),2)}, {v(X(p),2)}, {v(T(p),2)}')
def gelu_consts(A, c1v):
    A(f's_mov_b32 s{S_PAIR}, {hex(f2u(GK*GC))}'); A(f's_mov_b32 s{S_PAIR+1}, {hex(f2u(GK*GC))}')
    A(f's_mov_b32 s{S_PAIR+2}, 1.0'); A(f's_mov_b32 s{S_PAIR+3}, 1.0')
    A(f'v_mov_b32 {v(c1v)}, {hex(f2u(GK))}'); A(f'v_mov_b32 {v(c1v+1)}, {hex(f2u(GK))}')
def phi_block(A, base, n, tmp):
    npairs = n // 2
    G = 4
    for p0 in range(0, npairs, G):
        ps = list(range(p0, min(p0 + G, npairs)))
        T = lambda p: tmp + 2 * (p - p0)
        X = lambda p: base + 2 * p
        for p in ps: A(f'v_pk_mul_f32 {v(T(p),2)}, {v(X(p),2)}, {s(S_PAIR,2)}')
        for p in ps:
            A(f'v_exp_f32 {v(T(p))}, {v(T(p))} clamp')
            A(f'v_exp_f32 {v(T(p)+1)}, {v(T(p)+1)} clamp')
        for p in ps:
            A(f'v_max_f32 {v(X(p))}, 0, {v(X(p))}')
            A(f'v_max_f32 {v(X(p)+1)}, 0, {v(X(p)+1)}')
        for p in ps: A(f'v_pk_add_f32 {v(T(p),2)}, {v(T(p),2)}, {s(S_PAIR+2,2)}')
        for p in ps: A(f'v_pk_add_f32 {v(X(p),2)}, {v(X(p),2)}, {v(T(p),2)}')
def phi_consts(A):
    A(f's_mov_b32 s{S_PAIR}, {hex(f2u(LOG2E))}'); A(f's_mov_b32 s{S_PAIR+1}, {hex(f2u(LOG2E))}')
    A(f's_mov_b32 s{S_PAIR+2}, {hex(f2u(1e-6))}'); A(f's_mov_b32 s{S_PAIR+3}, {hex(f2u(1e-6))}')

V_ACC0 = 4; V_ACC1 = 36; V_BF = 60
V_XD = 92; V_B0D = 94; V_B1D = 96; V_WD = 98
V_XR = 100; V_B0R = 102; V_B1R = 106; V_TA = 109; V_T = 115
V_FLAG = 123; V_ID = 124
def XF(tb2, ks): return (tb2 * 16 + ks) * 4

def p1_x_addr(A):
    T0, T1, T2, T3 = V_T, V_T+1, V_T+2, V_T+3
    A(f'v_lshrrev_b32 {v(T0)}, 3, v0'); A(f'v_and_b32 {v(T1)}, 7, v0')
    A(f'v_lshrrev_b32 {v(T2)}, 4, v0'); A(f'v_and_b32 {v(T3)}, 15, v0')
    A(f's_lshl_b32 s{S_A}, s9, 17'); A(f's_lshl_b32 s{S_B}, s6, 14'); A(f's_add_u32 s{S_A}, s{S_A}, s{S_B}')
    A(f'v_xor_b32 {v(V_XD)}, {v(T1)}, {v(T2)}')
    A(f'v_lshlrev_b32 {v(V_XD)}, 4, {v(V_XD)}')
    A(f'v_lshl_add_u32 {v(V_XD)}, {v(T0)}, 10, {v(V_XD)}')
    A(f'v_add_u32 {v(V_XD)}, s{S_A}, {v(V_XD)}')
    A(f'v_xor_b32 {v(V_XD+1)}, 64, {v(V_XD)}')
    A(f'v_add_u32 {v(V_XD+1)}, {8192-1024}, {v(V_XD+1)}')

def p1_b_dma_addr(A, typ):
    T0, T1, T2, T3, T4, T5 = V_T, V_T+1, V_T+2, V_T+3, V_T+4, V_T+5
    A(f's_and_b32 s{S_C}, s6, 1'); A(f's_lshl_b32 s{S_C}, s{S_C}, 2')
    A(f'v_lshrrev_b32 {v(T4)}, 1, {v(T3)}')
    A(f'v_xor_b32 {v(T4)}, {v(T4)}, {v(T2)}')
    A(f'v_xor_b32 {v(T4)}, s{S_C}, {v(T4)}')
    A(f'v_and_b32 {v(T5)}, 1, v0')
    if typ == 'qkv':
        A(f'v_lshlrev_b32 {v(V_B0D)}, 5, {v(T4)}')
        A(f'v_lshl_add_u32 {v(V_B0D)}, {v(T5)}, 4, {v(V_B0D)}')
        A(f'v_lshrrev_b32 {v(T4)}, 2, {v(T4)}')
        A(f'v_mad_u32_u24 {v(V_B0D)}, {v(T4)}, s{S_K3}, {v(V_B0D)}')
        A(f'v_mad_u32_u24 {v(V_B0D)}, {v(T2)}, s{S_K4}, {v(V_B0D)}')
        A(f's_mul_i32 s{S_B}, s6, {8*3072}')
        A(f's_lshl_b32 s{S_D}, s10, 7')
        A(f's_add_u32 s{S_B}, s{S_B}, s{S_D}')
        A(f's_add_u32 s{S_D}, s{S_B}, 1024')
        A(f'v_add_u32 {v(V_B0D)}, s{S_D}, {v(V_B0D)}')
        A(f'v_add_u32 {v(V_B0D+1)}, {4*3072-1024}, {v(V_B0D)}')
    else:
        A(f'v_lshlrev_b32 {v(T4)}, 5, {v(T4)}')
        A(f'v_lshl_add_u32 {v(T4)}, {v(T5)}, 4, {v(T4)}')
        A(f's_mul_i32 s{S_B}, s6, {8*2752}')
        A(f'v_mul_u32_u24 {v(T5)}, 2752, {v(T2)}')
        for (sc, VD) in ((11, V_B0D), (12, V_B1D)):
            A(f's_add_u32 s{S_D}, s{S_B}, s{sc}')
            A(f'v_add_u32 {v(VD)}, s{S_D}, {v(T5)}')
            A(f'v_add_u32 {v(VD+1)}, {4*2752}, {v(VD)}')
            A(f'v_and_b32 {v(VD)}, 0xffffff80, {v(VD)}')
            A(f'v_and_b32 {v(VD+1)}, 0xffffff80, {v(VD+1)}')
            A(f'v_add_u32 {v(VD)}, {v(VD)}, {v(T4)}')
            A(f'v_add_u32 {v(VD+1)}, {v(VD+1)}, {v(T4)}')
            A(f'v_subrev_u32 {v(VD+1)}, 1024, {v(VD+1)}')

def p1_q_dma_addr(A):
    T0, T1, T2, T3, T4, T5 = V_T, V_T+1, V_T+2, V_T+3, V_T+4, V_T+5
    A(f's_and_b32 s{S_C}, s6, 1'); A(f's_lshl_b32 s{S_C}, s{S_C}, 1')
    A(f'v_lshrrev_b32 {v(T4)}, 1, {v(T1)}')
    A(f'v_and_b32 {v(V_B1D)}, 1, {v(T2)}')
    A(f'v_xor_b32 {v(T4)}, {v(T4)}, {v(V_B1D)}')
    A(f'v_xor_b32 {v(T4)}, s{S_C}, {v(T4)}')
    A(f'v_lshlrev_b32 {v(T4)}, 5, {v(T4)}')
    A(f'v_and_b32 {v(T5)}, 1, v0')
    A(f'v_lshl_add_u32 {v(T4)}, {v(T5)}, 4, {v(T4)}')
    A(f'v_mad_u32_u24 {v(T4)}, {v(T0)}, s{S_K4}, {v(T4)}')
    A(f's_mul_i32 s{S_B}, s6, {8*3072}'); A(f's_lshl_b32 s{S_D}, s10, 7'); A(f's_add_u32 s{S_B}, s{S_B}, s{S_D}')
    A(f'v_add_u32 {v(V_B1D)}, s{S_B}, {v(T4)}')

def w_dma_addr(A, WD, T):
    A(f'v_lshrrev_b32 {v(T)}, 4, v0'); A(f'v_and_b32 {v(T+1)}, 15, v0')
    A(f's_and_b32 s{S_A}, s6, 1'); A(f's_lshl_b32 s{S_A}, s{S_A}, 3')
    A(f'v_xor_b32 {v(T+2)}, {v(T+1)}, {v(T)}')
    A(f'v_xor_b32 {v(T+2)}, s{S_A}, {v(T+2)}')
    A(f'v_lshlrev_b32 {v(T+2)}, 4, {v(T+2)}')
    A(f'v_lshl_add_u32 {v(T+2)}, {v(T)}, 12, {v(T+2)}')
    A(f's_lshl_b32 s{S_A}, s{S_T2}, 18'); A(f's_lshl_b32 s{S_B}, s6, 15'); A(f's_add_u32 s{S_A}, s{S_A}, s{S_B}')
    A(f'v_add_u32 {v(WD)}, s{S_A}, {v(T+2)}')
    A(f'v_xor_b32 {v(WD+1)}, 64, {v(WD)}')
    A(f'v_add_u32 {v(WD+1)}, {4*4096-1024}, {v(WD+1)}')

def w_dma_addr4(A, WD, T):
    A(f'v_lshrrev_b32 {v(T)}, 4, v0'); A(f'v_and_b32 {v(T+1)}, 15, v0')
    A(f'v_xor_b32 {v(T+2)}, {v(T+1)}, {v(T)}')
    A(f'v_lshlrev_b32 {v(T+2)}, 4, {v(T+2)}')
    A(f'v_lshl_add_u32 {v(T+2)}, {v(T)}, 12, {v(T+2)}')
    A(f's_lshl_b32 s{S_A}, s{S_T2}, 18'); A(f's_lshl_b32 s{S_B}, s7, 16'); A(f's_add_u32 s{S_A}, s{S_A}, s{S_B}')
    A(f'v_add_u32 {v(WD)}, s{S_A}, {v(T+2)}')
    for e in range(1, 4):
        A(f'v_xor_b32 {v(WD+e)}, {64*e}, {v(WD)}')
        A(f'v_add_u32 {v(WD+e)}, {e*(4*4096-1024)}, {v(WD+e)}')

def p1_read_addr(A, typ):
    T0, T1, T2, T3, T4, T5 = V_T, V_T+1, V_T+2, V_T+3, V_T+4, V_T+5
    A(f'v_lshrrev_b32 {v(T4)}, 1, {v(T3)}')
    A(f'v_xor_b32 {v(T4)}, {v(T4)}, {v(T2)}')
    A(f'v_lshlrev_b32 {v(T4)}, 4, {v(T4)}')
    A(f'v_lshl_add_u32 {v(T4)}, {v(T3)}, 7, {v(T4)}')
    A(f's_lshl_b32 s{S_B}, s7, 12')
    A(f'v_add_u32 {v(V_XR)}, s{S_B}, {v(T4)}')
    A(f'v_xor_b32 {v(V_XR+1)}, 64, {v(V_XR)}')
    RI, KEY, INR = V_TA, V_TA+1, V_TA+2
    A(f'v_lshrrev_b32 {v(RI)}, 2, {v(T3)}')
    A(f'v_and_b32 {v(KEY)}, 1, {v(T2)}')
    A(f'v_lshl_or_b32 {v(KEY)}, {v(KEY)}, 2, {v(RI)}')
    A(f'v_and_b32 {v(INR)}, 3, {v(T3)}')
    A(f'v_lshlrev_b32 {v(INR)}, 3, {v(INR)}')
    A(f'v_lshl_add_u32 {v(RI)}, {v(T2)}, 3, {v(RI)}')
    if typ == 'qkv':
        A(f'v_lshl_add_u32 {v(T5)}, {v(RI)}, 8, {v(INR)}')
        A(f's_lshl_b32 s{S_B}, s8, 1')
        A(f'v_xor_b32 {v(T4)}, s{S_B}, {v(KEY)}')
        for bi in range(4):
            x = [0, 1, 4, 5][bi]
            if x: A(f'v_xor_b32 {v(V_B0R+bi)}, {x}, {v(T4)}')
            else: A(f'v_mov_b32 {v(V_B0R+bi)}, {v(T4)}')
            A(f'v_lshl_add_u32 {v(V_B0R+bi)}, {v(V_B0R+bi)}, 5, {v(T5)}')
        A(f'v_lshrrev_b32 {v(T5)}, 3, {v(T3)}')
        A(f'v_and_b32 {v(T4)}, 1, {v(T2)}')
        A(f'v_lshl_or_b32 {v(T5)}, {v(T4)}, 1, {v(T5)}')
        A(f'v_xor_b32 {v(T5)}, s{S_B}, {v(T5)}')
        A(f'v_lshl_add_u32 {v(T4)}, {v(RI)}, 7, {v(INR)}')
        A(f'v_lshl_add_u32 {v(V_B1R)}, {v(T5)}, 5, {v(T4)}')
        A(f'v_xor_b32 {v(V_B1R+1)}, 32, {v(V_B1R)}')
    else:
        A(f'v_lshl_add_u32 {v(T1)}, {v(RI)}, 8, {v(INR)}')
        A(f'v_mul_u32_u24 {v(T0)}, 2752, {v(RI)}')
        A(f's_mul_i32 s{S_B}, s8, 3')
        for (sc, VR) in ((11, V_B0R), (12, V_B1R)):
            A(f'v_add_u32 {v(T4)}, s{sc}, {v(T0)}')
            A(f'v_bfe_u32 {v(T4)}, {v(T4)}, 5, 2')
            A(f'v_add_u32 {v(T4)}, s{S_B}, {v(T4)}')
            for bi in range(3):
                A(f'v_add_u32 {v(T5)}, {bi}, {v(T4)}')
                A(f'v_and_b32 {v(T5)}, 7, {v(T5)}')
                A(f'v_xor_b32 {v(T5)}, {v(T5)}, {v(KEY)}')
                A(f'v_lshl_add_u32 {v(VR+bi)}, {v(T5)}, 5, {v(T1)}')

W_ORDER = [0,4,8,12, 1,5,9,13, 2,6,10,14, 3,7,11,15]
def w_issue_list(A, vm, k, slot, tag, form=2):
    kq, r = k % 4, k // 4
    out = []
    for e in range(form):
        def f(e=e):
            def body():
                if form == 2: A(f's_add_u32 m0, s{S_LW}, {slot*UNIT}')
                else: A(f's_lshl_b32 m0, s7, 12'); A(f's_add_u32 m0, m0, {slot*UNIT}')
                A(f's_add_u32 s{S_SOFF}, s{S_R0}, {r}'); A(f's_and_b32 s{S_SOFF}, s{S_SOFF}, 3'); A(f's_lshl_b32 s{S_SOFF}, s{S_SOFF}, 8')
                if kq: A(f's_add_u32 s{S_SOFF}, s{S_SOFF}, {1024*kq}')
                A(f'buffer_load_dwordx4 {v(V_WD+e)}, {SR(SRD_WSP)}, s{S_SOFF} offen offset:{e*1024} {CFG["wspf"]} lds')
            if form == 2:
                body(); vm.issue(tag)
            else:
                if_s(A, ('lg', 's8', 0), body); vm.issue(tag, who=(1,))
        out.append(f)
    return out
def w_issue_ch1(A, vm, ks):
    def body():
        for k in ks:
            kq, r = k % 4, k // 4
            A(f's_lshl_b32 m0, s7, 12'); A(f's_add_u32 m0, m0, {(k % 8)*UNIT}')
            A(f's_add_u32 s{S_SOFF}, s{S_R0}, {r}'); A(f's_and_b32 s{S_SOFF}, s{S_SOFF}, 3'); A(f's_lshl_b32 s{S_SOFF}, s{S_SOFF}, 8')
            if kq: A(f's_add_u32 s{S_SOFF}, s{S_SOFF}, {1024*kq}')
            for e in range(4):
                A(f'buffer_load_dwordx4 {v(V_WD+e)}, {SR(SRD_WSP)}, s{S_SOFF} offen offset:{e*1024} {CFG["wspf"]} lds')
            vm.issue(('w', k), 4, who=(1,))
    if_s(A, ('lg', 's8', 0), body)

def p1_units():
    U = []
    for c in range(8): U.append(('x', c)); U.append(('b0', c))
    for c in range(8): U.append(('b1', c))
    for k in range(16): U.append(('w', k))
    return U
def unit_addr(n): return (n % NU) * UNIT

def p1_issue_list(A, typ, vm, n, U):
    kind, c = U[n]
    base = unit_addr(n)
    if kind == 'w': return w_issue_list(A, vm, c, n % NU, n, form=(2 if typ == 'qkv' else 4))
    rowbytes = 3072 if typ == 'qkv' else 2752
    if kind == 'x': VD, srd_, so, step, cnt_, lw, fl = V_XD, SRD_X, S_XO, 128, 2, S_LW, CFG['xf']
    elif kind == 'b0': VD, srd_, so, step, cnt_, lw, fl = V_B0D, SRD_WB, S_B0O, 64*rowbytes, 2, S_LW, CFG['wf']
    elif typ == 'win': VD, srd_, so, step, cnt_, lw, fl = V_B1D, SRD_WB, S_B1O, 64*rowbytes, 2, S_LW, CFG['wf']
    else: VD, srd_, so, step, cnt_, lw, fl = V_B1D, SRD_WB, S_B1O, 64*rowbytes, 1, S_LW1, CFG['wf']
    out = []
    for e in range(cnt_):
        def f(e=e):
            A(f's_add_u32 m0, s{lw}, {base}')
            A('s_nop 0')
            A(f'buffer_load_dwordx4 {v(VD+e)}, {SR(srd_)}, s{so} offen offset:{e*1024} {fl} lds')
            if e == cnt_ - 1:
                A(f's_add_u32 s{so}, s{so}, {step}')
                A(f's_cmp_eq_u32 s{so}, {8*step}')
                A(f's_cselect_b32 s{so}, 0, s{so}')
            vm.issue(n)
        out.append(f)
    return out

def p1_blocks(A, typ, grp, vm, U, state, sync_at, limit):
    nblk = {('qkv',0):4, ('qkv',1):2, ('win',0):3, ('win',1):3}[(typ, grp)]
    rowb = 128 if (typ, grp) == ('qkv', 1) else 256
    VR = V_B0R if grp == 0 else V_B1R
    ACC = V_ACC0 if grp == 0 else V_ACC1
    swapped = not (typ == 'qkv' and grp == 0)
    blocks = []
    pend = []
    for c in range(8):
        need = [2*c, 2*c+1] if grp == 0 else [16 + c]
        bbase = unit_addr(need[-1]); xb = unit_addr(need[0])
        hiB = (bbase + 16384 > 65536); hiX = (xb + 16384 > 65536)
        for kk in range(2):
            ks = 2*c + kk
            blk = dict(reads=[], mfmas=[], extra=[])
            if kk == 0:
                def pre(c=c, bbase=bbase, xb=xb, hiB=hiB, hiX=hiX):
                    if c in sync_at:
                        tag = (16 + sync_at[c]) if grp else (2*sync_at[c] + 1)
                        vm.wait(A, tag, state.get('also_mark', {}).get((grp, c)))
                        A('s_barrier')
                        if grp == 0 and c < 4 and CFG.get('finestamp'): stamp(A, f'sy{c}')
                    if (grp, c) in state.get('hooks', {}): state['hooks'][(grp, c)]()
                    if hiB:
                        for bi in range(nblk): A(f'v_add_u32 {v(V_TA+bi)}, {bbase}, {v(VR+bi)}')
                    if grp == 0 and hiX:
                        for k in range(2): A(f'v_add_u32 {v(V_TA+4+k)}, {xb}, {v(V_XR+k)}')
                blk['pre'] = pre
                if c in sync_at:
                    todo = []
                    while state['issued'] < limit and state['issued'] - NU <= need[0] - 1 and len(todo) < state['maxper']:
                        todo.append(state['issued']); state['issued'] += 1
                    pend = [('u', n) for n in todo]
                h = (len(pend) + 1) // 2
                blk['units'] = [p[1] for p in pend[:h]]; pend = pend[h:]
            else:
                blk['units'] = [p[1] for p in pend]; pend = []
            baddr = [((V_TA+bi, 0) if hiB else (VR+bi, bbase)) for bi in range(nblk)]
            if grp == 0:
                xa = (V_TA+4+kk, 0) if hiX else (V_XR+kk, xb)
                for tb2 in range(2):
                    blk['reads'].append(f'ds_read_b128 {a(XF(tb2,ks),4)}, {v(xa[0])} offset:{xa[1] + tb2*2048}')
            for bi in range(nblk):
                r0 = V_BF + kk*16 + bi*4
                off = baddr[bi][1] + kk*32*rowb
                blk['reads'].append(f'ds_read_b64_tr_b16 {v(r0,2)}, {v(baddr[bi][0])} offset:{off}')
                blk['reads'].append(f'ds_read_b64_tr_b16 {v(r0+2,2)}, {v(baddr[bi][0])} offset:{off + 4*rowb}')
            for bi in range(nblk):
                for tb2 in range(2):
                    acc = ACC + (bi*2 + tb2)*4
                    cin = '0' if ks == 0 else v(acc,4)
                    xf = a(XF(tb2,ks),4); bf = v(V_BF + kk*16 + bi*4, 4)
                    blk['mfmas'].append(f'v_mfma_f32_16x16x32_bf16 {v(acc,4)}, {bf}, {xf}, {cin}' if swapped
                                        else f'v_mfma_f32_16x16x32_bf16 {v(acc,4)}, {xf}, {bf}, {cin}')
            blocks.append(blk)
    for blk in blocks:
        ex = []
        for n in blk['units']: ex += p1_issue_list(A, typ, vm, n, U)
        blk['extra'] = ex
    return blocks

def p1_qkv_epi0(A, vm, extras):
    SF = CFG['sf']
    phi_consts(A)
    SP = Sprinkle(A, extras, 4)
    phi_block(SP, V_ACC0, 16, V_BF)
    SP.flush()
    PK = V_BF + 8; PV = V_BF + 16; ONE = V_BF + 24; D = V_ACC1
    for hh in range(2):
        for tb2 in range(2):
            k = V_ACC0 + (hh*2+tb2)*4; vv = V_ACC0 + ((2+hh)*2+tb2)*4
            A(f'v_cvt_pk_bf16_f32 {v(PK+hh*4+tb2*2)}, {v(k)}, {v(k+1)}')
            A(f'v_cvt_pk_bf16_f32 {v(PK+hh*4+tb2*2+1)}, {v(k+2)}, {v(k+3)}')
            A(f'v_cvt_pk_bf16_f32 {v(PV+hh*4+tb2*2)}, {v(vv)}, {v(vv+1)}')
            A(f'v_cvt_pk_bf16_f32 {v(PV+hh*4+tb2*2+1)}, {v(vv+2)}, {v(vv+3)}')
    for i in range(4): A(f'v_mov_b32 {v(ONE+i)}, 0x3f803f80')
    for hh in range(2):
        A(f'v_mfma_f32_16x16x32_bf16 {v(D+hh*8,4)}, {v(PK+hh*4,4)}, {v(PV+hh*4,4)}, 0')
        A(f'v_mfma_f32_16x16x32_bf16 {v(D+hh*8+4,4)}, {v(PK+hh*4,4)}, {v(ONE,4)}, 0')
    T = V_T
    A(f's_lshl_b32 s{S_A}, s8, 13'); A(f's_lshl_b32 s{S_B}, s7, 10')
    A(f's_add_u32 s{S_A}, s{S_A}, s{S_B}'); A(f's_add_u32 s{S_A}, s{S_A}, {SCR}')
    A(f'v_lshlrev_b32 {v(T)}, 4, v0')
    A(f'v_add_u32 {v(T+1)}, s{S_A}, {v(T)}')
    for hh in range(2):
        A(f'ds_write_b128 {v(T+1)}, {v(D+hh*8,4)} offset:{hh*4096}')
        A(f'ds_write_b128 {v(T+1)}, {v(D+hh*8+4,4)} offset:{16384 + hh*4096}')
    A('s_waitcnt lgkmcnt(0)')

def p1_qkv_epi0b(A, vm):
    SF = CFG['sf']
    T = V_T
    A(f's_lshl_b32 s{S_A}, s7, 12'); A(f's_lshl_b32 s{S_B}, s8, 14'); A(f's_add_u32 s{S_A}, s{S_A}, s{S_B}')
    A(f's_add_u32 s{S_A}, s{S_A}, {SCR}')
    A(f'v_lshlrev_b32 {v(T)}, 4, v0')
    A(f'v_add_u32 {v(T+1)}, s{S_A}, {v(T)}')
    R = V_ACC0
    for i in range(4): A(f'ds_read_b128 {v(R+4*i,4)}, {v(T+1)} offset:{i*1024}')
    A(f's_lshl_b32 s{S_A}, s9, 5'); A(f's_lshl_b32 s{S_C}, s10, 2'); A(f's_add_u32 s{S_A}, s{S_A}, s{S_C}'); A(f's_add_u32 s{S_A}, s{S_A}, s7')
    A('s_waitcnt lgkmcnt(0)')
    for h in range(2):
        A(f'v_pk_add_f32 {v(R+2*h,2)}, {v(R+2*h,2)}, {v(R+4+2*h,2)}')
        A(f'v_pk_add_f32 {v(R+8+2*h,2)}, {v(R+8+2*h,2)}, {v(R+12+2*h,2)}')
    for h in range(2): A(f'v_pk_add_f32 {v(R+2*h,2)}, {v(R+2*h,2)}, {v(R+8+2*h,2)}')
    LZ = A.label('kz'); LJ = A.label('kzj')
    A('s_cmp_lg_u32 s8, 0'); A(f's_cbranch_scc1 {LZ}')
    A(f's_lshl_b32 s{S_A}, s{S_A}, 10'); A(f's_add_u32 s{S_A}, s{S_A}, {KVP}')
    ws_store(A, 4, R, T, f's{S_A}', SF)
    A(f's_branch {LJ}')
    A(f'{LZ}:')
    A(f's_lshl_b32 s{S_A}, s{S_A}, 6'); A(f's_add_u32 s{S_A}, s{S_A}, {KZ}')
    A(f'v_and_b32 {v(T+2)}, 0x30, v0')
    A(f's_mov_b64 s[{S_EX}:{S_EX+1}], exec')
    A(f's_mov_b32 exec_lo, 0x00010001'); A(f's_mov_b32 exec_hi, 0x00010001')
    ws_store(A, 4, R, T+2, f's{S_A}', SF)
    A(f's_mov_b64 exec, s[{S_EX}:{S_EX+1}]')
    A(f'{LJ}:')
    vm.issue('kvp')

def p1_qkv_epi1(A, vm):
    SF = CFG['sf']
    T = V_T
    phi_consts(A)
    phi_block(A, V_ACC1, 16, V_BF + 8)
    A(f'v_lshlrev_b32 {v(T)}, 4, v0')
    A(f's_lshl_b32 s{S_A}, s10, 2'); A(f's_lshl_b32 s{S_B}, s8, 1'); A(f's_add_u32 s{S_A}, s{S_A}, s{S_B}')
    A(f's_lshl_b32 s{S_A}, s{S_A}, 6')
    A(f's_lshl_b32 s{S_B}, s9, 2'); A(f's_add_u32 s{S_A}, s{S_A}, s{S_B}'); A(f's_add_u32 s{S_A}, s{S_A}, s7')
    A(f's_lshl_b32 s{S_A}, s{S_A}, 10'); A(f's_add_u32 s{S_A}, s{S_A}, {QO}')
    for hh in range(2):
        for tb2 in range(2):
            q = V_ACC1 + (hh*2+tb2)*4
            P = V_BF + (hh*2+tb2)*2
            A(f'v_cvt_pk_bf16_f32 {v(P)}, {v(q)}, {v(q+1)}')
            A(f'v_cvt_pk_bf16_f32 {v(P+1)}, {v(q+2)}, {v(q+3)}')
        A(f's_add_u32 s{S_B}, s{S_A}, {hh*65536}')
        ws_store(A, 4, V_BF + hh*4, T, f's{S_B}', SF)
    vm.issue('q', 2)

def p1_win_epi0(A, vm, extras):
    c1v = V_BF + 30
    gelu_consts(A, c1v)
    SP = Sprinkle(A, extras, 8)
    gelu_block(SP, V_ACC0, 24, V_BF, c1v)
    SP.flush()
    stamp(A, 'e0gelu')
    ST = V_BF + 8
    P1 = [ST, ST+2]; P2 = [ST+4, ST+6]
    for i in range(8): A(f'v_mov_b32 {v(ST+i)}, 0')
    for bi in range(3):
        def body(bi=bi):
            for tb2 in range(2):
                z = V_ACC0 + (bi*2+tb2)*4
                for h in range(2):
                    A(f'v_pk_add_f32 {v(P1[tb2],2)}, {v(P1[tb2],2)}, {v(z+2*h,2)}')
                    A(f'v_pk_fma_f32 {v(P2[tb2],2)}, {v(z+2*h,2)}, {v(z+2*h,2)}, {v(P2[tb2],2)}')
        if_s(A, ('gt', 's13', bi), body)
    a0, a1, b0, b1 = ST+8, ST+9, ST+10, ST+11
    A(f'v_add_f32 {v(a0)}, {v(P1[0])}, {v(P1[0]+1)}'); A(f'v_add_f32 {v(a1)}, {v(P1[1])}, {v(P1[1]+1)}')
    A(f'v_add_f32 {v(b0)}, {v(P2[0])}, {v(P2[0]+1)}'); A(f'v_add_f32 {v(b1)}, {v(P2[1])}, {v(P2[1]+1)}')
    A(f'v_permlane32_swap_b32 {v(a0)}, {v(a1)}'); A(f'v_permlane32_swap_b32 {v(b0)}, {v(b1)}')
    A(f'v_add_f32 {v(a0)}, {v(a0)}, {v(a1)}'); A(f'v_add_f32 {v(b0)}, {v(b0)}, {v(b1)}')
    A(f'v_permlane16_swap_b32 {v(a0)}, {v(b0)}')
    A(f'v_add_f32 {v(a0)}, {v(a0)}, {v(b0)}')
    T = V_T
    A(f'v_lshlrev_b32 {v(T)}, 2, v0')
    A(f's_lshl_b32 s{S_A}, s7, 8'); A(f's_add_u32 s{S_A}, s{S_A}, {SCR}')
    A(f'v_add_u32 {v(T+1)}, s{S_A}, {v(T)}')
    A(f'v_mov_b32 {v(T+6)}, {v(a0)}')
    def w1():
        A(f'ds_write_b32 {v(T+1)}, {v(a0)}')
        A('s_waitcnt lgkmcnt(0)')
    if_s(A, ('lg', 's8', 0), w1)

def p1_win_epi0b(A, vm):
    T = V_T
    def body():
        A(f'ds_read_b32 {v(T+2)}, {v(T+1)}')
        A(f's_lshl_b32 s{S_A}, s9, 2'); A(f's_add_u32 s{S_A}, s{S_A}, s7'); A(f's_lshl_b32 s{S_A}, s{S_A}, 3')
        A(f's_add_u32 s{S_A}, s{S_A}, s14'); A(f's_lshl_b32 s{S_A}, s{S_A}, 8'); A(f's_add_u32 s{S_A}, s{S_A}, {STATS}')
        A('s_waitcnt lgkmcnt(0)')
        A(f'v_add_f32 {v(T+2)}, {v(T+2)}, {v(T+6)}')
        ws_store(A, 1, T+2, T, f's{S_A}', 'sc1')
    if_s(A, ('eq', 's8', 0), body)

def flag_load(A):
    def body():
        A(f'v_mov_b32 {v(V_FLAG+0)}, 0')
        A(f'buffer_load_dword {v(V_FLAG)}, {v(V_FLAG)}, {SR(SRD_DBG)}, 0 offen sc1')
    if_s(A, ('eq', 's6', 0), body)
def flag_check(A, tmp):
    L = A.label('fl')
    A(f'v_readfirstlane_b32 s{S_E}, {v(V_FLAG)}')
    A(f's_cmp_lg_u32 s{S_E}, 0'); A(f's_cbranch_scc1 {L}')
    poll(A, SRD_DBG, '0', 1, tmp, 'flp')
    A(f'{L}:')

SREC = [92, 93, 94, 95, 102, 103, 104, 105]
def win_stats_poll_issue(A, vm):
    def body():
        A(f's_lshl_b32 s{S_POLL}, s9, 8'); A(f's_add_u32 s{S_POLL}, s{S_POLL}, {cnt(C_STATS)}')
        A('v_mov_b32 v3, 0')
        A(f's_mov_b32 s{S_K4}, 0')
        A(f'buffer_load_dword v2, v3, {SR(SRD_WS)}, s{S_POLL} offen sc1')
    if_s(A, ('eq', 's8', 0), body)
def stats_rec_loads(A):
    A('v_lshlrev_b32 v3, 2, v0')
    A(f's_lshl_b32 s{S_A}, s9, 2'); A(f's_add_u32 s{S_A}, s{S_A}, s7'); A(f's_lshl_b32 s{S_A}, s{S_A}, 11')
    A(f's_add_u32 s{S_A}, s{S_A}, {STATS}')
    for p in range(8):
        A(f'buffer_load_dword {v(SREC[p])}, v3, {SR(SRD_WS)}, s{S_A} offen offset:{p*256} sc1')
def win_stats_load(A, vm, again):
    def body():
        L = A.label('sr'); LN = A.label('srn')
        if not again: pass
        A(f's_cmp_lg_u32 s{S_K4}, 0'); A(f's_cbranch_scc1 {L}')
        A('s_waitcnt vmcnt(0)')
        A(f'v_readfirstlane_b32 s{S_E}, v2')
        A(f's_cmp_lt_u32 s{S_E}, 8'); A(f's_cbranch_scc1 {LN}')
        stats_rec_loads(A)
        A(f's_mov_b32 s{S_K4}, 1')
        A(f's_branch {L}')
        A(f'{LN}:')
        if again:
            A('v_mov_b32 v3, 0')
            A(f'buffer_load_dword v2, v3, {SR(SRD_WS)}, s{S_POLL} offen sc1')
        A(f'{L}:')
    if_s(A, ('eq', 's8', 0), body)

def win_tail(A, vm):
    SF = CFG['sf']
    T = V_T + 1
    ST = V_BF
    ch0 = lambda body: if_s(A, ('eq', 's8', 0), body)
    ch1 = lambda body: if_s(A, ('lg', 's8', 0), body)
    p1_gate(A)
    win_stats_load(A, vm, False)
    A(f'v_lshlrev_b32 {v(T)}, 4, v0')
    A(f's_lshl_b32 s{S_A}, s7, 10'); A(f's_add_u32 s{S_A}, s{S_A}, {SCR}')
    A(f'v_add_u32 {v(T+1)}, s{S_A}, {v(T)}')
    def st():
        L = A.label('sp')
        A(f's_cmp_lg_u32 s{S_K4}, 0'); A(f's_cbranch_scc1 {L}')
        poll(A, SRD_WS, f's{S_POLL}', 8, 2, 'pst')
        stats_rec_loads(A)
        A(f'{L}:')
        A('s_waitcnt vmcnt(0)')
        R = SREC
        for (x, y) in ((0,1),(2,3),(4,5),(6,7),(0,2),(4,6),(0,4)):
            A(f'v_add_f32 {v(R[x])}, {v(R[x])}, {v(R[y])}')
        A(f'v_mul_f32 {v(ST)}, {hex(f2u(1.0/688.0))}, {v(R[0])}')
        A(f'v_mov_b32 {v(ST+1)}, {v(ST)}')
        A(f'v_permlane16_swap_b32 {v(ST)}, {v(ST+1)}')
        A(f'v_fma_f32 {v(ST+1)}, -{v(ST)}, {v(ST)}, {v(ST+1)}')
        A(f'v_add_f32 {v(ST+1)}, {hex(f2u(1e-5))}, {v(ST+1)}')
        A(f'v_rsq_f32 {v(ST+1)}, {v(ST+1)}')
        A(f'v_mul_f32 {v(ST)}, {v(ST)}, {v(ST+1)}')
        A(f'v_mov_b32 {v(ST+2)}, {v(ST)}'); A(f'v_mov_b32 {v(ST+3)}, {v(ST+1)}')
        A(f'v_permlane32_swap_b32 {v(ST)}, {v(ST+2)}')
        A(f'v_permlane32_swap_b32 {v(ST+1)}, {v(ST+3)}')
        A(f'ds_write_b128 {v(T+1)}, {v(ST,4)}')
        A('s_waitcnt lgkmcnt(0)')
    ch0(st)
    A(f'v_and_b32 {v(T+3)}, 15, v0'); A(f'v_lshrrev_b32 {v(T+4)}, 4, v0')
    A(f'v_lshlrev_b32 {v(T+4)}, 2, {v(T+4)}')
    A(f'v_sub_u32 {v(T+3)}, {v(T+3)}, {v(T+4)}')
    A(f'v_mov_b32 {v(T+4)}, 0x3f80'); A(f'v_mov_b32 {v(T+5)}, 0x3f800000')
    for half in range(2):
        A(f'v_cmp_eq_u32 vcc, {2*half}, {v(T+3)}')
        A(f'v_cndmask_b32 {v(V_ID+half)}, 0, {v(T+4)}, vcc')
        A(f'v_cmp_eq_u32 vcc, {2*half+1}, {v(T+3)}')
        A(f'v_cndmask_b32 {v(V_ID+half)}, {v(V_ID+half)}, {v(T+5)}, vcc')
    A('s_barrier')
    stamp(A, 'e1bar')
    def rd():
        A(f'ds_read_b128 {v(ST,4)}, {v(T+1)}')
        A('s_waitcnt lgkmcnt(0)')
    ch1(rd)
    RS = [ST+4, ST+6]; MS = [ST+8, ST+10]
    for tb2 in range(2):
        for h in range(2):
            A(f'v_mov_b32 {v(RS[tb2]+h)}, {v(ST+1+2*tb2)}')
            A(f'v_mov_b32 {v(MS[tb2]+h)}, {v(ST+2*tb2)}')
    PK = V_BF + 12
    DD = V_ACC0
    P = V_BF + 16
    for bi in range(3):
        for tb2 in range(2):
            z = V_ACC0 + (bi*2+tb2)*4
            for h in range(2):
                A(f'v_pk_fma_f32 {v(z+2*h,2)}, {v(z+2*h,2)}, {v(RS[tb2],2)}, {v(MS[tb2],2)} neg_lo:[0,0,1] neg_hi:[0,0,1]')
        pk = [V_BF + 12, V_BF + 28][bi % 2]
        for tb2 in range(2):
            z = V_ACC0 + (bi*2+tb2)*4
            A(f'v_cvt_pk_bf16_f32 {v(pk+tb2*2)}, {v(z)}, {v(z+1)}')
            A(f'v_cvt_pk_bf16_f32 {v(pk+tb2*2+1)}, {v(z+2)}, {v(z+3)}')
        for tb2 in range(2):
            z = V_ACC0 + (bi*2+tb2)*4
            A(f'v_mfma_f32_16x16x16_bf16 {v(z,4)}, {v(pk+tb2*2,2)}, {v(V_ID,2)}, 0')
    for bi in range(3):
        for tb2 in range(2):
            z = V_ACC0 + (bi*2+tb2)*4
            A(f'v_cvt_pk_bf16_f32 {v(P+bi*4+tb2*2)}, {v(z)}, {v(z+1)}')
            A(f'v_cvt_pk_bf16_f32 {v(P+bi*4+tb2*2+1)}, {v(z+2)}, {v(z+3)}')
    A(f's_mul_i32 s{S_A}, s7, 3072'); A(f's_add_u32 s{S_A}, s{S_A}, {SCR + 4096}')
    A(f'v_add_u32 {v(T+1)}, s{S_A}, {v(T)}')
    def wr():
        for bi in range(3): A(f'ds_write_b128 {v(T+1)}, {v(P+bi*4,4)} offset:{bi*1024}')
        n1 = vm.counts(24+3)[1]
        A(f's_waitcnt vmcnt({n1}) lgkmcnt(0)')
    ch1(wr)
    A('s_barrier')
    stamp(A, 'e1b2')
    A(f's_lshl_b32 s{S_K3}, s{S_K2}, 6'); A(f's_lshl_b32 s{S_B}, s9, 2'); A(f's_add_u32 s{S_K3}, s{S_K3}, s{S_B}'); A(f's_add_u32 s{S_K3}, s{S_K3}, s7')
    A(f's_lshl_b32 s{S_K3}, s{S_K3}, 10')
    if Z2T: A(f's_add_u32 s{S_K3}, s{S_K3}, {Z2T}')
    PZ = V_ACC0 + 12
    def z1_store():
        A(f's_lshl_b32 s{S_A}, s9, 2'); A(f's_add_u32 s{S_A}, s{S_A}, s7'); A(f's_mul_i32 s{S_A}, s{S_A}, 43')
        A(f's_mul_i32 s{S_B}, s8, 3'); A(f's_add_u32 s{S_A}, s{S_A}, s{S_B}'); A(f's_add_u32 s{S_A}, s{S_A}, s{S_K1}')
        A(f's_lshl_b32 s{S_A}, s{S_A}, 10'); A(f's_add_u32 s{S_A}, s{S_A}, {Z1}')
        for bi in range(3):
            for tb2 in range(2):
                z = V_ACC1 + (bi*2+tb2)*4
                A(f'v_cvt_pk_bf16_f32 {v(PZ+bi*4+tb2*2)}, {v(z)}, {v(z+1)}')
                A(f'v_cvt_pk_bf16_f32 {v(PZ+bi*4+tb2*2+1)}, {v(z+2)}, {v(z+3)}')
        for bi in range(3):
            A(f's_add_u32 s{S_B}, s{S_A}, {bi*1024}')
            A(f's_cmp_gt_u32 s13, {bi}'); A(f's_cselect_b32 s{S_B}, s{S_B}, {WS_USED}')
            ws_store(A, 4, PZ + bi*4, T, f's{S_B}', SF)
    def c0a():
        Q = V_ACC0
        for bi in range(3): A(f'ds_read_b128 {v(Q+bi*4,4)}, {v(T+1)} offset:{bi*1024}')
        for bi in range(3):
            A(f's_add_u32 s{S_B}, s{S_K3}, {bi*65536}')
            A(f's_cmp_gt_u32 s13, {bi}'); A(f's_cselect_b32 s{S_B}, s{S_B}, {WS_USED}')
            ws_store(A, 4, P+bi*4, T, f's{S_B}', SF)
        A('s_waitcnt lgkmcnt(0)')
        for bi in range(3):
            A(f's_add_u32 s{S_B}, s{S_K3}, {(3+bi)*65536}')
            A(f's_cmp_lg_u32 s14, 7'); A(f's_cselect_b32 s{S_B}, s{S_B}, {WS_USED}')
            ws_store(A, 4, Q+bi*4, T, f's{S_B}', SF)
    ch0(c0a)
    w_issue_ch1(A, vm, [6, 7])
    w_read_addr(A, V_T + 3)
    w_consume(A, 0, W_TMP)
    A('s_waitcnt lgkmcnt(0)')
    A('s_barrier')
    stamp(A, 'e1b3')
    def c0b():
        A('s_waitcnt vmcnt(0)')
        A(f's_mov_b64 s[{S_EX}:{S_EX+1}], exec'); A('s_mov_b64 exec, 1')
        A(f'v_mov_b32 v2, {LCNT}'); A('v_mov_b32 v3, 1')
        A('ds_add_rtn_u32 v2, v2, v3')
        A('s_waitcnt lgkmcnt(0)')
        A(f'v_readfirstlane_b32 s{S_E}, v2')
        A(f's_mov_b64 exec, s[{S_EX}:{S_EX+1}]')
        def sig():
            A(f's_lshl_b32 s{S_A}, s14, 8'); A(f's_add_u32 s{S_A}, s{S_A}, {cnt(C_WIN)}')
            signal(A, S_A, 2)
        if_s(A, ('eq', f's{S_E}', 3), sig)
        stamp(A, 'p1sig')
        z1_store()
    ch0(c0b)
    w_issue_ch1(A, vm, range(8, 12))
    def c1b():
        z1_store()
        A('s_waitcnt vmcnt(19)')
    ch1(c1b)
    A('s_barrier')
    w_consume(A, 1, W_TMP)
    A('s_waitcnt lgkmcnt(0)')
    A('s_barrier')
    w_issue_ch1(A, vm, range(12, 16))
    ch1(lambda: A('s_waitcnt vmcnt(16)'))
    A('s_barrier')
    w_consume(A, 2, W_TMP)
    A('s_waitcnt vmcnt(0)')
    A('s_barrier')
    def sigz():
        A(f's_lshl_b32 s{S_A}, s14, 8'); A(f's_add_u32 s{S_A}, s{S_A}, {cnt(C_Z1)}')
        signal(A, S_A, 2)
    if_s(A, ('eq', 's6', 0), sigz)
    w_consume(A, 3, W_TMP)
    A('s_waitcnt lgkmcnt(0)')

def qkv_tail(A, vm, U, state):
    A('s_barrier')
    stamp(A, 'e1bar')
    p1_qkv_epi1(A, vm)
    while state['issued'] < 32:
        for f in p1_issue_list(A, 'qkv', vm, state['issued'], U): f()
        state['issued'] += 1
    w_read_addr(A, V_T)
    vm.wait(A, 24+3)
    A('s_barrier')
    w_consume(A, 0, W_TMP)
    A('s_waitcnt vmcnt(0)')
    A('s_barrier')
    def sig():
        A(f's_lshl_b32 s{S_A}, s10, 8'); A(f's_add_u32 s{S_A}, s{S_A}, {cnt(C_QKV)}')
        signal(A, S_A, V_T+7)
    if_s(A, ('eq', 's6', 0), sig)
    stamp(A, 'p1sig')
    w_consume(A, 1, W_TMP)
    A('s_waitcnt lgkmcnt(0)')
    A('s_barrier')
    vm2 = VM2()
    for k in range(8, 16):
        for f in w_issue_list(A, vm2, k, k % 8, ('w', k)): f()
    vm2.wait(A, ('w', 11))
    A('s_barrier')
    w_consume(A, 2, W_TMP)
    A('s_waitcnt vmcnt(0)')
    A('s_barrier')
    w_consume(A, 3, W_TMP)
    A('s_waitcnt lgkmcnt(0)')

def p1_gate(A):
    SF = CFG['sf']
    T = V_T
    def body():
        srd(A, SRD_M, P_GW, 1024)
        A(f'v_and_b32 {v(T+7)}, 0x30, v0')
        G = V_BF
        ACC = V_ACC0
        for half in range(2):
            for k in range(8):
                A(f's_lshl_b32 s{S_A}, s{S_C0}, 1'); A(f's_add_u32 s{S_A}, s{S_A}, {half*8+k}'); A(f's_and_b32 s{S_A}, s{S_A}, 15'); A(f's_lshl_b32 s{S_A}, s{S_A}, 6')
                A(f'buffer_load_dwordx4 {v(G+4*k,4)}, {v(T+7)}, {SR(SRD_M)}, s{S_A} offen')
            A('s_waitcnt vmcnt(0)')
            for k in range(8):
                ks = half*8 + k
                for tb2 in range(2):
                    acc = ACC + tb2*4
                    cin = '0' if ks == 0 else v(acc,4)
                    A(f'v_mfma_f32_16x16x32_bf16 {v(acc,4)}, {a(XF(tb2,ks),4)}, {v(G+4*k,4)}, {cin}')
        for i in range(8): A(f'v_mul_f32 {v(ACC+i)}, {hex(f2u(-LOG2E))}, {v(ACC+i)}')
        for i in range(8): A(f'v_exp_f32 {v(ACC+i)}, {v(ACC+i)}')
        for i in range(8): A(f'v_add_f32 {v(ACC+i)}, 1.0, {v(ACC+i)}')
        for i in range(8): A(f'v_rcp_f32 {v(ACC+i)}, {v(ACC+i)}')
        A(f's_lshl_b32 s{S_A}, s9, 9'); A(f's_lshl_b32 s{S_B}, s7, 7'); A(f's_add_u32 s{S_A}, s{S_A}, s{S_B}')
        A(f's_add_u32 s{S_A}, s{S_A}, {GATE}')
        A(f's_mov_b64 s[{S_EX}:{S_EX+1}], exec')
        A(f's_mov_b32 exec_lo, 0x00010001'); A(f's_mov_b32 exec_hi, 0x00010001')
        for tb2 in range(2):
            A(f'buffer_store_dwordx4 {v(ACC+4*tb2,4)}, {v(T+7)}, {SR(SRD_WS)}, s{S_A} offen offset:{tb2*64} {SF}')
        A(f's_mov_b64 exec, s[{S_EX}:{S_EX+1}]')
    L = A.label('gate')
    A('s_cmp_lg_u32 s14, 7'); A(f's_cbranch_scc1 {L}')
    A('s_cmp_eq_u32 s8, 0'); A(f's_cbranch_scc1 {L}')
    body()
    A(f'{L}:')

def p1_decode(A):
    A('s_and_b32 s60, s2, 7'); A('s_lshr_b32 s61, s2, 3')
    A('s_and_b32 s62, s60, 1'); A('s_lshl_b32 s62, s62, 3'); A('s_and_b32 s63, s61, 7'); A('s_add_u32 s9, s62, s63')
    A('s_lshr_b32 s62, s60, 1'); A('s_lshl_b32 s62, s62, 2'); A('s_lshr_b32 s63, s61, 3'); A('s_add_u32 s10, s62, s63')
    A('s_and_b32 s62, s61, 7'); A('s_lshr_b32 s63, s61, 3'); A('s_add_u32 s62, s62, s63')
    A(f's_and_b32 s62, s62, {CFG["rot"]-1}'); A(f's_mul_i32 s{S_C0}, s62, {8//CFG["rot"]}')

W_RA = 102
W_TMP = 60
def w_read_addr(A, T):
    A(f'v_lshrrev_b32 {v(T)}, 4, v0'); A(f'v_and_b32 {v(T+1)}, 15, v0')
    A(f'v_lshrrev_b32 {v(T+2)}, 1, {v(T)}')
    A(f'v_xor_b32 {v(T+2)}, {v(T+2)}, {v(T+1)}')
    A(f'v_lshlrev_b32 {v(T+2)}, 4, {v(T+2)}')
    A(f'v_and_b32 {v(T+3)}, 1, {v(T)}')
    A(f'v_lshl_add_u32 {v(T+2)}, {v(T+3)}, 3, {v(T+2)}')
    A(f'v_lshl_add_u32 {v(T+2)}, {v(T+1)}, 8, {v(T+2)}')
    A(f's_lshl_b32 s{S_A}, s8, 13')
    A(f'v_add_u32 {v(W_RA)}, s{S_A}, {v(T+2)}')
    for i in range(1, 8): A(f'v_xor_b32 {v(W_RA+i)}, {32*i}, {v(W_RA)}')
def w_consume(A, r, T):
    slot0 = (4*r) % 8
    A(f's_lshl_b32 s{S_A}, s7, 14'); A(f's_add_u32 s{S_A}, s{S_A}, {slot0*UNIT}')
    for i in range(8): A(f'v_add_u32 {v(T+i)}, s{S_A}, {v(W_RA+i)}')
    n = 0
    for sp in range(4):
        for tb2 in range(2):
            d = XF(tb2, 4*r + sp)
            A(f'ds_read_b64 {a(d,2)}, {v(T+2*sp)} offset:{tb2*4096}')
            A(f'ds_read_b64 {a(d+2,2)}, {v(T+2*sp+1)} offset:{tb2*4096}')
            n += 2
            if n == 12: A('s_waitcnt lgkmcnt(6)')

def emit_p1(A):
    LW = A.label('p1win'); LE = A.label('p1end')
    A('s_cmp_ge_u32 s10, 8'); A(f's_cbranch_scc1 {LW}')
    for typ in ('qkv', 'win'):
        U = p1_units()
        vm = VM2()
        if typ == 'qkv':
            srd(A, SRD_WB, P_WQKV, 512*3072)
            A(f's_movk_i32 s{S_K3}, 896'); A(f's_movk_i32 s{S_K4}, 3072')
        else:
            A(f'{LW}:')
            srd(A, SRD_WB, P_WIN, 512*2752)
            A('s_sub_u32 s14, s10, 8')
            A('s_mul_i32 s11, s14, 192'); A('s_mov_b32 s12, s11'); A('s_add_u32 s11, s11, 1408')
            def lo():
                A('s_mov_b32 s11, 1376'); A('s_mov_b32 s12, 1344')
            if_s(A, ('eq', 's14', 7), lo)
        rb_ = 3072 if typ == 'qkv' else 2752
        A(f's_mul_i32 s{S_B0O}, s{S_C0}, {64*rb_}'); A(f's_mov_b32 s{S_B1O}, s{S_B0O}')
        p1_b_dma_addr(A, typ)
        NPRO = CFG['npro']
        for n in range(1, NPRO):
            for f in p1_issue_list(A, typ, vm, n, U): f()
        if False: pass
        vm.v[0].q = [0, 0] + vm.v[0].q; vm.v[1].q = [0, 0] + vm.v[1].q
        stamp(A, 'pro')
        late_setup(A)
        if typ == 'qkv': p1_q_dma_addr(A)
        else:
            A(f's_mul_i32 s{S_K1}, s14, 6'); A(f's_add_u32 s{S_K2}, s{S_K1}, 1')
            A('s_mov_b32 s13, 3')
            def lo2():
                A(f's_mov_b32 s{S_K1}, 42'); A(f's_mov_b32 s{S_K2}, 0'); A('s_xor_b32 s13, s8, 1')
            if_s(A, ('eq', 's14', 7), lo2)
        p1_read_addr(A, typ)
        stamp(A, 'addr')
        state = dict(issued=NPRO, maxper=CFG['maxper'])
        if typ == 'qkv': state['hooks'] = {(0, 4): lambda: emit_init_flag(A)}
        blocks = p1_blocks(A, typ, 0, vm, U, state, {c: c for c in range(8)}, 16)
        if CFG['prof']:
            for c in (0, 3, 7): blocks[2*c+1]['post'] = (lambda c=c: stamp(A, f'g0s{c}'))
        pipeline(A, blocks)
        if CFG['wtouch']:
            A('v_lshrrev_b32 v1, 5, v0'); A('v_lshlrev_b32 v1, 12, v1')
            A('v_and_b32 v2, 31, v0'); A('v_lshl_add_u32 v1, v2, 7, v1')
            A(f's_lshr_b32 s{S_A}, s2, 6'); A(f's_and_b32 s{S_A}, s{S_A}, 3'); A(f's_lshl_b32 s{S_A}, s{S_A}, 4')
            A(f's_lshl_b32 s{S_B}, s6, 1'); A(f's_add_u32 s{S_A}, s{S_A}, s{S_B}')
            A(f's_lshl_b32 s{S_B}, s{S_T2}, 6'); A(f's_add_u32 s{S_A}, s{S_A}, s{S_B}'); A(f's_lshl_b32 s{S_A}, s{S_A}, 12')
            A(f'buffer_load_dword v1, v1, {SR(SRD_WSP)}, s{S_A} offen')
            vm.issue('wt')
        ex = []
        for n in range(16, 22): ex += p1_issue_list(A, typ, vm, n, U)
        state['issued'] = 22
        if typ == 'qkv': p1_qkv_epi0(A, vm, ex)
        else: p1_win_epi0(A, vm, ex)
        if typ == 'qkv': w_dma_addr(A, V_WD, V_T + 2)
        else: w_dma_addr4(A, V_WD, V_T + 2)
        stamp(A, 'epi0')
        state['maxper'] = 2
        def hook0():
            if typ == 'qkv': p1_qkv_epi0b(A, vm)
            else: p1_win_epi0b(A, vm); vm.issue('stst', who=(0,))
            flag_load(A)
            vm.mark('pub')
        def hook2():
            def body():
                flag_check(A, V_T+7)
                if typ == 'win':
                    A(f's_lshl_b32 s{S_A}, s9, 8'); A(f's_add_u32 s{S_A}, s{S_A}, {cnt(C_STATS)}')
                    signal(A, S_A, V_T+7)
            if_s(A, ('eq', 's6', 0), body)
        state['hooks'] = {(1, 0): hook0, (1, 2): hook2}
        if typ == 'win':
            state['hooks'][(1, 4)] = lambda: win_stats_poll_issue(A, vm)
            state['hooks'][(1, 6)] = lambda: win_stats_load(A, vm, True)
        state['also_mark'] = {(1, 2): 'pub'}
        lim = 32 if typ == 'qkv' else 30
        blocks = p1_blocks(A, typ, 1, vm, U, state, {0: 1, 2: 3, 4: 5, 6: 7}, lim)
        if CFG['prof']:
            for c in (1, 3, 7): blocks[2*c+1]['post'] = (lambda c=c: stamp(A, f'g1s{c}'))
        pipeline(A, blocks)
        if typ == 'win': win_tail(A, vm)
        else: qkv_tail(A, vm, U, state)
        stamp(A, 'wdone')
        if typ == 'qkv': A(f's_branch {LE}')
    A(f'{LE}:')

P2_ACC = 4; P2_BF = 52
P2_ZD = 108; P2_ZR = 111; P2_T = 114
ZST = 24576; NZ = 6
def WF(tb2, s_): return XF(tb2, s_)

def p2_decode(A):
    A('s_and_b32 s60, s2, 7'); A('s_lshr_b32 s61, s2, 3')
    A(f's_mov_b32 s9, s{S_T2}')
    A('s_and_b32 s62, s60, 1'); A('s_lshl_b32 s62, s62, 2'); A('s_lshr_b32 s63, s61, 3'); A('s_add_u32 s10, s62, s63')
    A('s_mul_i32 s11, s10, 6'); A('s_add_u32 s11, s11, 1')
    A('s_cmp_eq_u32 s10, 7'); A('s_cselect_b32 s11, 0, s11')

def p2_z_addr(A):
    T = P2_T
    A(f'v_lshlrev_b32 {v(T)}, 4, v0')
    A(f's_mul_i32 s{S_A}, s8, 3'); A(f's_add_u32 s{S_A}, s{S_A}, s11'); A(f's_lshl_b32 s{S_A}, s{S_A}, 16')
    A(f's_lshl_b32 s{S_B}, s7, 14'); A(f's_add_u32 s{S_A}, s{S_A}, s{S_B}')
    for i in range(3):
        A(f's_add_u32 s{S_B}, s{S_A}, {i*65536 - i*1024}')
        A(f'v_add_u32 {v(P2_ZD+i)}, s{S_B}, {v(T)}')
    A(f's_mul_i32 s{S_A}, s7, 6144')
    A(f'v_add_u32 {v(P2_ZR)}, s{S_A}, {v(T)}')
    A(f's_mul_i32 s{S_K1}, s7, 6144'); A(f's_mul_i32 s{S_B}, s8, 3072'); A(f's_add_u32 s{S_K1}, s{S_K1}, s{S_B}')

def p2_z_issue_list(A, vm, st, nf):
    out = []
    for i in range(3 if nf == 6 else 1):
        def f(i=i):
            def body():
                A(f's_add_u32 m0, s{S_K1}, {(st % NZ)*ZST}')
                A(f's_lshl_b32 s{S_SOFF}, s{S_R0}, 2'); A(f's_add_u32 s{S_SOFF}, s{S_SOFF}, {st}'); A(f's_and_b32 s{S_SOFF}, s{S_SOFF}, 15'); A(f's_lshl_b32 s{S_SOFF}, s{S_SOFF}, 10')
                if Z2T: A(f's_add_u32 s{S_SOFF}, s{S_SOFF}, {Z2T}')
                A(f'buffer_load_dwordx4 {v(P2_ZD+i)}, {SR(SRD_WS)}, s{S_SOFF} offen offset:{i*1024} {CFG["zlf"]} lds')
            if nf == 1: if_s(A, ('eq', 's8', 0), body)
            else: body()
            vm.issue(('z', st))
        out.append(f)
    return out

def p2_main(A, vm, nf, hooks):
    blocks = []
    issued = 2
    for st in range(16):
        blk = dict(reads=[], mfmas=[], extra=[])
        base = (st % NZ) * ZST
        hi = base + 6144 > 65535 - 6144
        def pre(st=st, base=base, hi=hi):
            A(f's_waitcnt vmcnt({vm.wait_n(("z", st))})')
            A('s_barrier')
            if hi: A(f'v_add_u32 {v(P2_T)}, {base}, {v(P2_ZR)}')
            if st in hooks: hooks[st]()
        blk['pre'] = pre
        todo = []
        while issued < 16 and issued <= st + NZ - 1 and len(todo) < 2:
            todo.append(issued); issued += 1
        blk['stages'] = todo
        for fbi in range(nf):
            r0 = P2_BF + (st % 2)*24 + fbi*4
            if hi: blk['reads'].append(f'ds_read_b128 {v(r0,4)}, {v(P2_T)} offset:{fbi*1024}')
            else: blk['reads'].append(f'ds_read_b128 {v(r0,4)}, {v(P2_ZR)} offset:{base + fbi*1024}')
        for fbi in range(nf):
            for tb2 in range(2):
                acc = P2_ACC + (tb2*6+fbi)*4
                cin = '0' if st == 0 else v(acc,4)
                blk['mfmas'].append(f'v_mfma_f32_16x16x32_bf16 {v(acc,4)}, {v(P2_BF + (st%2)*24 + fbi*4,4)}, {a(WF(tb2,st),4)}, {cin}')
        blocks.append(blk)
    for blk in blocks:
        ex = []
        for st in blk['stages']: ex += p2_z_issue_list(A, vm, st, nf)
        blk['extra'] = ex
    return blocks

J_REG = [116, 121]
def p2_job_scalars(A, job, nf):
    if nf == 6:
        A(f's_add_u32 s{S_A}, s7, {4*job}')
        A(f's_cmp_ge_u32 s{S_A}, 3'); A(f's_cselect_b32 s{S_B}, 1, 0')
        A(f's_mul_i32 s{S_C}, s{S_B}, 3'); A(f's_sub_u32 s{12+job}, s{S_A}, s{S_C}')
    else:
        A(f's_mov_b32 s{S_B}, s7'); A(f's_mov_b32 s{12+job}, 0')
    A(f's_lshl_b32 s{S_D}, s9, 2'); A(f's_lshl_b32 s{S_E}, s8, 1'); A(f's_add_u32 s{S_D}, s{S_D}, s{S_E}'); A(f's_add_u32 s{S_K3+job}, s{S_D}, s{S_B}')

def p2_epi_loads(A, job, J, nf, T):
    LF = CFG['lf']
    A(f's_lshr_b32 s{S_D}, s{S_K3+job}, 1')
    A(f's_mul_i32 s{S_E}, s{S_D}, 43'); A(f's_add_u32 s{S_E}, s{S_E}, s11'); A(f's_lshl_b32 s{S_C}, s{12+job}, 1'); A(f's_add_u32 s{S_E}, s{S_E}, s{S_C}')
    A(f's_lshl_b32 s{S_E}, s{S_E}, 10'); A(f's_add_u32 s{S_E}, s{S_E}, {Z1}')
    A(f's_and_b32 s{S_D}, s{S_K3+job}, 1'); A(f's_lshl_b32 s{S_D}, s{S_D}, 3'); A(f's_add_u32 s{S_E}, s{S_E}, s{S_D}')
    A(f'v_lshlrev_b32 {v(T)}, 4, v0')
    A(f'buffer_load_dwordx2 {v(J,2)}, {v(T)}, {SR(SRD_WS)}, s{S_E} offen {LF}')
    if nf == 6: A(f'buffer_load_dwordx2 {v(J+2,2)}, {v(T)}, {SR(SRD_WS)}, s{S_E} offen offset:1024 {LF}')
    A(f'v_and_b32 {v(T+1)}, 15, v0')
    A(f'v_lshlrev_b32 {v(T)}, 2, {v(T+1)}')
    A(f's_lshl_b32 s{S_E}, s{S_K3+job}, 6'); A(f's_add_u32 s{S_E}, s{S_E}, {GATE}')
    A(f'buffer_load_dword {v(J+4)}, {v(T)}, {SR(SRD_WS)}, s{S_E} offen {LF}')
    A(f'v_lshlrev_b32 {v(T+1)}, 1, {v(T+1)}')
    A(f's_lshl_b32 s{S_E}, s{S_K3+job}, 5')
    A(f'buffer_load_ushort {v(J+5)}, {v(T+1)}, {SR(SRD_M)}, s{S_E} offen')

def p2_epilogue(A, nf):
    SF = CFG['sf']
    T = P2_T
    JA = P2_BF; JB = P2_BF + 8
    srd(A, SRD_M, P_BSP, 4096)
    def pl():
        A(f's_lshl_b32 s{S_A}, s10, 8'); A(f's_add_u32 s{S_A}, s{S_A}, {cnt(C_Z1)}')
        A(f's_add_u32 s{S_B}, s10, 1'); A(f's_and_b32 s{S_B}, s{S_B}, 7'); A(f's_lshl_b32 s{S_B}, s{S_B}, 8'); A(f's_add_u32 s{S_B}, s{S_B}, {cnt(C_Z1)}')
        A(f's_mov_b32 s{S_C}, {cnt(C_Z1+7)}')
        pollN(A, [(f's{S_A}', 16), (f's{S_B}', 16), (f's{S_C}', 16)], T+6, 'pz1')
    if_s(A, ('eq', 's6', 0), pl)
    A('s_barrier')
    owners = (lambda body: body()) if nf == 6 else (lambda body: if_s(A, ('lt', 's7', 2), body))
    def ld0():
        p2_job_scalars(A, 0, nf); p2_epi_loads(A, 0, JA, nf, T)
    owners(ld0)
    if nf == 6:
        def ld1():
            p2_job_scalars(A, 1, nf); p2_epi_loads(A, 1, JB, nf, T)
        if_s(A, ('lt', 's7', 2), ld1)
    A(f'v_lshlrev_b32 {v(T+4)}, 4, v0')
    A(f's_mul_i32 s{S_A}, s8, 49152'); A(f's_lshl_b32 s{S_B}, s7, 11'); A(f's_add_u32 s{S_A}, s{S_A}, s{S_B}')
    A(f'v_add_u32 {v(T+5)}, s{S_A}, {v(T+4)}')
    if nf == 6:
        for tb2 in range(2):
            for fbi in range(6):
                phi = tb2*3 + fbi//2
                A(f'ds_write_b128 {v(T+5)}, {v(P2_ACC + (tb2*6+fbi)*4,4)} offset:{phi*8192 + (fbi%2)*1024}')
    else:
        for tb2 in range(2):
            A(f'ds_write_b128 {v(T+5)}, {v(P2_ACC + (tb2*6)*4,4)} offset:{tb2*8192}')
    c1v = P2_BF + 46
    gelu_consts(A, c1v)
    nb = 2 if nf == 6 else 1
    def prep(j, J):
        Z = P2_BF + 16 + j*8
        for b in range(nb):
            for h in range(2):
                src = J + b*2 + h
                A(f'v_lshlrev_b32 {v(Z+b*4+2*h)}, 16, {v(src)}')
                A(f'v_and_b32 {v(Z+b*4+2*h+1)}, 0xffff0000, {v(src)}')
        gelu_block(A, Z, 4*nb, P2_BF + 32, c1v)
        A(f'v_lshlrev_b32 {v(J+5)}, 16, {v(J+5)}')
        A(f'v_sub_f32 {v(J+4)}, 1.0, {v(J+4)}')
        A(f'v_mov_b32 {v(J+6)}, {v(J+5)}'); A(f'v_mov_b32 {v(J+7)}, {v(J+5)}')
        A(f'v_mov_b32 {v(J+5)}, {v(J+4)}')
        for b in range(nb):
            for h in range(2):
                A(f'v_pk_mul_f32 {v(Z+b*4+2*h,2)}, {v(Z+b*4+2*h,2)}, {v(J+4,2)}')
    A('s_waitcnt vmcnt(0)')
    owners(lambda: prep(0, JA))
    if nf == 6: if_s(A, ('lt', 's7', 2), lambda: prep(1, JB))
    A('s_waitcnt lgkmcnt(0)')
    A('s_barrier')
    def job(j, J):
        R = P2_ACC
        Z = P2_BF + 16 + j*8
        A(f's_add_u32 s{S_A}, s7, {4*j}'); A(f's_lshl_b32 s{S_A}, s{S_A}, 13')
        A(f's_mul_i32 s{S_B}, s8, 49152'); A(f's_add_u32 s{S_A}, s{S_A}, s{S_B}')
        A(f'v_add_u32 {v(T+5)}, s{S_A}, {v(T+4)}')
        for b in range(nb):
            for k in range(4):
                A(f'ds_read_b128 {v(R + (b*4+k)*4,4)}, {v(T+5)} offset:{k*2048 + b*1024}')
        if nf == 6:
            A(f's_mul_i32 s{S_A}, s{S_K3+j}, 21'); A(f's_mul_i32 s{S_B}, s10, 3'); A(f's_add_u32 s{S_A}, s{S_A}, s{S_B}')
            A(f's_add_u32 s{S_A}, s{S_A}, s{12+j}'); A(f's_lshl_b32 s{S_A}, s{S_A}, 10'); A(f's_add_u32 s{S_A}, s{S_A}, {UO}')
        else:
            A(f's_lshl_b32 s{S_A}, s{S_K3+j}, 9'); A(f's_add_u32 s{S_A}, s{S_A}, {U0}')
        A('s_waitcnt lgkmcnt(0)')
        O = P2_ACC + 32 + j*4
        for b in range(nb):
            R0 = R + b*16
            for h in range(2):
                A(f'v_pk_add_f32 {v(R0+2*h,2)}, {v(R0+2*h,2)}, {v(R0+4+2*h,2)}')
                A(f'v_pk_add_f32 {v(R0+8+2*h,2)}, {v(R0+8+2*h,2)}, {v(R0+12+2*h,2)}')
            for h in range(2): A(f'v_pk_add_f32 {v(R0+2*h,2)}, {v(R0+2*h,2)}, {v(J+6,2)}')
            for h in range(2): A(f'v_pk_add_f32 {v(R0+2*h,2)}, {v(R0+2*h,2)}, {v(R0+8+2*h,2)}')
            for h in range(2): A(f'v_pk_mul_f32 {v(R0+2*h,2)}, {v(R0+2*h,2)}, {v(Z+b*4+2*h,2)}')
            for h in range(2): A(f'v_cvt_pk_bf16_f32 {v(O+b*2+h)}, {v(R0+2*h)}, {v(R0+2*h+1)}')
        if nf == 6:
            ws_store(A, 4, O, T+4, f's{S_A}', SF)
        else:
            A(f'v_lshlrev_b32 {v(T+6)}, 3, v0')
            ws_store(A, 2, O, T+6, f's{S_A}', SF)
    owners(lambda: job(0, JA))
    if nf == 6: if_s(A, ('lt', 's7', 2), lambda: job(1, JB))

def p2_ojob(A):
    SF = CFG['sf']; LF = CFG['lf']
    T = P2_T
    A(f's_lshr_b32 s12, s9, 1')
    def pl():
        A(f's_lshr_b32 s{S_A}, s9, 2'); A(f's_lshl_b32 s{S_A}, s{S_A}, 8'); A(f's_add_u32 s{S_A}, s{S_A}, {cnt(C_QKV)}')
        pollN(A, [(f's{S_A}', 16)], T+6, 'pq')
    if_s(A, ('eq', 's6', 0), pl)
    A('s_barrier')
    A(f's_and_b32 s13, s9, 1'); A(f's_lshl_b32 s13, s13, 6'); A(f's_lshl_b32 s{S_A}, s6, 3'); A(f's_add_u32 s13, s13, s{S_A}')
    A(f's_lshl_b32 s{S_A}, s12, 1'); A(f's_add_u32 s{S_A}, s{S_A}, s8')
    A(f's_lshl_b32 s{S_B}, s7, 7'); A(f's_add_u32 s{S_B}, s{S_B}, s{S_A}')
    A(f's_lshl_b32 s{S_C}, s{S_B}, 6'); A(f's_add_u32 s{S_C}, s{S_C}, {KZ}')
    A(f's_lshl_b32 s{S_B}, s{S_B}, 10'); A(f's_add_u32 s{S_B}, s{S_B}, {KVP}')
    A(f'v_lshlrev_b32 {v(T)}, 4, v0'); A(f'v_and_b32 {v(T+1)}, 0x30, v0')
    R = P2_ACC
    for i in range(4):
        A(f'buffer_load_dwordx4 {v(R+4*i,4)}, {v(T)}, {SR(SRD_WS)}, s{S_B} offen {LF}')
        A(f'buffer_load_dwordx4 {v(R+16+4*i,4)}, {v(T+1)}, {SR(SRD_WS)}, s{S_C} offen {LF}')
        A(f's_add_u32 s{S_B}, s{S_B}, {32*1024}'); A(f's_add_u32 s{S_C}, s{S_C}, {32*64}')
    Q = P2_BF; G = P2_BF + 32
    A(f'v_lshlrev_b32 {v(T+2)}, 3, v0')
    A(f'v_and_b32 {v(T+3)}, 15, v0'); A(f'v_lshlrev_b32 {v(T+3)}, 2, {v(T+3)}')
    A(f's_lshl_b32 s{S_A}, s12, 7'); A(f's_lshr_b32 s{S_B}, s13, 1'); A(f's_add_u32 s{S_A}, s{S_A}, s{S_B}'); A(f's_lshl_b32 s{S_A}, s{S_A}, 10'); A(f's_add_u32 s{S_A}, s{S_A}, {QO}')
    for hh in range(2):
        A(f's_add_u32 s{S_B}, s{S_A}, {hh*65536}')
        for i in range(4):
            A(f'buffer_load_dwordx4 {v(Q+hh*16+i*4,4)}, {v(T)}, {SR(SRD_WS)}, s{S_B} offen offset:{i*1024} {LF}')
    A(f's_lshl_b32 s{S_B}, s13, 6'); A(f's_add_u32 s{S_B}, s{S_B}, {GATE}')
    for i in range(8):
        A(f'buffer_load_dword {v(G+i)}, {v(T+3)}, {SR(SRD_WS)}, s{S_B} offen offset:{i*64} {LF}')
    A('s_waitcnt vmcnt(16)')
    for base in (R, R+16):
        for h in range(2):
            A(f'v_pk_add_f32 {v(base+2*h,2)}, {v(base+2*h,2)}, {v(base+4+2*h,2)}')
            A(f'v_pk_add_f32 {v(base+8+2*h,2)}, {v(base+8+2*h,2)}, {v(base+12+2*h,2)}')
        for h in range(2): A(f'v_pk_add_f32 {v(base+2*h,2)}, {v(base+2*h,2)}, {v(base+8+2*h,2)}')
    A(f's_lshl_b32 s{S_A}, s6, 11')
    A(f'v_add_u32 {v(T+4)}, s{S_A}, {v(T)}')
    A(f'ds_write_b128 {v(T+4)}, {v(R,4)}')
    A(f'ds_write_b128 {v(T+4)}, {v(R+16,4)} offset:1024')
    A('s_waitcnt lgkmcnt(0)')
    A('s_barrier')
    KB = [P2_ACC+40, P2_ACC+42]; ZB = [P2_ACC+44, P2_ACC+46]
    for hh in range(2):
        for k in range(4):
            A(f'ds_read_b128 {v(R+4*k,4)}, {v(T)} offset:{(hh*4+k)*2048}')
            A(f'ds_read_b128 {v(R+16+4*k,4)}, {v(T)} offset:{(hh*4+k)*2048 + 1024}')
        A('s_waitcnt lgkmcnt(0)')
        for base, dst in ((R, KB[hh]), (R+16, ZB[hh])):
            for h in range(2):
                A(f'v_pk_add_f32 {v(base+2*h,2)}, {v(base+2*h,2)}, {v(base+4+2*h,2)}')
                A(f'v_pk_add_f32 {v(base+8+2*h,2)}, {v(base+8+2*h,2)}, {v(base+12+2*h,2)}')
            for h in range(2): A(f'v_pk_add_f32 {v(base+2*h,2)}, {v(base+2*h,2)}, {v(base+8+2*h,2)}')
            for h in range(2): A(f'v_cvt_pk_bf16_f32 {v(dst+h)}, {v(base+2*h)}, {v(base+2*h+1)}')
    A('s_waitcnt vmcnt(0)')
    A(f's_mov_b32 s{S_PAIR}, {hex(f2u(1e-6))}')
    for i0 in range(0, 8, 2):
        for di in range(2):
            i = i0 + di
            N = P2_ACC + di*16
            for hh in range(2):
                A(f'v_mfma_f32_16x16x16_bf16 {v(N+hh*4,4)}, {v(KB[hh],2)}, {v(Q+hh*16+i*2,2)}, 0')
                A(f'v_mfma_f32_16x16x16_bf16 {v(N+8+hh*4,4)}, {v(ZB[hh],2)}, {v(Q+hh*16+i*2,2)}, 0')
        for di in range(2):
            N = P2_ACC + di*16
            for hh in range(2): A(f'v_add_f32 {v(N+8+hh*4)}, s{S_PAIR}, {v(N+8+hh*4)}')
        for di in range(2):
            N = P2_ACC + di*16
            for hh in range(2): A(f'v_rcp_f32 {v(N+8+hh*4)}, {v(N+8+hh*4)}')
        for di in range(2):
            N = P2_ACC + di*16
            for hh in range(2):
                A(f'v_mul_f32 {v(N+8+hh*4)}, {v(N+8+hh*4)}, {v(G+i0+di)}')
            for hh in range(2):
                A(f'v_mov_b32 {v(N+8+hh*4+1)}, {v(N+8+hh*4)}')
        for di in range(2):
            N = P2_ACC + di*16
            for hh in range(2):
                for h in range(2):
                    A(f'v_pk_mul_f32 {v(N+hh*4+2*h,2)}, {v(N+hh*4+2*h,2)}, {v(N+8+hh*4,2)}')
        for di in range(2):
            N = P2_ACC + di*16
            X = P2_ACC + 32 + di*4
            for hh in range(2):
                for h in range(2):
                    A(f'v_cvt_pk_bf16_f32 {v(X+hh*2+h)}, {v(N+hh*4+2*h)}, {v(N+hh*4+2*h+1)}')
            A(f's_add_u32 s{S_A}, s13, {i0+di}'); A(f's_lshl_b32 s{S_A}, s{S_A}, 4'); A(f's_add_u32 s{S_A}, s{S_A}, s12')
            A(f's_lshl_b32 s{S_A}, s{S_A}, 10'); A(f's_add_u32 s{S_A}, s{S_A}, {OO}')
            ws_store(A, 4, X, T, f's{S_A}', SF)

P3_A = 4; P3_ACC = 80; P3_BR = 100; P3_BD = 104; P3_T = 112
def p3_b_setup(A):
    T = P3_T
    A(f'v_lshrrev_b32 {v(T)}, 3, v0'); A(f'v_and_b32 {v(T+1)}, 7, v0'); A(f'v_lshrrev_b32 {v(T+2)}, 4, v0')
    A(f'v_lshrrev_b32 {v(T+3)}, 1, {v(T+1)}')
    A(f'v_xor_b32 {v(T+3)}, {v(T+3)}, {v(T+2)}')
    A(f'v_lshlrev_b32 {v(T+3)}, 5, {v(T+3)}')
    A(f'v_and_b32 {v(T+4)}, 1, v0')
    A(f'v_lshl_add_u32 {v(T+3)}, {v(T+4)}, 4, {v(T+3)}')
    A(f'v_lshl_add_u32 {v(T+3)}, {v(T)}, 10, {v(T+3)}')
    A(f's_lshl_b32 s{S_A}, s{S_N3}, 7'); A(f's_lshl_b32 s{S_B}, s6, 13'); A(f's_add_u32 s{S_A}, s{S_A}, s{S_B}')
    A(f'v_add_u32 {v(P3_BD)}, s{S_A}, {v(T+3)}')
    A(f'v_and_b32 {v(T+4)}, 15, v0')
    A(f'v_lshrrev_b32 {v(T+5)}, 2, {v(T+4)}')
    A(f'v_lshl_add_u32 {v(T+5)}, {v(T+2)}, 2, {v(T+5)}')
    A(f'v_lshrrev_b32 {v(T+6)}, 1, {v(T+5)}'); A(f'v_and_b32 {v(T+6)}, 3, {v(T+6)}')
    A(f'v_and_b32 {v(T+4)}, 3, {v(T+4)}'); A(f'v_lshlrev_b32 {v(T+4)}, 3, {v(T+4)}')
    A(f'v_lshl_add_u32 {v(T+4)}, {v(T+5)}, 7, {v(T+4)}')
    for b in range(4):
        A(f'v_xor_b32 {v(T+7)}, {b}, {v(T+6)}')
        A(f'v_lshl_add_u32 {v(P3_BR+b)}, {v(T+7)}, 5, {v(T+4)}')
def p3_b_issue(A, m0_, m1_):
    for m in range(m0_, m1_):
        def body(m=m):
            A(f's_add_u32 m0, s{S_LW1}, {m*8192}')
            if m < 8:
                A(f's_mov_b32 s{S_SOFF}, {m*65536}')
                A(f'buffer_load_dwordx4 {v(P3_BD)}, {SR(SRD_X)}, s{S_SOFF} offen {CFG["b3f"]} lds')
            else:
                A(f's_mov_b32 s{S_SOFF}, {(m-8)*65536}')
                A(f'buffer_load_dwordx4 {v(P3_BD)}, {SR(SRD_WB)}, s{S_SOFF} offen {CFG["b3f"]} lds')
        if m == 18: if_s(A, ('lt', 's6', 6), body)
        else: body()

def p2_finish(A, nf):
    T = P2_T
    srd(A, SRD_X, P_WO, 512*1024)
    srd(A, SRD_WB, P_WOUT, 688*1024)
    A('s_barrier')
    p3_b_setup(A)
    p3_b_issue(A, 0, 8)
    A('s_waitcnt vmcnt(8)')
    A('s_barrier')
    def sig():
        A(f's_lshl_b32 s{S_A}, s9, 8'); A(f's_add_u32 s{S_A}, s{S_A}, {cnt(C_U)}')
        signal(A, S_A, T+8)
        if nf == 1:
            A(f's_and_b32 s{S_A}, s9, 1'); A(f's_lshl_b32 s{S_A}, s{S_A}, 10'); A(f's_add_u32 s{S_A}, s{S_A}, {cnt(C_O)}')
            signal(A, S_A, T+8, lanes=4, stride=256)
    if_s(A, ('eq', 's6', 0), sig)
    stamp(A, 'p2sig')
    p3_b_issue(A, 8, 19)

def emit_p2(A):
    p2_decode(A)
    p2_z_addr(A)
    def pl():
        A(f's_lshl_b32 s{S_A}, s10, 8'); A(f's_add_u32 s{S_A}, s{S_A}, {cnt(C_WIN)}')
        pollN(A, [(f's{S_A}', 16)], P2_T+6, 'pz2')
    if_s(A, ('eq', 's6', 0), pl)
    A('s_barrier')
    stamp(A, 'p2go')
    LL = A.label('p2left'); LE = A.label('p2end')
    A('s_cmp_eq_u32 s10, 7'); A(f's_cbranch_scc1 {LL}')
    for nf in (6, 1):
        if nf == 1: A(f'{LL}:')
        vm = VM()
        for st in range(2):
            for f in p2_z_issue_list(A, vm, st, nf): f()
        if CFG['b3touch']:
            srd(A, SRD_X, P_WO, 512*1024); srd(A, SRD_WB, P_WOUT, 688*1024)
            A(f's_lshr_b32 s{S_A}, s2, 3'); A(f's_mul_i32 s{S_A}, s{S_A}, 300'); A(f's_mul_i32 s{S_B}, s6, 40'); A(f's_add_u32 s{S_A}, s{S_A}, s{S_B}')
            A(f'v_add_u32 v1, s{S_A}, v0'); A('v_lshlrev_b32 v1, 7, v1')
            A('v_subrev_u32 v2, 0x80000, v1')
            A(f's_mov_b64 s[{S_EX}:{S_EX+1}], exec'); A('s_mov_b32 exec_hi, 0xff')
            A(f'buffer_load_dword v1, v1, {SR(SRD_X)}, 0 offen')
            A(f'buffer_load_dword v2, v2, {SR(SRD_WB)}, 0 offen')
            A(f's_mov_b64 exec, s[{S_EX}:{S_EX+1}]')
            vm.issue('t', 2)
        blocks = p2_main(A, vm, nf, {})
        if CFG['prof']:
            for st in (0, 7, 15): blocks[st]['post'] = (lambda st=st: stamp(A, f'p2s{st}'))
        pipeline(A, blocks)
        p2_epilogue(A, nf)
        stamp(A, 'p2epi')
        if nf == 1: p2_ojob(A)
        stamp(A, 'p2o')
        p2_finish(A, nf)
        if nf == 6: A(f's_branch {LE}')
    A(f'{LE}:')

def p3_steps(kh):
    allsteps = [('o', hp, 32*hp) for hp in range(16)] + [('u', p, 512 + 16 + 32*p) for p in range(21)] + [('u0', 0, 512)]
    return allsteps[:19] if kh == 0 else allsteps[19:]

def emit_p3(A):
    LF = CFG['lf']
    T = P3_T
    A(f's_mov_b32 s9, s{S_T3}'); A(f's_mov_b32 s10, s{S_N3}')
    def pl():
        A(f's_lshl_b32 s{S_A}, s9, 8'); A(f's_add_u32 s{S_A}, s{S_A}, {cnt(C_U)}')
        A(f's_lshr_b32 s{S_B}, s9, 4'); A(f's_lshl_b32 s{S_B}, s{S_B}, 2'); A(f's_and_b32 s{S_C}, s9, 3'); A(f's_add_u32 s{S_B}, s{S_B}, s{S_C}')
        A(f's_lshl_b32 s{S_B}, s{S_B}, 8'); A(f's_add_u32 s{S_B}, s{S_B}, {cnt(C_O)}')
        pollN(A, [(f's{S_A}', 8), (f's{S_B}', 16)], T+8, 'pu')
    A(f'v_lshlrev_b32 {v(T)}, 4, v0'); A(f'v_lshlrev_b32 {v(T+1)}, 3, v0')
    A(f's_lshl_b32 s11, s9, 2'); A(f's_add_u32 s11, s11, s7')
    A(f's_lshl_b32 s{S_K1}, s11, 14'); A(f's_add_u32 s{S_K1}, s{S_K1}, {OO}')
    A(f's_mul_i32 s{S_K2}, s11, {21*1024}'); A(f's_add_u32 s{S_K2}, s{S_K2}, {UO}')
    A(f's_lshl_b32 s{S_K3}, s11, 9'); A(f's_add_u32 s{S_K3}, s{S_K3}, {U0}')
    if_s(A, ('eq', 's6', 0), pl)
    A('s_waitcnt vmcnt(0)')
    A('s_barrier')
    stamp(A, 'p3go')
    LK = A.label('p3k1'); LJ = A.label('p3join')
    A('s_cmp_lg_u32 s8, 0'); A(f's_cbranch_scc1 {LK}')
    for kh in range(2):
        if kh == 1: A(f'{LK}:')
        steps = p3_steps(kh)
        vm = VM()
        def aload(i):
            kind, idx, row0 = steps[i]
            if kind == 'o':
                A(f's_add_u32 s{S_D}, s{S_K1}, {idx*1024}')
                A(f'buffer_load_dwordx4 {v(P3_A+4*i,4)}, {v(T)}, {SR(SRD_WS)}, s{S_D} offen {LF}')
            elif kind == 'u':
                A(f's_add_u32 s{S_D}, s{S_K2}, {idx*1024}')
                A(f'buffer_load_dwordx4 {v(P3_A+4*i,4)}, {v(T)}, {SR(SRD_WS)}, s{S_D} offen {LF}')
            else:
                A(f'buffer_load_dwordx2 {v(P3_A+4*i,2)}, {v(T+1)}, {SR(SRD_WS)}, s{S_K3} offen {LF}')
            vm.issue(i)
        NA = CFG['p3pro']
        for i in range(NA): aload(i)
        blocks = []
        nxt = NA
        for i, (kind, idx, row0) in enumerate(steps):
            blk = dict(reads=[], mfmas=[], extra=[])
            base = row0 * 128
            par = i % 2
            hi = base + 16*128 + 512 > 65535
            def pre(i=i, base=base, hi=hi, par=par):
                if hi:
                    for b in range(4): A(f'v_add_u32 {v(T+2+par*4+b)}, {base}, {v(P3_BR+b)}')
            blk['pre'] = pre
            for _ in range(CFG['p3per']):
                if nxt < len(steps):
                    blk['extra'].append(lambda n=nxt: aload(n)); nxt += 1
            for b in range(4):
                ad = (T+2+par*4+b, 0) if hi else (P3_BR+b, base)
                d = par*16 + b*4
                blk['reads'].append(f'ds_read_b64_tr_b16 {a(d,2)}, {v(ad[0])} offset:{ad[1]}')
                if kind != 'u0':
                    blk['reads'].append(f'ds_read_b64_tr_b16 {a(d+2,2)}, {v(ad[0])} offset:{ad[1] + 16*128}')
            for b in range(4):
                acc = P3_ACC + 4*b
                cin = '0' if i == 0 else v(acc,4)
                d = par*16 + b*4
                if kind == 'u0':
                    blk['mfmas'].append(f'v_mfma_f32_16x16x16_bf16 {v(acc,4)}, {a(d,2)}, {v(P3_A+4*i,2)}, {cin}')
                else:
                    blk['mfmas'].append(f'v_mfma_f32_16x16x32_bf16 {v(acc,4)}, {a(d,4)}, {v(P3_A+4*i,4)}, {cin}')
            blk['start'] = (lambda i=i: A(f's_waitcnt vmcnt({vm.wait_n(i)}) lgkmcnt(0)'))
            blocks.append(blk)
        pipeline(A, blocks)
        if kh == 0: A(f's_branch {LJ}')
    A(f'{LJ}:')
    stamp(A, 'p3main')
    A('s_barrier')
    A(f's_lshl_b32 s{S_A}, s7, 12'); A(f's_lshl_b32 s{S_B}, s8, 11'); A(f's_add_u32 s{S_A}, s{S_A}, s{S_B}')
    A(f'v_add_u32 {v(T+2)}, s{S_A}, {v(T)}')
    A(f's_xor_b32 s{S_B}, s{S_A}, 2048')
    A(f'v_add_u32 {v(T+3)}, s{S_B}, {v(T)}')
    LA = A.label('r0'); LB = A.label('r1')
    A('s_cmp_lg_u32 s8, 0'); A(f's_cbranch_scc1 {LA}')
    for b in (2, 3): A(f'ds_write_b128 {v(T+2)}, {v(P3_ACC+4*b,4)} offset:{(b-2)*1024}')
    A(f's_branch {LB}')
    A(f'{LA}:')
    for b in (0, 1): A(f'ds_write_b128 {v(T+2)}, {v(P3_ACC+4*b,4)} offset:{b*1024}')
    for b in (0, 1):
        for r in range(4): A(f'v_mov_b32 {v(P3_ACC+4*b+r)}, {v(P3_ACC+8+4*b+r)}')
    A(f'{LB}:')
    A('s_waitcnt lgkmcnt(0)')
    A('s_barrier')
    R = P3_A
    for b in range(2): A(f'ds_read_b128 {v(R+4*b,4)}, {v(T+3)} offset:{b*1024}')
    srd(A, SRD_M, P_OUT, 2048*1024)
    A(f'v_and_b32 {v(T+4)}, 15, v0'); A(f'v_lshlrev_b32 {v(T+4)}, 10, {v(T+4)}')
    A(f'v_lshrrev_b32 {v(T+5)}, 4, v0'); A(f'v_lshl_add_u32 {v(T+4)}, {v(T+5)}, 3, {v(T+4)}')
    A(f's_lshl_b32 s{S_A}, s11, 14'); A(f's_lshl_b32 s{S_B}, s10, 7'); A(f's_add_u32 s{S_A}, s{S_A}, s{S_B}')
    A(f's_lshl_b32 s{S_B}, s8, 6'); A(f's_add_u32 s{S_A}, s{S_A}, s{S_B}')
    A('s_waitcnt lgkmcnt(0)')
    for b in range(2):
        for h in range(2):
            A(f'v_pk_add_f32 {v(P3_ACC+4*b+2*h,2)}, {v(P3_ACC+4*b+2*h,2)}, {v(R+4*b+2*h,2)}')
    for b in range(2):
        for h in range(2):
            A(f'v_cvt_pk_bf16_f32 {v(R+8+2*b+h)}, {v(P3_ACC+4*b+2*h)}, {v(P3_ACC+4*b+2*h+1)}')
    for b in range(2):
        A(f'buffer_store_dwordx2 {v(R+8+2*b,2)}, {v(T+4)}, {SR(SRD_M)}, s{S_A} offen offset:{b*32}')
    stamp(A, 'p3end')
    stamp(A, 'rt1')

def wg0w0(A, body):
    L = A.label('init')
    A('s_cmp_lg_u32 s2, 0'); A(f's_cbranch_scc1 {L}')
    A('s_cmp_lg_u32 s6, 0'); A(f's_cbranch_scc1 {L}')
    body()
    A(f'{L}:')
def emit_init(A):
    def body():
        A('v_lshlrev_b32 v2, 8, v0'); A('v_mov_b32 v3, 0')
        A(f's_mov_b32 s{S_A}, {CNT}')
        A(f'buffer_store_dword v3, v2, {SR(SRD_WS)}, s{S_A} offen sc1')
        A(f's_add_u32 s{S_A}, s{S_A}, {64*256}')
        A(f'buffer_store_dword v3, v2, {SR(SRD_WS)}, s{S_A} offen sc1')
    wg0w0(A, body)
def emit_init_flag(A):
    def body():
        A('v_mov_b32 v2, 0'); A('v_mov_b32 v3, 1')
        A('s_mov_b64 exec, 1')
        A(f'buffer_store_dword v3, v2, {SR(SRD_DBG)}, 0 offen sc1')
        A('s_mov_b64 exec, -1')
    wg0w0(A, body)

def late_setup(A):
    srd(A, SRD_WS, P_WS, WS_USED)
    srd(A, SRD_DBG, P_DBG, 256)
    srd(A, SRD_WSP, P_WSP, 2048*4096)
    emit_init(A)
    def z():
        A(f'v_mov_b32 v2, {LCNT}'); A('v_mov_b32 v3, 0'); A('ds_write_b32 v2, v3')
    if_s(A, ('eq', 's6', 0), z)
    A('s_and_b32 s60, s2, 7'); A('s_lshr_b32 s61, s2, 3')
    A('s_lshr_b32 s62, s60, 1'); A('s_lshl_b32 s62, s62, 3'); A('s_and_b32 s63, s61, 7'); A(f's_add_u32 s{S_T2}, s62, s63')
    A('s_lshl_b32 s62, s60, 2'); A('s_and_b32 s63, s61, 3'); A(f's_add_u32 s{S_T3}, s62, s63')
    A(f's_lshr_b32 s{S_N3}, s61, 2')
    A('s_lshr_b32 s63, s61, 3'); A(f's_add_u32 s62, s{S_T2}, s63'); A(f's_and_b32 s{S_R0}, s62, {CFG["rot2"]-1}')

def build():
    A = Asm()
    hdr = open('gated_mix__linear_attn_block__mixer_gmlp__prompt.s.ref').read().split('; Override launch geometry')[0]
    A(hdr.rstrip())
    A(f'; @launch grid=(256,1,1) block=(512,1,1) lds={LDS_BYTES}')
    A('.amdgcn_target "amdgcn-amd-amdhsa--gfx950"')
    A('.text')
    kernel_header(A, KNAME)
    A('s_cmp_ge_u32 s2, 256')
    A(f's_cbranch_scc1 k_exit')
    A('s_load_dwordx16 s[16:31], s[0:1], 0')
    A('s_load_dwordx8 s[32:39], s[0:1], 64')
    A('v_lshrrev_b32 v1, 6, v0')
    A('v_and_b32 v0, 63, v0')
    A('v_readfirstlane_b32 s6, v1')
    A('s_and_b32 s7, s6, 3'); A('s_lshr_b32 s8, s6, 2')
    A(f's_lshl_b32 s{S_LW}, s6, 11'); A(f's_lshl_b32 s{S_LW1}, s6, 10')
    p1_decode(A)
    p1_x_addr(A)
    A('s_waitcnt lgkmcnt(0)')
    stamp(A, 'start')
    stamp(A, 'rt0')
    srd(A, SRD_X, P_X, 2048*1024)
    A(f's_lshl_b32 s{S_XO}, s{S_C0}, 7')
    for f in p1_issue_list(A, 'qkv', VM2(), 0, p1_units()): f()
    if CFG.get('delay'):
        A('s_memtime s[60:61]'); A('s_waitcnt lgkmcnt(0)')
        A('dly_l:'); A('s_memtime s[62:63]'); A('s_waitcnt lgkmcnt(0)'); A('s_sub_u32 s64, s62, s60'); A(f's_cmp_lt_u32 s64, {CFG["delay"]}'); A('s_cbranch_scc1 dly_l')
    emit_p1(A)
    emit_p2(A)
    emit_p3(A)
    stamp_flush(A)
    A('k_exit:')
    A('s_endpgm')
    A('.section .rodata,"a"')
    A('.p2align 6')
    A(kernel_desc(KNAME, 256, accum=128))
    return A

if __name__ == '__main__':
    out = sys.argv[1]
    for a_ in sys.argv[2:]:
        k_, v_ = a_.split('=')
        CFG[k_] = int(v_) if v_.lstrip('-').isdigit() else v_.replace('_', ' ')
    A = build()
    t = A.text()
    open(out, 'w').write(t)
    if CFG['prof']: open(out + '.names', 'w').write(' '.join(_stamps))
    print('lines', t.count(chr(10)), 'nops inserted', A.nops_inserted)
```

```python
import sys, struct
from asmgen import *
from layout import *

UNIT = 16384
NU = 8
SCR = NU * UNIT
LDS_BYTES = 163840
KNAME = 'gated_mix__linear_attn_block__mixer_gmlp__prompt_kernel'

P_X, P_WQKV, P_WO, P_BX, P_WIN, P_WSP, P_BSP, P_WOUT = 16, 18, 20, 22, 24, 26, 28, 30
P_GW, P_OUT, P_DBG, P_WS = 32, 34, 36, 38
SRD_X, SRD_WB, SRD_WS, SRD_WSP, SRD_M = 40, 44, 48, 52, 56
S_A, S_B, S_C, S_D, S_E, S_F = 60, 61, 62, 63, 64, 65
S_SOFF = 66
S_POLL = 67
S_EX = 68
S_K1, S_K2, S_K3, S_K4 = 70, 71, 72, 73
S_LW, S_LW1 = 74, 75
S_PAIR = 76
SRD_DBG = 92
S_T2, S_T3, S_N3 = 96, 97, 98
S_XO, S_B0O, S_B1O = 99, 100, 101
S_C0 = 15
S_R0 = 5
S_NONCE = 4

C_STATS, C_WIN, C_QKV, C_U, C_O, C_Z1 = 0, 16, 24, 32, 64, 72
LCNT = NU*UNIT + 28672
LCNT2 = LCNT + 4
def cnt(i): return CNT + i * 256

def f2u(x): return struct.unpack('<I', struct.pack('<f', x))[0]
LOG2E = 1.4426950408889634
GK = -2.0 * 0.7978845608028654 * LOG2E
GC = 0.044715

CFG = dict(prof=False, sf='sc1', lf='sc1', zlf='sc1', xf='', wf='', wspf='', b3f='', npro=4, maxper=2, codepf=1, p3pro=6, p3per=2, rot=8, rot2=4, wtouch=0, b3touch=2, fin1=5, mix=1, stq=3, p2map=0, r0t=0)
_stamps = []
PROF = 0x1000000
def stamp(A, name):
    if not CFG['prof']: return
    if name in _stamps: idx = _stamps.index(name)
    else: idx = len(_stamps); _stamps.append(name)
    A('s_waitcnt lgkmcnt(0)')
    A('s_memrealtime s[84:85]' if name.startswith('rt') else 's_memtime s[84:85]')
    A('s_waitcnt lgkmcnt(0)')
    A(f'v_writelane_b32 v127, s84, {idx}')
def stamp_flush(A):
    if not CFG['prof']: return
    A('s_waitcnt vmcnt(0)')
    A('s_lshl_b32 s84, s2, 3'); A('s_add_u32 s84, s84, s6'); A('s_lshl_b32 s84, s84, 8')
    A('v_lshlrev_b32 v126, 2, v0')
    A(f's_mov_b32 s88, s38'); A('s_and_b32 s89, s39, 0xffff'); A('s_mov_b32 s90, 0x2000000'); A('s_mov_b32 s91, 0x00020000')
    A(f's_add_u32 s84, s84, {PROF}')
    A('buffer_store_dword v127, v126, s[88:91], s84 offen')

class VM:
    def __init__(self): self.q = []; self.marks = {}
    def issue(self, tag, n=1): self.q += [tag] * n
    def wait_n(self, tag):
        idx = max(i for i, t in enumerate(self.q) if t == tag)
        return len(self.q) - 1 - idx
    def mark(self, name): self.marks[name] = len(self.q)
    def since(self, name): return len(self.q) - self.marks[name]

class VM2:
    def __init__(self): self.v = [VM(), VM()]
    def issue(self, tag, n=1, who=(0, 1)):
        for w in who: self.v[w].issue(tag, n)
    def mark(self, name):
        for x in self.v: x.mark(name)
    def counts(self, tag, mark=None):
        out = []
        for x in self.v:
            N = x.wait_n(tag) if (tag is not None and tag in x.q) else 63
            if mark is not None: N = min(N, x.since(mark))
            out.append(N)
        return out
    def wait(self, A, tag, mark=None):
        n0, n1 = self.counts(tag, mark)
        if n0 == n1: A(f's_waitcnt vmcnt({min(n0,63)})'); return
        L0 = A.label('vw'); L1 = A.label('vw')
        A('s_cmp_eq_u32 s8, 0'); A(f's_cbranch_scc1 {L0}')
        A(f's_waitcnt vmcnt({min(n1,63)})'); A(f's_branch {L1}')
        A(f'{L0}:'); A(f's_waitcnt vmcnt({min(n0,63)})'); A(f'{L1}:')

class Sprinkle:
    def __init__(self, A, extras, every):
        self.A = A; self.ex = list(extras); self.every = every; self.n = 0
    def __call__(self, t):
        self.A(t); self.n += 1
        if self.ex and self.n % self.every == 0: self.ex.pop(0)()
    def label(self, b='L'): return self.A.label(b)
    def flush(self):
        while self.ex: self.ex.pop(0)()

def SR(d): return f's[{d}:{d+3}]'
def srd(A, d, p, nbytes):
    A(f's_mov_b32 s{d}, s{p}')
    A(f's_and_b32 s{d+1}, s{p+1}, 0xffff')
    A(f's_mov_b32 s{d+2}, {hex(nbytes)}')
    A(f's_mov_b32 s{d+3}, 0x00020000')

def if_s(A, cond, body, name='if'):
    L = A.label(name)
    inv = {'eq': 'lg', 'lg': 'eq', 'lt': 'ge', 'ge': 'lt', 'gt': 'le', 'le': 'gt'}[cond[0]]
    A(f's_cmp_{inv}_u32 {cond[1]}, {cond[2]}'); A(f's_cbranch_scc1 {L}')
    body()
    A(f'{L}:')

def pipeline(A, blocks):
    n = len(blocks)
    b0 = blocks[0]
    if b0.get('pre'): b0['pre']()
    for r in b0['reads']: A(r)
    for x in b0.get('extra', []): x()
    for i in range(n):
        if blocks[i].get('start'): blocks[i]['start']()
        else: A('s_waitcnt lgkmcnt(0)')
        nxt = blocks[i+1] if i+1 < n else None
        fill = []; ex = []
        if nxt is not None:
            if nxt.get('pre'): nxt['pre']()
            fill = [(lambda r=r: A(r)) for r in nxt['reads']]
            ex = list(nxt.get('extra', []))
        m = blocks[i]['mfmas']
        slots = [[] for _ in m]
        k = 0
        for j in range(len(m)):
            for _ in range(2):
                if k < len(fill): slots[j].append(fill[k]); k += 1
        while k < len(fill): slots[-1].append(fill[k]); k += 1
        if ex:
            for e_i, e in enumerate(ex):
                pos = min(len(m)-1, (e_i * len(m)) // len(ex) + (len(m)//len(ex))//2)
                slots[pos].append(e)
        for j, t in enumerate(m):
            A(t)
            for f in slots[j]: f()
        if blocks[i].get('post'): blocks[i]['post']()

def ws_store(A, n, data, vaddr, soff, flags, off=0):
    nm = {1: 'dword', 2: 'dwordx2', 4: 'dwordx4'}[n]
    A(f'buffer_store_{nm} {v(data,n)}, {v(vaddr)}, {SR(SRD_WS)}, {soff} offen offset:{off} {flags}')

def signal(A, soff_sgpr, tmp, lanes=1, stride=0):
    A(f's_mov_b64 s[{S_EX}:{S_EX+1}], exec')
    A(f's_mov_b64 exec, {(1<<lanes)-1}')
    A(f'v_mov_b32 {v(tmp)}, 1')
    if stride: A(f'v_mul_u32_u24 {v(tmp+1)}, {stride}, v0')
    else: A(f'v_mov_b32 {v(tmp+1)}, 0')
    A(f'buffer_atomic_add {v(tmp)}, {v(tmp+1)}, {SR(SRD_WS)}, s{soff_sgpr} offen sc1')
    A(f's_mov_b64 exec, s[{S_EX}:{S_EX+1}]')

def poll(A, srd_, soff, target, tmp, name, cmp='ge'):
    A(f'v_mov_b32 {v(tmp+1)}, 0')
    A(f's_mov_b32 s{S_F}, 0')
    L = A.label(name); LO = A.label(name + 'ok')
    A(f'{L}:')
    A(f'buffer_load_dword {v(tmp)}, {v(tmp+1)}, {SR(srd_)}, {soff} offen sc1')
    A('s_waitcnt vmcnt(0)')
    A(f'v_readfirstlane_b32 s{S_E}, {v(tmp)}')
    A(f's_add_u32 s{S_F}, s{S_F}, 1')
    A(f's_cmp_ge_u32 s{S_E}, {target}')
    A(f's_cbranch_scc1 {LO}')
    A(f's_cmp_lt_u32 s{S_F}, 100000')
    A(f's_cbranch_scc0 {LO}')
    A('s_sleep 1')
    A(f's_branch {L}')
    A(f'{LO}:')

def pollN(A, items, tmp, name):
    n = len(items)
    A(f's_mov_b64 s[{S_EX}:{S_EX+1}], exec')
    A(f'v_mov_b32 {v(tmp+1)}, 0'); A(f'v_mov_b32 {v(tmp+2)}, 0')
    for i, (so, tg) in enumerate(items):
        A(f'v_writelane_b32 {v(tmp+1)}, {so}, {i}')
        A(f's_movk_i32 s{S_E}, {tg}')
        A(f'v_writelane_b32 {v(tmp+2)}, s{S_E}, {i}')
    A(f's_mov_b64 exec, {(1<<n)-1}')
    A(f's_mov_b32 s{S_F}, 0')
    L = A.label(name); LO = A.label(name + 'ok')
    A(f'{L}:')
    A(f'buffer_load_dword {v(tmp)}, {v(tmp+1)}, {SR(SRD_WS)}, 0 offen sc1')
    A('s_waitcnt vmcnt(0)')
    A(f'v_cmp_lt_u32 vcc, {v(tmp)}, {v(tmp+2)}')
    A(f's_add_u32 s{S_F}, s{S_F}, 1')
    A(f's_cmp_lt_u32 s{S_F}, 100000')
    A(f's_cbranch_scc0 {LO}')
    A(f's_cbranch_vccz {LO}')
    A('s_sleep 1')
    A(f's_branch {L}')
    A(f'{LO}:')
    A(f's_mov_b64 exec, s[{S_EX}:{S_EX+1}]')

def gelu_block(A, base, n, tmp, c1v):
    npairs = n // 2
    G = 4
    for p0 in range(0, npairs, G):
        ps = list(range(p0, min(p0 + G, npairs)))
        T = lambda p: tmp + 2 * (p - p0)
        X = lambda p: base + 2 * p
        for p in ps: A(f'v_pk_mul_f32 {v(T(p),2)}, {v(X(p),2)}, {v(X(p),2)}')
        for p in ps: A(f'v_pk_fma_f32 {v(T(p),2)}, {v(T(p),2)}, {s(S_PAIR,2)}, {v(c1v,2)}')
        for p in ps: A(f'v_pk_mul_f32 {v(T(p),2)}, {v(T(p),2)}, {v(X(p),2)}')
        for p in ps:
            A(f'v_exp_f32 {v(T(p))}, {v(T(p))}')
            A(f'v_exp_f32 {v(T(p)+1)}, {v(T(p)+1)}')
        for p in ps: A(f'v_pk_add_f32 {v(T(p),2)}, {v(T(p),2)}, {s(S_PAIR+2,2)}')
        for p in ps:
            A(f'v_rcp_f32 {v(T(p))}, {v(T(p))}')
            A(f'v_rcp_f32 {v(T(p)+1)}, {v(T(p)+1)}')
        for p in ps: A(f'v_pk_mul_f32 {v(X(p),2)}, {v(X(p),2)}, {v(T(p),2)}')
def gelu_consts(A, c1v):
    A(f's_mov_b32 s{S_PAIR}, {hex(f2u(GK*GC))}'); A(f's_mov_b32 s{S_PAIR+1}, {hex(f2u(GK*GC))}')
    A(f's_mov_b32 s{S_PAIR+2}, 1.0'); A(f's_mov_b32 s{S_PAIR+3}, 1.0')
    A(f'v_mov_b32 {v(c1v)}, {hex(f2u(GK))}'); A(f'v_mov_b32 {v(c1v+1)}, {hex(f2u(GK))}')
def phi_block(A, base, n, tmp):
    npairs = n // 2
    G = 4
    for p0 in range(0, npairs, G):
        ps = list(range(p0, min(p0 + G, npairs)))
        T = lambda p: tmp + 2 * (p - p0)
        X = lambda p: base + 2 * p
        for p in ps: A(f'v_pk_mul_f32 {v(T(p),2)}, {v(X(p),2)}, {s(S_PAIR,2)}')
        for p in ps:
            A(f'v_exp_f32 {v(T(p))}, {v(T(p))} clamp')
            A(f'v_exp_f32 {v(T(p)+1)}, {v(T(p)+1)} clamp')
        for p in ps:
            A(f'v_max_f32 {v(X(p))}, 0, {v(X(p))}')
            A(f'v_max_f32 {v(X(p)+1)}, 0, {v(X(p)+1)}')
        for p in ps: A(f'v_pk_add_f32 {v(T(p),2)}, {v(T(p),2)}, {s(S_PAIR+2,2)}')
        for p in ps: A(f'v_pk_add_f32 {v(X(p),2)}, {v(X(p),2)}, {v(T(p),2)}')
def phi_consts(A):
    A(f's_mov_b32 s{S_PAIR}, {hex(f2u(LOG2E))}'); A(f's_mov_b32 s{S_PAIR+1}, {hex(f2u(LOG2E))}')
    A(f's_mov_b32 s{S_PAIR+2}, {hex(f2u(1e-6))}'); A(f's_mov_b32 s{S_PAIR+3}, {hex(f2u(1e-6))}')

V_ACC0 = 4; V_ACC1 = 36; V_BF = 60
V_XD = 92; V_B0D = 94; V_B1D = 96; V_WD = 98
V_XR = 100; V_B0R = 102; V_B1R = 106; V_TA = 109; V_T = 115
V_FLAG = 123; V_ID = 124
def XF(tb2, ks): return (tb2 * 16 + ks) * 4

def p1_x_addr(A):
    T0, T1, T2, T3 = V_T, V_T+1, V_T+2, V_T+3
    A(f'v_lshrrev_b32 {v(T0)}, 3, v0'); A(f'v_and_b32 {v(T1)}, 7, v0')
    A(f'v_lshrrev_b32 {v(T2)}, 4, v0'); A(f'v_and_b32 {v(T3)}, 15, v0')
    A(f's_lshl_b32 s{S_A}, s9, 17'); A(f's_lshl_b32 s{S_B}, s6, 14'); A(f's_add_u32 s{S_A}, s{S_A}, s{S_B}')
    A(f'v_xor_b32 {v(V_XD)}, {v(T1)}, {v(T2)}')
    A(f'v_lshlrev_b32 {v(V_XD)}, 4, {v(V_XD)}')
    A(f'v_lshl_add_u32 {v(V_XD)}, {v(T0)}, 10, {v(V_XD)}')
    A(f'v_add_u32 {v(V_XD)}, s{S_A}, {v(V_XD)}')
    A(f'v_xor_b32 {v(V_XD+1)}, 64, {v(V_XD)}')
    A(f'v_add_u32 {v(V_XD+1)}, {8192-1024}, {v(V_XD+1)}')

def p1_b_dma_addr(A, typ):
    T0, T1, T2, T3, T4, T5 = V_T, V_T+1, V_T+2, V_T+3, V_T+4, V_T+5
    A(f's_and_b32 s{S_C}, s6, 1'); A(f's_lshl_b32 s{S_C}, s{S_C}, 2')
    A(f'v_lshrrev_b32 {v(T4)}, 1, {v(T3)}')
    A(f'v_xor_b32 {v(T4)}, {v(T4)}, {v(T2)}')
    A(f'v_xor_b32 {v(T4)}, s{S_C}, {v(T4)}')
    A(f'v_and_b32 {v(T5)}, 1, v0')
    if typ == 'qkv':
        A(f'v_lshlrev_b32 {v(V_B0D)}, 5, {v(T4)}')
        A(f'v_lshl_add_u32 {v(V_B0D)}, {v(T5)}, 4, {v(V_B0D)}')
        A(f'v_lshrrev_b32 {v(T4)}, 2, {v(T4)}')
        A(f'v_mad_u32_u24 {v(V_B0D)}, {v(T4)}, s{S_K3}, {v(V_B0D)}')
        A(f'v_mad_u32_u24 {v(V_B0D)}, {v(T2)}, s{S_K4}, {v(V_B0D)}')
        A(f's_mul_i32 s{S_B}, s6, {8*3072}')
        A(f's_lshl_b32 s{S_D}, s10, 7')
        A(f's_add_u32 s{S_B}, s{S_B}, s{S_D}')
        A(f's_add_u32 s{S_D}, s{S_B}, 1024')
        A(f'v_add_u32 {v(V_B0D)}, s{S_D}, {v(V_B0D)}')
        A(f'v_add_u32 {v(V_B0D+1)}, {4*3072-1024}, {v(V_B0D)}')
    else:
        A(f'v_lshlrev_b32 {v(T4)}, 5, {v(T4)}')
        A(f'v_lshl_add_u32 {v(T4)}, {v(T5)}, 4, {v(T4)}')
        A(f's_mul_i32 s{S_B}, s6, {8*2752}')
        A(f'v_mul_u32_u24 {v(T5)}, 2752, {v(T2)}')
        for (sc, VD) in ((11, V_B0D), (12, V_B1D)):
            A(f's_add_u32 s{S_D}, s{S_B}, s{sc}')
            A(f'v_add_u32 {v(VD)}, s{S_D}, {v(T5)}')
            A(f'v_add_u32 {v(VD+1)}, {4*2752}, {v(VD)}')
            A(f'v_and_b32 {v(VD)}, 0xffffff80, {v(VD)}')
            A(f'v_and_b32 {v(VD+1)}, 0xffffff80, {v(VD+1)}')
            A(f'v_add_u32 {v(VD)}, {v(VD)}, {v(T4)}')
            A(f'v_add_u32 {v(VD+1)}, {v(VD+1)}, {v(T4)}')
            A(f'v_subrev_u32 {v(VD+1)}, 1024, {v(VD+1)}')

def p1_q_dma_addr(A):
    T0, T1, T2, T3, T4, T5 = V_T, V_T+1, V_T+2, V_T+3, V_T+4, V_T+5
    A(f's_and_b32 s{S_C}, s6, 1'); A(f's_lshl_b32 s{S_C}, s{S_C}, 1')
    A(f'v_lshrrev_b32 {v(T4)}, 1, {v(T1)}')
    A(f'v_and_b32 {v(V_B1D)}, 1, {v(T2)}')
    A(f'v_xor_b32 {v(T4)}, {v(T4)}, {v(V_B1D)}')
    A(f'v_xor_b32 {v(T4)}, s{S_C}, {v(T4)}')
    A(f'v_lshlrev_b32 {v(T4)}, 5, {v(T4)}')
    A(f'v_and_b32 {v(T5)}, 1, v0')
    A(f'v_lshl_add_u32 {v(T4)}, {v(T5)}, 4, {v(T4)}')
    A(f'v_mad_u32_u24 {v(T4)}, {v(T0)}, s{S_K4}, {v(T4)}')
    A(f's_mul_i32 s{S_B}, s6, {8*3072}'); A(f's_lshl_b32 s{S_D}, s10, 7'); A(f's_add_u32 s{S_B}, s{S_B}, s{S_D}')
    A(f'v_add_u32 {v(V_B1D)}, s{S_B}, {v(T4)}')

def w_dma_addr(A, WD, T):
    A(f'v_lshrrev_b32 {v(T)}, 4, v0'); A(f'v_and_b32 {v(T+1)}, 15, v0')
    A(f's_and_b32 s{S_A}, s6, 1'); A(f's_lshl_b32 s{S_A}, s{S_A}, 3')
    A(f'v_xor_b32 {v(T+2)}, {v(T+1)}, {v(T)}')
    A(f'v_xor_b32 {v(T+2)}, s{S_A}, {v(T+2)}')
    A(f'v_lshlrev_b32 {v(T+2)}, 4, {v(T+2)}')
    A(f'v_lshl_add_u32 {v(T+2)}, {v(T)}, 12, {v(T+2)}')
    A(f's_lshl_b32 s{S_A}, s{S_T2}, 18'); A(f's_lshl_b32 s{S_B}, s6, 15'); A(f's_add_u32 s{S_A}, s{S_A}, s{S_B}')
    A(f'v_add_u32 {v(WD)}, s{S_A}, {v(T+2)}')
    A(f'v_xor_b32 {v(WD+1)}, 64, {v(WD)}')
    A(f'v_add_u32 {v(WD+1)}, {4*4096-1024}, {v(WD+1)}')

def w_dma_addr4(A, WD, T):
    A(f'v_lshrrev_b32 {v(T)}, 4, v0'); A(f'v_and_b32 {v(T+1)}, 15, v0')
    A(f'v_xor_b32 {v(T+2)}, {v(T+1)}, {v(T)}')
    A(f'v_lshlrev_b32 {v(T+2)}, 4, {v(T+2)}')
    A(f'v_lshl_add_u32 {v(T+2)}, {v(T)}, 12, {v(T+2)}')
    A(f's_lshl_b32 s{S_A}, s{S_T2}, 18'); A(f's_lshl_b32 s{S_B}, s7, 16'); A(f's_add_u32 s{S_A}, s{S_A}, s{S_B}')
    A(f'v_add_u32 {v(WD)}, s{S_A}, {v(T+2)}')
    for e in range(1, 4):
        A(f'v_xor_b32 {v(WD+e)}, {64*e}, {v(WD)}')
        A(f'v_add_u32 {v(WD+e)}, {e*(4*4096-1024)}, {v(WD+e)}')

def p1_read_addr(A, typ):
    T0, T1, T2, T3, T4, T5 = V_T, V_T+1, V_T+2, V_T+3, V_T+4, V_T+5
    A(f'v_lshrrev_b32 {v(T4)}, 1, {v(T3)}')
    A(f'v_xor_b32 {v(T4)}, {v(T4)}, {v(T2)}')
    A(f'v_lshlrev_b32 {v(T4)}, 4, {v(T4)}')
    A(f'v_lshl_add_u32 {v(T4)}, {v(T3)}, 7, {v(T4)}')
    A(f's_lshl_b32 s{S_B}, s7, 12')
    A(f'v_add_u32 {v(V_XR)}, s{S_B}, {v(T4)}')
    A(f'v_xor_b32 {v(V_XR+1)}, 64, {v(V_XR)}')
    RI, KEY, INR = V_TA, V_TA+1, V_TA+2
    A(f'v_lshrrev_b32 {v(RI)}, 2, {v(T3)}')
    A(f'v_and_b32 {v(KEY)}, 1, {v(T2)}')
    A(f'v_lshl_or_b32 {v(KEY)}, {v(KEY)}, 2, {v(RI)}')
    A(f'v_and_b32 {v(INR)}, 3, {v(T3)}')
    A(f'v_lshlrev_b32 {v(INR)}, 3, {v(INR)}')
    A(f'v_lshl_add_u32 {v(RI)}, {v(T2)}, 3, {v(RI)}')
    if typ == 'qkv':
        A(f'v_lshl_add_u32 {v(T5)}, {v(RI)}, 8, {v(INR)}')
        A(f's_lshl_b32 s{S_B}, s8, 1')
        A(f'v_xor_b32 {v(T4)}, s{S_B}, {v(KEY)}')
        for bi in range(4):
            x = [0, 1, 4, 5][bi]
            if x: A(f'v_xor_b32 {v(V_B0R+bi)}, {x}, {v(T4)}')
            else: A(f'v_mov_b32 {v(V_B0R+bi)}, {v(T4)}')
            A(f'v_lshl_add_u32 {v(V_B0R+bi)}, {v(V_B0R+bi)}, 5, {v(T5)}')
        A(f'v_lshrrev_b32 {v(T5)}, 3, {v(T3)}')
        A(f'v_and_b32 {v(T4)}, 1, {v(T2)}')
        A(f'v_lshl_or_b32 {v(T5)}, {v(T4)}, 1, {v(T5)}')
        A(f'v_xor_b32 {v(T5)}, s{S_B}, {v(T5)}')
        A(f'v_lshl_add_u32 {v(T4)}, {v(RI)}, 7, {v(INR)}')
        A(f'v_lshl_add_u32 {v(V_B1R)}, {v(T5)}, 5, {v(T4)}')
        A(f'v_xor_b32 {v(V_B1R+1)}, 32, {v(V_B1R)}')
    else:
        A(f'v_lshl_add_u32 {v(T1)}, {v(RI)}, 8, {v(INR)}')
        A(f'v_mul_u32_u24 {v(T0)}, 2752, {v(RI)}')
        A(f's_mul_i32 s{S_B}, s8, 3')
        for (sc, VR) in ((11, V_B0R), (12, V_B1R)):
            A(f'v_add_u32 {v(T4)}, s{sc}, {v(T0)}')
            A(f'v_bfe_u32 {v(T4)}, {v(T4)}, 5, 2')
            A(f'v_add_u32 {v(T4)}, s{S_B}, {v(T4)}')
            for bi in range(3):
                A(f'v_add_u32 {v(T5)}, {bi}, {v(T4)}')
                A(f'v_and_b32 {v(T5)}, 7, {v(T5)}')
                A(f'v_xor_b32 {v(T5)}, {v(T5)}, {v(KEY)}')
                A(f'v_lshl_add_u32 {v(VR+bi)}, {v(T5)}, 5, {v(T1)}')

W_ORDER = [0,4,8,12, 1,5,9,13, 2,6,10,14, 3,7,11,15]
def w_issue_list(A, vm, k, slot, tag, form=2):
    kq, r = k % 4, k // 4
    out = []
    for e in range(form):
        def f(e=e):
            def body():
                if form == 2: A(f's_add_u32 m0, s{S_LW}, {slot*UNIT}')
                else: A(f's_lshl_b32 m0, s7, 12'); A(f's_add_u32 m0, m0, {slot*UNIT}')
                A(f's_add_u32 s{S_SOFF}, s{S_R0}, {r}'); A(f's_and_b32 s{S_SOFF}, s{S_SOFF}, 3'); A(f's_lshl_b32 s{S_SOFF}, s{S_SOFF}, 8')
                if kq: A(f's_add_u32 s{S_SOFF}, s{S_SOFF}, {1024*kq}')
                A(f'buffer_load_dwordx4 {v(V_WD+e)}, {SR(SRD_WSP)}, s{S_SOFF} offen offset:{e*1024} {CFG["wspf"]} lds')
            if form == 2:
                body(); vm.issue(tag)
            else:
                if_s(A, ('lg', 's8', 0), body); vm.issue(tag, who=(1,))
        out.append(f)
    return out
def w_issue_ch1(A, vm, ks):
    def body():
        for k in ks:
            kq, r = k % 4, k // 4
            A(f's_lshl_b32 m0, s7, 12'); A(f's_add_u32 m0, m0, {(k % 8)*UNIT}')
            A(f's_add_u32 s{S_SOFF}, s{S_R0}, {r}'); A(f's_and_b32 s{S_SOFF}, s{S_SOFF}, 3'); A(f's_lshl_b32 s{S_SOFF}, s{S_SOFF}, 8')
            if kq: A(f's_add_u32 s{S_SOFF}, s{S_SOFF}, {1024*kq}')
            for e in range(4):
                A(f'buffer_load_dwordx4 {v(V_WD+e)}, {SR(SRD_WSP)}, s{S_SOFF} offen offset:{e*1024} {CFG["wspf"]} lds')
            vm.issue(('w', k), 4, who=(1,))
    if_s(A, ('lg', 's8', 0), body)

def p1_units():
    U = []
    for c in range(8): U.append(('x', c)); U.append(('b0', c))
    for c in range(8): U.append(('b1', c))
    for k in range(16): U.append(('w', k))
    return U
def unit_addr(n): return (n % NU) * UNIT

def p1_issue_list(A, typ, vm, n, U):
    kind, c = U[n]
    base = unit_addr(n)
    if kind == 'w': return w_issue_list(A, vm, c, n % NU, n, form=(2 if typ == 'qkv' else 4))
    rowbytes = 3072 if typ == 'qkv' else 2752
    if kind == 'x': VD, srd_, so, step, cnt_, lw, fl = V_XD, SRD_X, S_XO, 128, 2, S_LW, CFG['xf']
    elif kind == 'b0': VD, srd_, so, step, cnt_, lw, fl = V_B0D, SRD_WB, S_B0O, 64*rowbytes, 2, S_LW, CFG['wf']
    elif typ == 'win': VD, srd_, so, step, cnt_, lw, fl = V_B1D, SRD_WB, S_B1O, 64*rowbytes, 2, S_LW, CFG['wf']
    else: VD, srd_, so, step, cnt_, lw, fl = V_B1D, SRD_WB, S_B1O, 64*rowbytes, 1, S_LW1, CFG['wf']
    out = []
    for e in range(cnt_):
        def f(e=e):
            A(f's_add_u32 m0, s{lw}, {base}')
            A('s_nop 0')
            A(f'buffer_load_dwordx4 {v(VD+e)}, {SR(srd_)}, s{so} offen offset:{e*1024} {fl} lds')
            if e == cnt_ - 1:
                A(f's_add_u32 s{so}, s{so}, {step}')
                A(f's_cmp_eq_u32 s{so}, {8*step}')
                A(f's_cselect_b32 s{so}, 0, s{so}')
            vm.issue(n)
        out.append(f)
    return out

def p1_blocks(A, typ, grp, vm, U, state, sync_at, limit):
    nblk = {('qkv',0):4, ('qkv',1):2, ('win',0):3, ('win',1):3}[(typ, grp)]
    rowb = 128 if (typ, grp) == ('qkv', 1) else 256
    VR = V_B0R if grp == 0 else V_B1R
    ACC = V_ACC0 if grp == 0 else V_ACC1
    swapped = not (typ == 'qkv' and grp == 0)
    blocks = []
    pend = []
    for c in range(8):
        need = [2*c, 2*c+1] if grp == 0 else [16 + c]
        bbase = unit_addr(need[-1]); xb = unit_addr(need[0])
        hiB = (bbase + 16384 > 65536); hiX = (xb + 16384 > 65536)
        for kk in range(2):
            ks = 2*c + kk
            blk = dict(reads=[], mfmas=[], extra=[])
            if kk == 0:
                def pre(c=c, bbase=bbase, xb=xb, hiB=hiB, hiX=hiX):
                    if c in sync_at:
                        tag = (16 + sync_at[c]) if grp else (2*sync_at[c] + 1)
                        vm.wait(A, tag, state.get('also_mark', {}).get((grp, c)))
                        A('s_barrier')
                        if grp == 0 and c < 4 and CFG.get('finestamp'): stamp(A, f'sy{c}')
                    if (grp, c) in state.get('hooks', {}): state['hooks'][(grp, c)]()
                    if hiB:
                        for bi in range(nblk): A(f'v_add_u32 {v(V_TA+bi)}, {bbase}, {v(VR+bi)}')
                    if grp == 0 and hiX:
                        for k in range(2): A(f'v_add_u32 {v(V_TA+4+k)}, {xb}, {v(V_XR+k)}')
                blk['pre'] = pre
                if c in sync_at:
                    todo = []
                    while state['issued'] < limit and state['issued'] - NU <= need[0] - 1 and len(todo) < state['maxper']:
                        todo.append(state['issued']); state['issued'] += 1
                    pend = [('u', n) for n in todo]
                h = (len(pend) + 1) // 2
                blk['units'] = [p[1] for p in pend[:h]]; pend = pend[h:]
            else:
                blk['units'] = [p[1] for p in pend]; pend = []
            baddr = [((V_TA+bi, 0) if hiB else (VR+bi, bbase)) for bi in range(nblk)]
            if grp == 0:
                xa = (V_TA+4+kk, 0) if hiX else (V_XR+kk, xb)
                for tb2 in range(2):
                    blk['reads'].append(f'ds_read_b128 {a(XF(tb2,ks),4)}, {v(xa[0])} offset:{xa[1] + tb2*2048}')
            for bi in range(nblk):
                r0 = V_BF + kk*16 + bi*4
                off = baddr[bi][1] + kk*32*rowb
                blk['reads'].append(f'ds_read_b64_tr_b16 {v(r0,2)}, {v(baddr[bi][0])} offset:{off}')
                blk['reads'].append(f'ds_read_b64_tr_b16 {v(r0+2,2)}, {v(baddr[bi][0])} offset:{off + 4*rowb}')
            for bi in range(nblk):
                for tb2 in range(2):
                    acc = ACC + (bi*2 + tb2)*4
                    cin = '0' if ks == 0 else v(acc,4)
                    xf = a(XF(tb2,ks),4); bf = v(V_BF + kk*16 + bi*4, 4)
                    blk['mfmas'].append(f'v_mfma_f32_16x16x32_bf16 {v(acc,4)}, {bf}, {xf}, {cin}' if swapped
                                        else f'v_mfma_f32_16x16x32_bf16 {v(acc,4)}, {xf}, {bf}, {cin}')
            blocks.append(blk)
    for blk in blocks:
        ex = []
        for n in blk['units']: ex += p1_issue_list(A, typ, vm, n, U)
        blk['extra'] = ex
    return blocks

def p1_qkv_epi0(A, vm, extras):
    SF = CFG['sf']
    phi_consts(A)
    SP = Sprinkle(A, extras, 4)
    phi_block(SP, V_ACC0, 16, V_BF)
    SP.flush()
    PK = V_BF + 8; PV = V_BF + 16; ONE = V_BF + 24; D = V_ACC1
    for hh in range(2):
        for tb2 in range(2):
            k = V_ACC0 + (hh*2+tb2)*4; vv = V_ACC0 + ((2+hh)*2+tb2)*4
            A(f'v_cvt_pk_bf16_f32 {v(PK+hh*4+tb2*2)}, {v(k)}, {v(k+1)}')
            A(f'v_cvt_pk_bf16_f32 {v(PK+hh*4+tb2*2+1)}, {v(k+2)}, {v(k+3)}')
            A(f'v_cvt_pk_bf16_f32 {v(PV+hh*4+tb2*2)}, {v(vv)}, {v(vv+1)}')
            A(f'v_cvt_pk_bf16_f32 {v(PV+hh*4+tb2*2+1)}, {v(vv+2)}, {v(vv+3)}')
    for i in range(4): A(f'v_mov_b32 {v(ONE+i)}, 0x3f803f80')
    for hh in range(2):
        A(f'v_mfma_f32_16x16x32_bf16 {v(D+hh*8,4)}, {v(PK+hh*4,4)}, {v(PV+hh*4,4)}, 0')
        A(f'v_mfma_f32_16x16x32_bf16 {v(D+hh*8+4,4)}, {v(PK+hh*4,4)}, {v(ONE,4)}, 0')
    T = V_T
    A(f's_lshl_b32 s{S_A}, s8, 13'); A(f's_lshl_b32 s{S_B}, s7, 10')
    A(f's_add_u32 s{S_A}, s{S_A}, s{S_B}'); A(f's_add_u32 s{S_A}, s{S_A}, {SCR}')
    A(f'v_lshlrev_b32 {v(T)}, 4, v0')
    A(f'v_add_u32 {v(T+1)}, s{S_A}, {v(T)}')
    for hh in range(2):
        A(f'ds_write_b128 {v(T+1)}, {v(D+hh*8,4)} offset:{hh*4096}')
        A(f'ds_write_b128 {v(T+1)}, {v(D+hh*8+4,4)} offset:{16384 + hh*4096}')
    A('s_waitcnt lgkmcnt(0)')

def p1_qkv_epi0b(A, vm):
    SF = CFG['sf']
    T = V_T
    A(f's_lshl_b32 s{S_A}, s7, 12'); A(f's_lshl_b32 s{S_B}, s8, 14'); A(f's_add_u32 s{S_A}, s{S_A}, s{S_B}')
    A(f's_add_u32 s{S_A}, s{S_A}, {SCR}')
    A(f'v_lshlrev_b32 {v(T)}, 4, v0')
    A(f'v_add_u32 {v(T+1)}, s{S_A}, {v(T)}')
    R = V_ACC0
    for i in range(4): A(f'ds_read_b128 {v(R+4*i,4)}, {v(T+1)} offset:{i*1024}')
    A(f's_lshl_b32 s{S_A}, s9, 5'); A(f's_lshl_b32 s{S_C}, s10, 2'); A(f's_add_u32 s{S_A}, s{S_A}, s{S_C}'); A(f's_add_u32 s{S_A}, s{S_A}, s7')
    A('s_waitcnt lgkmcnt(0)')
    for h in range(2):
        A(f'v_pk_add_f32 {v(R+2*h,2)}, {v(R+2*h,2)}, {v(R+4+2*h,2)}')
        A(f'v_pk_add_f32 {v(R+8+2*h,2)}, {v(R+8+2*h,2)}, {v(R+12+2*h,2)}')
    for h in range(2): A(f'v_pk_add_f32 {v(R+2*h,2)}, {v(R+2*h,2)}, {v(R+8+2*h,2)}')
    LZ = A.label('kz'); LJ = A.label('kzj')
    A('s_cmp_lg_u32 s8, 0'); A(f's_cbranch_scc1 {LZ}')
    A(f's_lshl_b32 s{S_A}, s{S_A}, 10'); A(f's_add_u32 s{S_A}, s{S_A}, {KVP}')
    ws_store(A, 4, R, T, f's{S_A}', SF)
    A(f's_branch {LJ}')
    A(f'{LZ}:')
    A(f's_lshl_b32 s{S_A}, s{S_A}, 6'); A(f's_add_u32 s{S_A}, s{S_A}, {KZ}')
    A(f'v_and_b32 {v(T+2)}, 0x30, v0')
    A(f's_mov_b64 s[{S_EX}:{S_EX+1}], exec')
    A(f's_mov_b32 exec_lo, 0x00010001'); A(f's_mov_b32 exec_hi, 0x00010001')
    ws_store(A, 4, R, T+2, f's{S_A}', SF)
    A(f's_mov_b64 exec, s[{S_EX}:{S_EX+1}]')
    A(f'{LJ}:')
    vm.issue('kvp')

def p1_qkv_epi1(A, vm):
    SF = CFG['sf']
    T = V_T
    phi_consts(A)
    phi_block(A, V_ACC1, 16, V_BF + 8)
    A(f'v_lshlrev_b32 {v(T)}, 4, v0')
    A(f's_lshl_b32 s{S_A}, s10, 2'); A(f's_lshl_b32 s{S_B}, s8, 1'); A(f's_add_u32 s{S_A}, s{S_A}, s{S_B}')
    A(f's_lshl_b32 s{S_A}, s{S_A}, 6')
    A(f's_lshl_b32 s{S_B}, s9, 2'); A(f's_add_u32 s{S_A}, s{S_A}, s{S_B}'); A(f's_add_u32 s{S_A}, s{S_A}, s7')
    A(f's_lshl_b32 s{S_A}, s{S_A}, 10'); A(f's_add_u32 s{S_A}, s{S_A}, {QO}')
    for hh in range(2):
        for tb2 in range(2):
            q = V_ACC1 + (hh*2+tb2)*4
            P = V_BF + (hh*2+tb2)*2
            A(f'v_cvt_pk_bf16_f32 {v(P)}, {v(q)}, {v(q+1)}')
            A(f'v_cvt_pk_bf16_f32 {v(P+1)}, {v(q+2)}, {v(q+3)}')
        A(f's_add_u32 s{S_B}, s{S_A}, {hh*65536}')
        ws_store(A, 4, V_BF + hh*4, T, f's{S_B}', SF)
    vm.issue('q', 2)

def p1_win_epi0(A, vm, extras):
    c1v = V_BF + 30
    gelu_consts(A, c1v)
    SP = Sprinkle(A, extras, 8)
    gelu_block(SP, V_ACC0, 24, V_BF, c1v)
    SP.flush()
    stamp(A, 'e0gelu')
    ST = V_BF + 8
    P1 = [ST, ST+2]; P2 = [ST+4, ST+6]
    for i in range(8): A(f'v_mov_b32 {v(ST+i)}, 0')
    for bi in range(3):
        def body(bi=bi):
            for tb2 in range(2):
                z = V_ACC0 + (bi*2+tb2)*4
                for h in range(2):
                    A(f'v_pk_add_f32 {v(P1[tb2],2)}, {v(P1[tb2],2)}, {v(z+2*h,2)}')
                    A(f'v_pk_fma_f32 {v(P2[tb2],2)}, {v(z+2*h,2)}, {v(z+2*h,2)}, {v(P2[tb2],2)}')
        if_s(A, ('gt', 's13', bi), body)
    a0, a1, b0, b1 = ST+8, ST+9, ST+10, ST+11
    A(f'v_add_f32 {v(a0)}, {v(P1[0])}, {v(P1[0]+1)}'); A(f'v_add_f32 {v(a1)}, {v(P1[1])}, {v(P1[1]+1)}')
    A(f'v_add_f32 {v(b0)}, {v(P2[0])}, {v(P2[0]+1)}'); A(f'v_add_f32 {v(b1)}, {v(P2[1])}, {v(P2[1]+1)}')
    A(f'v_permlane32_swap_b32 {v(a0)}, {v(a1)}'); A(f'v_permlane32_swap_b32 {v(b0)}, {v(b1)}')
    A(f'v_add_f32 {v(a0)}, {v(a0)}, {v(a1)}'); A(f'v_add_f32 {v(b0)}, {v(b0)}, {v(b1)}')
    A(f'v_permlane16_swap_b32 {v(a0)}, {v(b0)}')
    A(f'v_add_f32 {v(a0)}, {v(a0)}, {v(b0)}')
    T = V_T
    A(f'v_lshlrev_b32 {v(T)}, 2, v0')
    A(f's_lshl_b32 s{S_A}, s7, 8'); A(f's_add_u32 s{S_A}, s{S_A}, {SCR}')
    A(f'v_add_u32 {v(T+1)}, s{S_A}, {v(T)}')
    A(f'v_mov_b32 {v(T+6)}, {v(a0)}')
    def w1():
        A(f'ds_write_b32 {v(T+1)}, {v(a0)}')
        A('s_waitcnt lgkmcnt(0)')
    if_s(A, ('lg', 's8', 0), w1)

def p1_win_epi0b(A, vm):
    T = V_T
    def body():
        A(f'ds_read_b32 {v(T+3)}, {v(T+1)}')
        flag_check(A, T+7)
        A(f's_mov_b32 s{S_NONCE}, s{S_E}')
        A(f's_lshl_b32 s{S_A}, s9, 2'); A(f's_add_u32 s{S_A}, s{S_A}, s7'); A(f's_lshl_b32 s{S_A}, s{S_A}, 3')
        A(f's_add_u32 s{S_A}, s{S_A}, s14'); A(f's_lshl_b32 s{S_A}, s{S_A}, 9'); A(f's_add_u32 s{S_A}, s{S_A}, {STATS}')
        A(f'v_lshlrev_b32 {v(T+2)}, 3, v0')
        A(f'v_mov_b32 {v(T+4)}, s{S_NONCE}')
        A('s_waitcnt lgkmcnt(0)')
        A(f'v_add_f32 {v(T+3)}, {v(T+3)}, {v(T+6)}')
        ws_store(A, 2, T+3, T+2, f's{S_A}', 'sc1')
    if_s(A, ('eq', 's8', 0), body)

def flag_load(A, allch0=False):
    def body():
        A(f'v_mov_b32 {v(V_FLAG+0)}, 0')
        A(f'buffer_load_dword {v(V_FLAG)}, {v(V_FLAG)}, {SR(SRD_DBG)}, 0 offen sc1')
    if_s(A, ('eq', 's8' if allch0 else 's6', 0), body)
def flag_check(A, tmp):
    L = A.label('fl')
    A(f'v_readfirstlane_b32 s{S_E}, {v(V_FLAG)}')
    A(f's_cmp_lg_u32 s{S_E}, 0'); A(f's_cbranch_scc1 {L}')
    poll(A, SRD_DBG, '0', 1, tmp, 'flp')
    A(f'{L}:')

SREC = [92, 94, 96, 98, 100, 102, 104, 118]
def stats_rec_loads(A):
    A('v_lshlrev_b32 v3, 3, v0')
    A(f's_lshl_b32 s{S_POLL}, s9, 2'); A(f's_add_u32 s{S_POLL}, s{S_POLL}, s7'); A(f's_lshl_b32 s{S_POLL}, s{S_POLL}, 12')
    A(f's_add_u32 s{S_POLL}, s{S_POLL}, {STATS}')
    for p in range(8):
        A(f'buffer_load_dwordx2 {v(SREC[p],2)}, v3, {SR(SRD_WS)}, s{S_POLL} offen offset:{p*512} sc1')
def stats_rec_check(A):
    A(f'v_xor_b32 v2, s{S_NONCE}, {v(SREC[0]+1)}')
    for p in range(1, 8):
        A(f'v_xor_b32 {v(SREC[p]+1)}, s{S_NONCE}, {v(SREC[p]+1)}')
        A(f'v_or_b32 v2, v2, {v(SREC[p]+1)}')
    A('v_cmp_ne_u32 vcc, 0, v2')
def win_stats_issue(A, vm):
    def body():
        A(f's_mov_b32 s{S_K4}, 0')
        stats_rec_loads(A)
    if_s(A, ('eq', 's8', 0), body)
def win_stats_try(A, vm):
    def body():
        L = A.label('sr'); LN = A.label('srn')
        A(f's_cmp_lg_u32 s{S_K4}, 0'); A(f's_cbranch_scc1 {L}')
        A('s_waitcnt vmcnt(0)')
        stats_rec_check(A)
        A(f's_cbranch_vccnz {LN}')
        A(f's_mov_b32 s{S_K4}, 1')
        A(f's_branch {L}')
        A(f'{LN}:')
        stats_rec_loads(A)
        A(f'{L}:')
    if_s(A, ('eq', 's8', 0), body)
def win_stats_final(A):
    L = A.label('sf'); LO = A.label('sfo')
    A(f's_cmp_lg_u32 s{S_K4}, 0'); A(f's_cbranch_scc1 {LO}')
    A(f's_mov_b32 s{S_F}, 0')
    A(f'{L}:')
    A('s_waitcnt vmcnt(0)')
    stats_rec_check(A)
    A(f's_cbranch_vccz {LO}')
    A(f's_add_u32 s{S_F}, s{S_F}, 1'); A(f's_cmp_ge_u32 s{S_F}, 100000'); A(f's_cbranch_scc1 {LO}')
    A('s_sleep 1')
    stats_rec_loads(A)
    A(f's_branch {L}')
    A(f'{LO}:')

def win_tail(A, vm):
    SF = CFG['sf']
    T = V_T + 1
    ST = V_BF
    ch0 = lambda body: if_s(A, ('eq', 's8', 0), body)
    ch1 = lambda body: if_s(A, ('lg', 's8', 0), body)
    p1_gate(A)
    A(f'v_lshlrev_b32 {v(T)}, 4, v0')
    A(f's_lshl_b32 s{S_A}, s7, 10'); A(f's_add_u32 s{S_A}, s{S_A}, {SCR}')
    A(f'v_add_u32 {v(T+1)}, s{S_A}, {v(T)}')
    def st():
        win_stats_final(A)
        R = SREC
        for (x, y) in ((0,1),(2,3),(4,5),(6,7),(0,2),(4,6),(0,4)):
            A(f'v_add_f32 {v(R[x])}, {v(R[x])}, {v(R[y])}')
        A(f'v_mul_f32 {v(ST)}, {hex(f2u(1.0/688.0))}, {v(R[0])}')
        A(f'v_mov_b32 {v(ST+1)}, {v(ST)}')
        A(f'v_permlane16_swap_b32 {v(ST)}, {v(ST+1)}')
        A(f'v_fma_f32 {v(ST+1)}, -{v(ST)}, {v(ST)}, {v(ST+1)}')
        A(f'v_add_f32 {v(ST+1)}, {hex(f2u(1e-5))}, {v(ST+1)}')
        A(f'v_rsq_f32 {v(ST+1)}, {v(ST+1)}')
        A(f'v_mul_f32 {v(ST)}, {v(ST)}, {v(ST+1)}')
        A(f'v_mov_b32 {v(ST+2)}, {v(ST)}'); A(f'v_mov_b32 {v(ST+3)}, {v(ST+1)}')
        A(f'v_permlane32_swap_b32 {v(ST)}, {v(ST+2)}')
        A(f'v_permlane32_swap_b32 {v(ST+1)}, {v(ST+3)}')
        A(f'ds_write_b128 {v(T+1)}, {v(ST,4)}')
        A('s_waitcnt lgkmcnt(0)')
    ch0(st)
    A(f'v_and_b32 {v(T+3)}, 15, v0'); A(f'v_lshrrev_b32 {v(T+4)}, 4, v0')
    A(f'v_lshlrev_b32 {v(T+4)}, 2, {v(T+4)}')
    A(f'v_sub_u32 {v(T+3)}, {v(T+3)}, {v(T+4)}')
    A(f'v_mov_b32 {v(T+4)}, 0x3f80'); A(f'v_mov_b32 {v(T+5)}, 0x3f800000')
    for half in range(2):
        A(f'v_cmp_eq_u32 vcc, {2*half}, {v(T+3)}')
        A(f'v_cndmask_b32 {v(V_ID+half)}, 0, {v(T+4)}, vcc')
        A(f'v_cmp_eq_u32 vcc, {2*half+1}, {v(T+3)}')
        A(f'v_cndmask_b32 {v(V_ID+half)}, {v(V_ID+half)}, {v(T+5)}, vcc')
    A('s_barrier')
    stamp(A, 'e1bar')
    def rd():
        A(f'ds_read_b128 {v(ST,4)}, {v(T+1)}')
        A('s_waitcnt lgkmcnt(0)')
    ch1(rd)
    RS = [ST+4, ST+6]; MS = [ST+8, ST+10]
    for tb2 in range(2):
        for h in range(2):
            A(f'v_mov_b32 {v(RS[tb2]+h)}, {v(ST+1+2*tb2)}')
            A(f'v_mov_b32 {v(MS[tb2]+h)}, {v(ST+2*tb2)}')
    PK = V_BF + 12
    DD = V_ACC0
    P = V_BF + 16
    for bi in range(3):
        for tb2 in range(2):
            z = V_ACC0 + (bi*2+tb2)*4
            for h in range(2):
                A(f'v_pk_fma_f32 {v(z+2*h,2)}, {v(z+2*h,2)}, {v(RS[tb2],2)}, {v(MS[tb2],2)} neg_lo:[0,0,1] neg_hi:[0,0,1]')
        pk = [V_BF + 12, V_BF + 28][bi % 2]
        for tb2 in range(2):
            z = V_ACC0 + (bi*2+tb2)*4
            A(f'v_cvt_pk_bf16_f32 {v(pk+tb2*2)}, {v(z)}, {v(z+1)}')
            A(f'v_cvt_pk_bf16_f32 {v(pk+tb2*2+1)}, {v(z+2)}, {v(z+3)}')
        for tb2 in range(2):
            z = V_ACC0 + (bi*2+tb2)*4
            A(f'v_mfma_f32_16x16x16_bf16 {v(z,4)}, {v(pk+tb2*2,2)}, {v(V_ID,2)}, 0')
    for bi in range(3):
        for tb2 in range(2):
            z = V_ACC0 + (bi*2+tb2)*4
            A(f'v_cvt_pk_bf16_f32 {v(P+bi*4+tb2*2)}, {v(z)}, {v(z+1)}')
            A(f'v_cvt_pk_bf16_f32 {v(P+bi*4+tb2*2+1)}, {v(z+2)}, {v(z+3)}')
    A(f's_mul_i32 s{S_A}, s7, 3072'); A(f's_add_u32 s{S_A}, s{S_A}, {SCR + 4096}')
    A(f'v_add_u32 {v(T+1)}, s{S_A}, {v(T)}')
    def wr():
        for bi in range(3): A(f'ds_write_b128 {v(T+1)}, {v(P+bi*4,4)} offset:{bi*1024}')
        n1 = vm.counts(24+3)[1]
        A(f's_waitcnt vmcnt({n1}) lgkmcnt(0)')
    ch1(wr)
    A('s_barrier')
    stamp(A, 'e1b2')
    A(f's_lshl_b32 s{S_K3}, s{S_K2}, 6'); A(f's_lshl_b32 s{S_B}, s9, 2'); A(f's_add_u32 s{S_K3}, s{S_K3}, s{S_B}'); A(f's_add_u32 s{S_K3}, s{S_K3}, s7')
    A(f's_lshl_b32 s{S_K3}, s{S_K3}, 10')
    if Z2T: A(f's_add_u32 s{S_K3}, s{S_K3}, {Z2T}')
    PZ = V_ACC0 + 12
    def z1_store():
        A(f's_lshl_b32 s{S_A}, s9, 2'); A(f's_add_u32 s{S_A}, s{S_A}, s7'); A(f's_mul_i32 s{S_A}, s{S_A}, 43')
        A(f's_mul_i32 s{S_B}, s8, 3'); A(f's_add_u32 s{S_A}, s{S_A}, s{S_B}'); A(f's_add_u32 s{S_A}, s{S_A}, s{S_K1}')
        A(f's_lshl_b32 s{S_A}, s{S_A}, 10'); A(f's_add_u32 s{S_A}, s{S_A}, {Z1}')
        for bi in range(3):
            for tb2 in range(2):
                z = V_ACC1 + (bi*2+tb2)*4
                A(f'v_cvt_pk_bf16_f32 {v(PZ+bi*4+tb2*2)}, {v(z)}, {v(z+1)}')
                A(f'v_cvt_pk_bf16_f32 {v(PZ+bi*4+tb2*2+1)}, {v(z+2)}, {v(z+3)}')
        for bi in range(3):
            A(f's_add_u32 s{S_B}, s{S_A}, {bi*1024}')
            A(f's_cmp_gt_u32 s13, {bi}'); A(f's_cselect_b32 s{S_B}, s{S_B}, {WS_USED}')
            ws_store(A, 4, PZ + bi*4, T, f's{S_B}', SF)
    def c0a():
        Q = V_ACC0
        for bi in range(3): A(f'ds_read_b128 {v(Q+bi*4,4)}, {v(T+1)} offset:{bi*1024}')
        for bi in range(3):
            A(f's_add_u32 s{S_B}, s{S_K3}, {bi*65536}')
            A(f's_cmp_gt_u32 s13, {bi}'); A(f's_cselect_b32 s{S_B}, s{S_B}, {WS_USED}')
            ws_store(A, 4, P+bi*4, T, f's{S_B}', SF)
        A('s_waitcnt lgkmcnt(0)')
        for bi in range(3):
            A(f's_add_u32 s{S_B}, s{S_K3}, {(3+bi)*65536}')
            A(f's_cmp_lg_u32 s14, 7'); A(f's_cselect_b32 s{S_B}, s{S_B}, {WS_USED}')
            ws_store(A, 4, Q+bi*4, T, f's{S_B}', SF)
    ch0(c0a)
    w_issue_ch1(A, vm, [6, 7])
    w_read_addr(A, V_T + 3)
    w_consume(A, 0, W_TMP)
    A('s_waitcnt lgkmcnt(0)')
    A('s_barrier')
    stamp(A, 'e1b3')
    def c0b():
        A('s_waitcnt vmcnt(0)')
        A(f's_mov_b64 s[{S_EX}:{S_EX+1}], exec'); A('s_mov_b64 exec, 1')
        A(f'v_mov_b32 v2, {LCNT}'); A('v_mov_b32 v3, 1')
        A('ds_add_rtn_u32 v2, v2, v3')
        A('s_waitcnt lgkmcnt(0)')
        A(f'v_readfirstlane_b32 s{S_E}, v2')
        A(f's_mov_b64 exec, s[{S_EX}:{S_EX+1}]')
        def sig():
            A(f's_lshl_b32 s{S_A}, s14, 8'); A(f's_add_u32 s{S_A}, s{S_A}, {cnt(C_WIN)}')
            signal(A, S_A, 2)
        if_s(A, ('eq', f's{S_E}', 3), sig)
        stamp(A, 'p1sig')
        z1_store()
    ch0(c0b)
    w_issue_ch1(A, vm, range(8, 12))
    def c1b():
        z1_store()
        A('s_waitcnt vmcnt(19)')
    ch1(c1b)
    A('s_barrier')
    w_consume(A, 1, W_TMP)
    A('s_waitcnt lgkmcnt(0)')
    A('s_barrier')
    w_issue_ch1(A, vm, range(12, 16))
    ch1(lambda: A('s_waitcnt vmcnt(16)'))
    A('s_barrier')
    w_consume(A, 2, W_TMP)
    A('s_waitcnt vmcnt(0)')
    A('s_barrier')
    def sigz():
        A(f's_lshl_b32 s{S_A}, s14, 8'); A(f's_add_u32 s{S_A}, s{S_A}, {cnt(C_Z1)}')
        signal(A, S_A, 2)
    if_s(A, ('eq', 's6', 0), sigz)
    w_consume(A, 3, W_TMP)
    A('s_waitcnt lgkmcnt(0)')

def qkv_tail(A, vm, U, state):
    A('s_barrier')
    stamp(A, 'e1bar')
    p1_qkv_epi1(A, vm)
    while state['issued'] < 32:
        for f in p1_issue_list(A, 'qkv', vm, state['issued'], U): f()
        state['issued'] += 1
    w_read_addr(A, V_T)
    vm.wait(A, 24+3)
    A('s_barrier')
    w_consume(A, 0, W_TMP)
    A('s_waitcnt vmcnt(0)')
    A('s_barrier')
    def sig():
        A(f's_lshl_b32 s{S_A}, s10, 8'); A(f's_add_u32 s{S_A}, s{S_A}, {cnt(C_QKV)}')
        signal(A, S_A, V_T+7)
    if_s(A, ('eq', 's6', 0), sig)
    stamp(A, 'p1sig')
    w_consume(A, 1, W_TMP)
    A('s_waitcnt lgkmcnt(0)')
    A('s_barrier')
    vm2 = VM2()
    for k in range(8, 16):
        for f in w_issue_list(A, vm2, k, k % 8, ('w', k)): f()
    vm2.wait(A, ('w', 11))
    A('s_barrier')
    w_consume(A, 2, W_TMP)
    A('s_waitcnt vmcnt(0)')
    A('s_barrier')
    w_consume(A, 3, W_TMP)
    A('s_waitcnt lgkmcnt(0)')
    if CFG['b3touch'] == 2:
        srd(A, SRD_X, P_WO, 512*1024); srd(A, SRD_WB, P_WOUT, 688*1024)
        A(f's_lshr_b32 s{S_A}, s2, 3'); A(f's_and_b32 s{S_A}, s{S_A}, 15'); A(f's_mul_i32 s{S_A}, s{S_A}, 600'); A(f's_mul_i32 s{S_B}, s6, 75'); A(f's_add_u32 s{S_A}, s{S_A}, s{S_B}')
        A(f's_mov_b64 s[{S_EX}:{S_EX+1}], exec'); A('s_mov_b32 exec_hi, 0xff')
        for i in range(2):
            A(f'v_add_u32 v1, s{S_A}, v0'); A('v_lshlrev_b32 v1, 7, v1')
            A('v_subrev_u32 v2, 0x80000, v1')
            A(f'buffer_load_dword v3, v1, {SR(SRD_X)}, 0 offen')
            A(f'buffer_load_dword v3, v2, {SR(SRD_WB)}, 0 offen')
            A(f's_add_u32 s{S_A}, s{S_A}, 40')
        A(f's_mov_b64 exec, s[{S_EX}:{S_EX+1}]')

def p1_gate(A):
    SF = CFG['sf']
    T = V_T
    def body():
        srd(A, SRD_M, P_GW, 1024)
        A(f'v_and_b32 {v(T+7)}, 0x30, v0')
        G = V_BF
        ACC = V_ACC0
        for half in range(2):
            for k in range(8):
                A(f's_lshl_b32 s{S_A}, s{S_C0}, 1'); A(f's_add_u32 s{S_A}, s{S_A}, {half*8+k}'); A(f's_and_b32 s{S_A}, s{S_A}, 15'); A(f's_lshl_b32 s{S_A}, s{S_A}, 6')
                A(f'buffer_load_dwordx4 {v(G+4*k,4)}, {v(T+7)}, {SR(SRD_M)}, s{S_A} offen')
            A('s_waitcnt vmcnt(0)')
            for k in range(8):
                ks = half*8 + k
                for tb2 in range(2):
                    acc = ACC + tb2*4
                    cin = '0' if ks == 0 else v(acc,4)
                    A(f'v_mfma_f32_16x16x32_bf16 {v(acc,4)}, {a(XF(tb2,ks),4)}, {v(G+4*k,4)}, {cin}')
        for i in range(8): A(f'v_mul_f32 {v(ACC+i)}, {hex(f2u(-LOG2E))}, {v(ACC+i)}')
        for i in range(8): A(f'v_exp_f32 {v(ACC+i)}, {v(ACC+i)}')
        for i in range(8): A(f'v_add_f32 {v(ACC+i)}, 1.0, {v(ACC+i)}')
        for i in range(8): A(f'v_rcp_f32 {v(ACC+i)}, {v(ACC+i)}')
        A(f's_lshl_b32 s{S_A}, s9, 9'); A(f's_lshl_b32 s{S_B}, s7, 7'); A(f's_add_u32 s{S_A}, s{S_A}, s{S_B}')
        A(f's_add_u32 s{S_A}, s{S_A}, {GATE}')
        A(f's_mov_b64 s[{S_EX}:{S_EX+1}], exec')
        A(f's_mov_b32 exec_lo, 0x00010001'); A(f's_mov_b32 exec_hi, 0x00010001')
        for tb2 in range(2):
            A(f'buffer_store_dwordx4 {v(ACC+4*tb2,4)}, {v(T+7)}, {SR(SRD_WS)}, s{S_A} offen offset:{tb2*64} {SF}')
        A(f's_mov_b64 exec, s[{S_EX}:{S_EX+1}]')
    L = A.label('gate')
    A('s_cmp_lg_u32 s14, 7'); A(f's_cbranch_scc1 {L}')
    A('s_cmp_eq_u32 s8, 0'); A(f's_cbranch_scc1 {L}')
    body()
    A(f'{L}:')

def p1_decode(A):
    A('s_and_b32 s60, s2, 7'); A('s_lshr_b32 s61, s2, 3')
    A('s_and_b32 s62, s60, 1'); A('s_lshl_b32 s62, s62, 3'); A('s_and_b32 s63, s61, 7'); A('s_add_u32 s9, s62, s63')
    if CFG['mix']:
        A('s_lshr_b32 s62, s60, 1'); A('s_lshl_b32 s62, s62, 1'); A('s_lshr_b32 s63, s61, 3'); A('s_add_u32 s10, s62, s63')
        A('s_add_u32 s64, s10, 6'); A('s_cmp_ge_u32 s63, 2'); A('s_cselect_b32 s10, s64, s10')
    else:
        A('s_lshr_b32 s62, s60, 1'); A('s_lshl_b32 s62, s62, 2'); A('s_lshr_b32 s63, s61, 3'); A('s_add_u32 s10, s62, s63')
    A('s_and_b32 s62, s61, 7'); A('s_lshr_b32 s63, s61, 3'); A('s_add_u32 s62, s62, s63')
    A(f's_and_b32 s62, s62, {CFG["rot"]-1}'); A(f's_mul_i32 s{S_C0}, s62, {8//CFG["rot"]}')

W_RA = 102
W_TMP = 60
def w_read_addr(A, T):
    A(f'v_lshrrev_b32 {v(T)}, 4, v0'); A(f'v_and_b32 {v(T+1)}, 15, v0')
    A(f'v_lshrrev_b32 {v(T+2)}, 1, {v(T)}')
    A(f'v_xor_b32 {v(T+2)}, {v(T+2)}, {v(T+1)}')
    A(f'v_lshlrev_b32 {v(T+2)}, 4, {v(T+2)}')
    A(f'v_and_b32 {v(T+3)}, 1, {v(T)}')
    A(f'v_lshl_add_u32 {v(T+2)}, {v(T+3)}, 3, {v(T+2)}')
    A(f'v_lshl_add_u32 {v(T+2)}, {v(T+1)}, 8, {v(T+2)}')
    A(f's_lshl_b32 s{S_A}, s8, 13')
    A(f'v_add_u32 {v(W_RA)}, s{S_A}, {v(T+2)}')
    for i in range(1, 8): A(f'v_xor_b32 {v(W_RA+i)}, {32*i}, {v(W_RA)}')
def w_consume(A, r, T):
    slot0 = (4*r) % 8
    A(f's_lshl_b32 s{S_A}, s7, 14'); A(f's_add_u32 s{S_A}, s{S_A}, {slot0*UNIT}')
    for i in range(8): A(f'v_add_u32 {v(T+i)}, s{S_A}, {v(W_RA+i)}')
    n = 0
    for sp in range(4):
        for tb2 in range(2):
            d = XF(tb2, 4*r + sp)
            A(f'ds_read_b64 {a(d,2)}, {v(T+2*sp)} offset:{tb2*4096}')
            A(f'ds_read_b64 {a(d+2,2)}, {v(T+2*sp+1)} offset:{tb2*4096}')
            n += 2
            if n == 12: A('s_waitcnt lgkmcnt(6)')

def emit_p1(A):
    LW = A.label('p1win'); LE = A.label('p1end')
    A('s_cmp_ge_u32 s10, 8'); A(f's_cbranch_scc1 {LW}')
    for typ in ('qkv', 'win'):
        U = p1_units()
        vm = VM2()
        if typ == 'qkv':
            srd(A, SRD_WB, P_WQKV, 512*3072)
            A(f's_movk_i32 s{S_K3}, 896'); A(f's_movk_i32 s{S_K4}, 3072')
        else:
            A(f'{LW}:')
            srd(A, SRD_WB, P_WIN, 512*2752)
            A('s_sub_u32 s14, s10, 8')
            A('s_mul_i32 s11, s14, 192'); A('s_mov_b32 s12, s11'); A('s_add_u32 s11, s11, 1408')
            def lo():
                A('s_mov_b32 s11, 1376'); A('s_mov_b32 s12, 1344')
            if_s(A, ('eq', 's14', 7), lo)
        rb_ = 3072 if typ == 'qkv' else 2752
        A(f's_mul_i32 s{S_B0O}, s{S_C0}, {64*rb_}'); A(f's_mov_b32 s{S_B1O}, s{S_B0O}')
        p1_b_dma_addr(A, typ)
        NPRO = CFG['npro']
        for n in range(1, NPRO):
            for f in p1_issue_list(A, typ, vm, n, U): f()
        if False: pass
        vm.v[0].q = [0, 0] + vm.v[0].q; vm.v[1].q = [0, 0] + vm.v[1].q
        stamp(A, 'pro')
        late_setup(A)
        if typ == 'qkv': p1_q_dma_addr(A)
        else:
            A(f's_mul_i32 s{S_K1}, s14, 6'); A(f's_add_u32 s{S_K2}, s{S_K1}, 1')
            A('s_mov_b32 s13, 3')
            def lo2():
                A(f's_mov_b32 s{S_K1}, 42'); A(f's_mov_b32 s{S_K2}, 0'); A('s_xor_b32 s13, s8, 1')
            if_s(A, ('eq', 's14', 7), lo2)
        p1_read_addr(A, typ)
        stamp(A, 'addr')
        state = dict(issued=NPRO, maxper=CFG['maxper'])
        if typ == 'qkv': state['hooks'] = {(0, 4): lambda: emit_init_flag(A)}
        blocks = p1_blocks(A, typ, 0, vm, U, state, {c: c for c in range(8)}, 16)
        if CFG['prof']:
            for c in (0, 3, 7): blocks[2*c+1]['post'] = (lambda c=c: stamp(A, f'g0s{c}'))
        pipeline(A, blocks)
        if CFG['wtouch']:
            A('v_lshrrev_b32 v1, 5, v0'); A('v_lshlrev_b32 v1, 12, v1')
            A('v_and_b32 v2, 31, v0'); A('v_lshl_add_u32 v1, v2, 7, v1')
            A(f's_lshr_b32 s{S_A}, s2, 6'); A(f's_and_b32 s{S_A}, s{S_A}, 3'); A(f's_lshl_b32 s{S_A}, s{S_A}, 4')
            A(f's_lshl_b32 s{S_B}, s6, 1'); A(f's_add_u32 s{S_A}, s{S_A}, s{S_B}')
            A(f's_lshl_b32 s{S_B}, s{S_T2}, 6'); A(f's_add_u32 s{S_A}, s{S_A}, s{S_B}'); A(f's_lshl_b32 s{S_A}, s{S_A}, 12')
            A(f'buffer_load_dword v1, v1, {SR(SRD_WSP)}, s{S_A} offen')
            vm.issue('wt')
        if typ == 'win': flag_load(A, True)
        ex = []
        for n in range(16, 22): ex += p1_issue_list(A, typ, vm, n, U)
        state['issued'] = 22
        if typ == 'qkv': p1_qkv_epi0(A, vm, ex)
        else: p1_win_epi0(A, vm, ex)
        if typ == 'qkv': w_dma_addr(A, V_WD, V_T + 2)
        else: w_dma_addr4(A, V_WD, V_T + 2)
        stamp(A, 'epi0')
        state['maxper'] = 2
        def hook0():
            if typ == 'qkv': p1_qkv_epi0b(A, vm)
            else: p1_win_epi0b(A, vm); vm.issue('stst', who=(0,))
            if typ == 'qkv': flag_load(A)
            vm.mark('pub')
        def hook2():
            if_s(A, ('eq', 's6', 0), lambda: flag_check(A, V_T+7))
        state['hooks'] = {(1, 0): hook0}
        if typ == 'qkv': state['hooks'][(1, 2)] = hook2
        if typ == 'win':
            state['hooks'][(1, CFG['stq'])] = lambda: win_stats_issue(A, vm)
            state['hooks'][(1, CFG['stq'] + 3)] = lambda: win_stats_try(A, vm)
        state['also_mark'] = {(1, 2): 'pub'} if typ == 'qkv' else {}
        lim = 32 if typ == 'qkv' else 30
        blocks = p1_blocks(A, typ, 1, vm, U, state, {0: 1, 2: 3, 4: 5, 6: 7}, lim)
        if CFG['prof']:
            for c in ((0,1,2,3,4,5,6,7) if CFG.get('finestamp') else (1, 3, 7)): blocks[2*c+1]['post'] = (lambda c=c: stamp(A, f'g1s{c}'))
        pipeline(A, blocks)
        if typ == 'win': win_tail(A, vm)
        else: qkv_tail(A, vm, U, state)
        stamp(A, 'wdone')
        if typ == 'qkv': A(f's_branch {LE}')
    A(f'{LE}:')

P2_ACC = 4; P2_BF = 52
P2_ZD = 108; P2_ZR = 111; P2_T = 114
ZST = 24576; NZ = 6
def WF(tb2, s_): return XF(tb2, s_)

def p2_decode(A):
    A('s_and_b32 s60, s2, 7'); A('s_lshr_b32 s61, s2, 3')
    A(f's_mov_b32 s9, s{S_T2}')
    if CFG['p2map'] == 0:
        A('s_and_b32 s62, s60, 1'); A('s_lshl_b32 s62, s62, 2'); A('s_lshr_b32 s63, s61, 3'); A('s_add_u32 s10, s62, s63')
    else:
        A('s_lshr_b32 s10, s61, 2')
    A('s_mul_i32 s11, s10, 6'); A('s_add_u32 s11, s11, 1')
    A('s_cmp_eq_u32 s10, 7'); A('s_cselect_b32 s11, 0, s11')

def p2_z_addr(A):
    T = P2_T
    A(f'v_lshlrev_b32 {v(T)}, 4, v0')
    A(f's_mul_i32 s{S_A}, s8, 3'); A(f's_add_u32 s{S_A}, s{S_A}, s11'); A(f's_lshl_b32 s{S_A}, s{S_A}, 16')
    A(f's_lshl_b32 s{S_B}, s7, 14'); A(f's_add_u32 s{S_A}, s{S_A}, s{S_B}')
    for i in range(3):
        A(f's_add_u32 s{S_B}, s{S_A}, {i*65536 - i*1024}')
        A(f'v_add_u32 {v(P2_ZD+i)}, s{S_B}, {v(T)}')
    A(f's_mul_i32 s{S_A}, s7, 6144')
    A(f'v_add_u32 {v(P2_ZR)}, s{S_A}, {v(T)}')
    A(f's_mul_i32 s{S_K1}, s7, 6144'); A(f's_mul_i32 s{S_B}, s8, 3072'); A(f's_add_u32 s{S_K1}, s{S_K1}, s{S_B}')

def p2_z_issue_list(A, vm, st, nf):
    out = []
    for i in range(3 if nf == 6 else 1):
        def f(i=i):
            def body():
                A(f's_add_u32 m0, s{S_K1}, {(st % NZ)*ZST}')
                A(f's_lshl_b32 s{S_SOFF}, s{S_R0}, 2'); A(f's_add_u32 s{S_SOFF}, s{S_SOFF}, {st}'); A(f's_and_b32 s{S_SOFF}, s{S_SOFF}, 15'); A(f's_lshl_b32 s{S_SOFF}, s{S_SOFF}, 10')
                if Z2T: A(f's_add_u32 s{S_SOFF}, s{S_SOFF}, {Z2T}')
                A(f'buffer_load_dwordx4 {v(P2_ZD+i)}, {SR(SRD_WS)}, s{S_SOFF} offen offset:{i*1024} {CFG["zlf"]} lds')
            if nf == 1: if_s(A, ('eq', 's8', 0), body)
            else: body()
            vm.issue(('z', st))
        out.append(f)
    return out

def p2_main(A, vm, nf, hooks, extras):
    blocks = []
    issued = 2
    for st in range(16):
        blk = dict(reads=[], mfmas=[], extra=[])
        base = (st % NZ) * ZST
        hi = base + 6144 > 65535 - 6144
        def pre(st=st, base=base, hi=hi):
            A(f's_waitcnt vmcnt({vm.wait_n(("z", st))})')
            A('s_barrier')
            if hi: A(f'v_add_u32 {v(P2_T)}, {base}, {v(P2_ZR)}')
            if st in hooks: hooks[st]()
        blk['pre'] = pre
        todo = []
        while issued < 16 and issued <= st + NZ - 1 and len(todo) < 2:
            todo.append(issued); issued += 1
        blk['stages'] = todo
        for fbi in range(nf):
            r0 = P2_BF + (st % 2)*24 + fbi*4
            if hi: blk['reads'].append(f'ds_read_b128 {v(r0,4)}, {v(P2_T)} offset:{fbi*1024}')
            else: blk['reads'].append(f'ds_read_b128 {v(r0,4)}, {v(P2_ZR)} offset:{base + fbi*1024}')
        for fbi in range(nf):
            for tb2 in range(2):
                acc = P2_ACC + (tb2*6+fbi)*4
                cin = '0' if st == 0 else v(acc,4)
                blk['mfmas'].append(f'v_mfma_f32_16x16x32_bf16 {v(acc,4)}, {v(P2_BF + (st%2)*24 + fbi*4,4)}, {a(WF(tb2,st),4)}, {cin}')
        blocks.append(blk)
    for st, blk in enumerate(blocks):
        ex = []
        for s_ in blk['stages']: ex += p2_z_issue_list(A, vm, s_, nf)
        ex += extras.get(st, [])
        blk['extra'] = ex
    return blocks

RED = 65536
JA = dict(z=(116, 118), g=120, b=121)
JB = dict(z=(122, 124), g=112, b=113)
def p2_job_scalars(A, job, nf):
    if nf == 6:
        A(f's_add_u32 s{S_A}, s7, {4*job}')
        if job: A(f's_cmp_ge_u32 s{S_A}, 6'); A(f's_cselect_b32 s{S_A}, s7, s{S_A}')
        A(f's_cmp_ge_u32 s{S_A}, 3'); A(f's_cselect_b32 s{S_B}, 1, 0')
        A(f's_mul_i32 s{S_C}, s{S_B}, 3'); A(f's_sub_u32 s{12+job}, s{S_A}, s{S_C}')
    else:
        A(f's_and_b32 s{S_B}, s7, 1'); A(f's_mov_b32 s{12+job}, 0')
    A(f's_lshl_b32 s{S_D}, s9, 2'); A(f's_lshl_b32 s{S_E}, s8, 1'); A(f's_add_u32 s{S_D}, s{S_D}, s{S_E}'); A(f's_add_u32 s{S_K3+job}, s{S_D}, s{S_B}')

def p2_epi_loads(A, vm, job, J, nf):
    LF = CFG['lf']
    TA, TB = 115, 126
    A(f's_lshr_b32 s{S_D}, s{S_K3+job}, 1')
    A(f's_mul_i32 s{S_E}, s{S_D}, 43'); A(f's_add_u32 s{S_E}, s{S_E}, s11'); A(f's_lshl_b32 s{S_C}, s{12+job}, 1'); A(f's_add_u32 s{S_E}, s{S_E}, s{S_C}')
    A(f's_lshl_b32 s{S_E}, s{S_E}, 10'); A(f's_add_u32 s{S_E}, s{S_E}, {Z1}')
    A(f's_and_b32 s{S_D}, s{S_K3+job}, 1'); A(f's_lshl_b32 s{S_D}, s{S_D}, 3'); A(f's_add_u32 s{S_E}, s{S_E}, s{S_D}')
    A(f'v_lshlrev_b32 {v(TA)}, 4, v0')
    A(f'buffer_load_dwordx2 {v(J["z"][0],2)}, {v(TA)}, {SR(SRD_WS)}, s{S_E} offen {LF}')
    A(f'buffer_load_dwordx2 {v(J["z"][1],2)}, {v(TA)}, {SR(SRD_WS)}, s{S_E} offen offset:{1024 if nf == 6 else 0} {LF}')
    A(f'v_and_b32 {v(TB)}, 15, v0')
    A(f'v_lshlrev_b32 {v(TA)}, 2, {v(TB)}')
    A(f's_lshl_b32 s{S_E}, s{S_K3+job}, 6'); A(f's_add_u32 s{S_E}, s{S_E}, {GATE}')
    A(f'buffer_load_dword {v(J["g"])}, {v(TA)}, {SR(SRD_WS)}, s{S_E} offen {LF}')
    A(f'v_lshlrev_b32 {v(TB)}, 1, {v(TB)}')
    A(f's_lshl_b32 s{S_E}, s{S_K3+job}, 5')
    A(f'buffer_load_ushort {v(J["b"])}, {v(TB)}, {SR(SRD_M)}, s{S_E} offen')
    vm.issue(('j', job), 4)

def z1dep_issue(A, vm):
    def body():
        A(f's_lshl_b32 s{S_A}, s10, 8'); A(f's_add_u32 s{S_A}, s{S_A}, {cnt(C_Z1)}')
        A(f's_add_u32 s{S_B}, s10, 1'); A(f's_and_b32 s{S_B}, s{S_B}, 7'); A(f's_lshl_b32 s{S_B}, s{S_B}, 8'); A(f's_add_u32 s{S_B}, s{S_B}, {cnt(C_Z1)}')
        A(f'v_mov_b32 v113, {cnt(C_Z1+7)}')
        A(f'v_writelane_b32 v113, s{S_A}, 0'); A(f'v_writelane_b32 v113, s{S_B}, 1')
        A(f'buffer_load_dword a0, v113, {SR(SRD_WS)}, 0 offen sc1')
    if_s(A, ('eq', 's6', 0), body)
def z1dep_check(A):
    def body():
        L = A.label('zd')
        A('v_accvgpr_read_b32 v112, a0')
        A('v_cmp_gt_u32 vcc, 16, v112')
        A(f's_cbranch_vccz {L}')
        A(f's_lshl_b32 s{S_A}, s10, 8'); A(f's_add_u32 s{S_A}, s{S_A}, {cnt(C_Z1)}')
        A(f's_add_u32 s{S_B}, s10, 1'); A(f's_and_b32 s{S_B}, s{S_B}, 7'); A(f's_lshl_b32 s{S_B}, s{S_B}, 8'); A(f's_add_u32 s{S_B}, s{S_B}, {cnt(C_Z1)}')
        A(f's_mov_b32 s{S_C}, {cnt(C_Z1+7)}')
        pollN(A, [(f's{S_A}', 16), (f's{S_B}', 16), (f's{S_C}', 16)], 116, 'pz1')
        A(f'{L}:')
    if_s(A, ('eq', 's6', 0), body)

def b3_touch(A, vm):
    A(f's_lshr_b32 s{S_A}, s2, 3'); A(f's_mul_i32 s{S_A}, s{S_A}, 300'); A(f's_mul_i32 s{S_B}, s6, 40'); A(f's_add_u32 s{S_A}, s{S_A}, s{S_B}')
    A(f'v_add_u32 v1, s{S_A}, v0'); A('v_lshlrev_b32 v1, 7, v1')
    A('v_subrev_u32 v2, 0x80000, v1')
    A(f's_mov_b64 s[{S_EX}:{S_EX+1}], exec'); A('s_mov_b32 exec_hi, 0xff')
    A(f'buffer_load_dword v1, v1, {SR(SRD_X)}, 0 offen')
    A(f'buffer_load_dword v2, v2, {SR(SRD_WB)}, 0 offen')
    A(f's_mov_b64 exec, s[{S_EX}:{S_EX+1}]')
    vm.issue('t', 2)

def p2_epilogue(A, nf):
    SF = CFG['sf']
    T = P2_T
    A('s_barrier')
    owners = (lambda body: body()) if nf == 6 else (lambda body: if_s(A, ('lt', 's7', 2), body))
    A(f'v_lshlrev_b32 {v(T)}, 4, v0')
    A(f's_mul_i32 s{S_A}, s8, 49152'); A(f's_lshl_b32 s{S_B}, s7, 11'); A(f's_add_u32 s{S_A}, s{S_A}, s{S_B}'); A(f's_add_u32 s{S_A}, s{S_A}, {RED}')
    A(f'v_add_u32 {v(T+1)}, s{S_A}, {v(T)}')
    if nf == 6:
        for tb2 in range(2):
            for fbi in range(6):
                phi = tb2*3 + fbi//2
                A(f'ds_write_b128 {v(T+1)}, {v(P2_ACC + (tb2*6+fbi)*4,4)} offset:{phi*8192 + (fbi%2)*1024}')
    else:
        for tb2 in range(2):
            A(f'ds_write_b128 {v(T+1)}, {v(P2_ACC + (tb2*6)*4,4)} offset:{tb2*8192}')
    c1v = P2_BF + 46
    gelu_consts(A, c1v)
    nb = 2 if nf == 6 else 1
    def prep(j, J):
        Z = P2_BF + j*16
        for b in range(nb):
            for h in range(2):
                src = J['z'][b] + h
                A(f'v_lshlrev_b32 {v(Z+b*4+2*h)}, 16, {v(src)}')
                A(f'v_and_b32 {v(Z+b*4+2*h+1)}, 0xffff0000, {v(src)}')
        gelu_block(A, Z, 4*nb, P2_BF + 32, c1v)
        A(f'v_lshlrev_b32 {v(Z+8)}, 16, {v(J["b"])}'); A(f'v_lshlrev_b32 {v(Z+9)}, 16, {v(J["b"])}')
        A(f'v_sub_f32 {v(Z+10)}, 1.0, {v(J["g"])}'); A(f'v_sub_f32 {v(Z+11)}, 1.0, {v(J["g"])}')
        for b in range(nb):
            for h in range(2):
                A(f'v_pk_mul_f32 {v(Z+b*4+2*h,2)}, {v(Z+b*4+2*h,2)}, {v(Z+10,2)}')
    A('s_waitcnt vmcnt(0)')
    owners(lambda: prep(0, JA))
    if nf == 6: if_s(A, ('lt', 's7', 2), lambda: prep(1, JB))
    A('s_waitcnt lgkmcnt(0)')
    A('s_barrier')
    stamp(A, 'p2red')
    def job(j):
        R = P2_ACC
        Z = P2_BF + j*16
        A(f's_add_u32 s{S_A}, s7, {4*j}'); A(f's_lshl_b32 s{S_A}, s{S_A}, 13')
        A(f's_mul_i32 s{S_B}, s8, 49152'); A(f's_add_u32 s{S_A}, s{S_A}, s{S_B}'); A(f's_add_u32 s{S_A}, s{S_A}, {RED}')
        A(f'v_add_u32 {v(T+1)}, s{S_A}, {v(T)}')
        for b in range(nb):
            for k in range(4):
                A(f'ds_read_b128 {v(R + (b*4+k)*4,4)}, {v(T+1)} offset:{k*2048 + b*1024}')
        if nf == 6:
            A(f's_mul_i32 s{S_A}, s{S_K3+j}, 21'); A(f's_mul_i32 s{S_B}, s10, 3'); A(f's_add_u32 s{S_A}, s{S_A}, s{S_B}')
            A(f's_add_u32 s{S_A}, s{S_A}, s{12+j}'); A(f's_lshl_b32 s{S_A}, s{S_A}, 10'); A(f's_add_u32 s{S_A}, s{S_A}, {UO}')
        else:
            A(f's_lshl_b32 s{S_A}, s{S_K3+j}, 9'); A(f's_add_u32 s{S_A}, s{S_A}, {U0}')
        A('s_waitcnt lgkmcnt(0)')
        O = P2_ACC + 32 + j*4
        for b in range(nb):
            R0 = R + b*16
            for h in range(2):
                A(f'v_pk_add_f32 {v(R0+2*h,2)}, {v(R0+2*h,2)}, {v(R0+4+2*h,2)}')
                A(f'v_pk_add_f32 {v(R0+8+2*h,2)}, {v(R0+8+2*h,2)}, {v(R0+12+2*h,2)}')
            for h in range(2): A(f'v_pk_add_f32 {v(R0+2*h,2)}, {v(R0+2*h,2)}, {v(Z+8,2)}')
            for h in range(2): A(f'v_pk_add_f32 {v(R0+2*h,2)}, {v(R0+2*h,2)}, {v(R0+8+2*h,2)}')
            for h in range(2): A(f'v_pk_mul_f32 {v(R0+2*h,2)}, {v(R0+2*h,2)}, {v(Z+b*4+2*h,2)}')
            for h in range(2): A(f'v_cvt_pk_bf16_f32 {v(O+b*2+h)}, {v(R0+2*h)}, {v(R0+2*h+1)}')
        if nf == 6:
            ws_store(A, 4, O, T, f's{S_A}', SF)
        else:
            A(f'v_lshlrev_b32 {v(T+1)}, 3, v0')
            ws_store(A, 2, O, T+1, f's{S_A}', SF)
    owners(lambda: job(0))
    if nf == 6: if_s(A, ('lt', 's7', 2), lambda: job(1))

def p2_ojob(A):
    SF = CFG['sf']; LF = CFG['lf']
    T = P2_T
    EX = 0
    A(f's_lshr_b32 s12, s9, 1')
    def pl():
        A(f's_lshr_b32 s{S_A}, s9, 2'); A(f's_lshl_b32 s{S_A}, s{S_A}, 8'); A(f's_add_u32 s{S_A}, s{S_A}, {cnt(C_QKV)}')
        pollN(A, [(f's{S_A}', 16)], T+6, 'pq')
    if_s(A, ('eq', 's6', 0), pl)
    A('s_barrier')
    A(f's_and_b32 s13, s9, 1'); A(f's_lshl_b32 s13, s13, 6'); A(f's_lshl_b32 s{S_A}, s6, 3'); A(f's_add_u32 s13, s13, s{S_A}')
    A(f's_lshl_b32 s{S_A}, s12, 1'); A(f's_add_u32 s{S_A}, s{S_A}, s8')
    A(f's_lshl_b32 s{S_B}, s7, 7'); A(f's_add_u32 s{S_B}, s{S_B}, s{S_A}')
    A(f's_lshl_b32 s{S_C}, s{S_B}, 6'); A(f's_add_u32 s{S_C}, s{S_C}, {KZ}')
    A(f's_lshl_b32 s{S_B}, s{S_B}, 10'); A(f's_add_u32 s{S_B}, s{S_B}, {KVP}')
    A(f'v_lshlrev_b32 {v(T)}, 4, v0'); A(f'v_and_b32 {v(T+1)}, 0x30, v0')
    R = P2_ACC
    for i in range(4):
        A(f'buffer_load_dwordx4 {v(R+4*i,4)}, {v(T)}, {SR(SRD_WS)}, s{S_B} offen {LF}')
        A(f'buffer_load_dwordx4 {v(R+16+4*i,4)}, {v(T+1)}, {SR(SRD_WS)}, s{S_C} offen {LF}')
        A(f's_add_u32 s{S_B}, s{S_B}, {32*1024}'); A(f's_add_u32 s{S_C}, s{S_C}, {32*64}')
    Q = P2_BF; G = P2_BF + 32
    A(f'v_and_b32 {v(T+3)}, 15, v0'); A(f'v_lshlrev_b32 {v(T+3)}, 2, {v(T+3)}')
    A(f's_lshl_b32 s{S_A}, s12, 7'); A(f's_lshr_b32 s{S_B}, s13, 1'); A(f's_add_u32 s{S_A}, s{S_A}, s{S_B}'); A(f's_lshl_b32 s{S_A}, s{S_A}, 10'); A(f's_add_u32 s{S_A}, s{S_A}, {QO}')
    for hh in range(2):
        A(f's_add_u32 s{S_B}, s{S_A}, {hh*65536}')
        for i in range(4):
            A(f'buffer_load_dwordx4 {v(Q+hh*16+i*4,4)}, {v(T)}, {SR(SRD_WS)}, s{S_B} offen offset:{i*1024} {LF}')
    A('s_waitcnt vmcnt(8)')
    for base in (R, R+16):
        for h in range(2):
            A(f'v_pk_add_f32 {v(base+2*h,2)}, {v(base+2*h,2)}, {v(base+4+2*h,2)}')
            A(f'v_pk_add_f32 {v(base+8+2*h,2)}, {v(base+8+2*h,2)}, {v(base+12+2*h,2)}')
        for h in range(2): A(f'v_pk_add_f32 {v(base+2*h,2)}, {v(base+2*h,2)}, {v(base+8+2*h,2)}')
    A(f's_lshl_b32 s{S_A}, s6, 11'); A(f's_add_u32 s{S_A}, s{S_A}, {EX}')
    A(f'v_add_u32 {v(T+4)}, s{S_A}, {v(T)}')
    A(f'ds_write_b128 {v(T+4)}, {v(R,4)}')
    A(f'ds_write_b128 {v(T+4)}, {v(R+16,4)} offset:1024')
    A('s_waitcnt lgkmcnt(0)')
    A('s_barrier')
    A(f'v_add_u32 {v(T+4)}, {EX}, {v(T)}')
    KB = [P2_ACC+40, P2_ACC+42]; ZB = [P2_ACC+44, P2_ACC+46]
    for hh in range(2):
        for k in range(4):
            A(f'ds_read_b128 {v(R+4*k,4)}, {v(T+4)} offset:{(hh*4+k)*2048}')
            A(f'ds_read_b128 {v(R+16+4*k,4)}, {v(T+4)} offset:{(hh*4+k)*2048 + 1024}')
        A('s_waitcnt lgkmcnt(0)')
        for base, dst in ((R, KB[hh]), (R+16, ZB[hh])):
            for h in range(2):
                A(f'v_pk_add_f32 {v(base+2*h,2)}, {v(base+2*h,2)}, {v(base+4+2*h,2)}')
                A(f'v_pk_add_f32 {v(base+8+2*h,2)}, {v(base+8+2*h,2)}, {v(base+12+2*h,2)}')
            for h in range(2): A(f'v_pk_add_f32 {v(base+2*h,2)}, {v(base+2*h,2)}, {v(base+8+2*h,2)}')
            for h in range(2): A(f'v_cvt_pk_bf16_f32 {v(dst+h)}, {v(base+2*h)}, {v(base+2*h+1)}')
    A('s_waitcnt vmcnt(0)')
    A(f's_mov_b32 s{S_PAIR}, {hex(f2u(1e-6))}')
    for i0 in range(0, 8, 2):
        for di in range(2):
            i = i0 + di
            N = P2_ACC + di*16
            for hh in range(2):
                qf = Q + hh*16 + i*2
                A(f'v_mfma_f32_16x16x16_bf16 {v(N+hh*4,4)}, {v(KB[hh],2)}, {v(qf,2)}, 0')
                A(f'v_mfma_f32_16x16x16_bf16 {v(N+8+hh*4,4)}, {v(ZB[hh],2)}, {v(qf,2)}, 0')
        for di in range(2):
            N = P2_ACC + di*16
            for hh in range(2): A(f'v_add_f32 {v(N+8+hh*4)}, s{S_PAIR}, {v(N+8+hh*4)}')
        for di in range(2):
            N = P2_ACC + di*16
            for hh in range(2): A(f'v_rcp_f32 {v(N+8+hh*4)}, {v(N+8+hh*4)}')
        for di in range(2):
            N = P2_ACC + di*16
            for hh in range(2):
                A(f'v_mov_b32 {v(N+8+hh*4+1)}, {v(N+8+hh*4)}')
        for di in range(2):
            N = P2_ACC + di*16
            for hh in range(2):
                for h in range(2):
                    A(f'v_pk_mul_f32 {v(N+hh*4+2*h,2)}, {v(N+hh*4+2*h,2)}, {v(N+8+hh*4,2)}')
        for di in range(2):
            N = P2_ACC + di*16
            X = P2_ACC + 32 + di*4
            for hh in range(2):
                for h in range(2):
                    A(f'v_cvt_pk_bf16_f32 {v(X+hh*2+h)}, {v(N+hh*4+2*h)}, {v(N+hh*4+2*h+1)}')
            A(f's_add_u32 s{S_A}, s13, {i0+di}'); A(f's_lshl_b32 s{S_A}, s{S_A}, 4'); A(f's_add_u32 s{S_A}, s{S_A}, s12')
            A(f's_lshl_b32 s{S_A}, s{S_A}, 10'); A(f's_add_u32 s{S_A}, s{S_A}, {OO}')
            ws_store(A, 4, X, T, f's{S_A}', SF)
    A('s_waitcnt vmcnt(0)')
    A('s_barrier')
    def sigo():
        A(f's_and_b32 s{S_A}, s9, 1'); A(f's_lshl_b32 s{S_A}, s{S_A}, 10'); A(f's_add_u32 s{S_A}, s{S_A}, {cnt(C_O)}')
        signal(A, S_A, T+8, lanes=4, stride=256)
    if_s(A, ('eq', 's6', 0), sigo)

P3_A = 4; P3_ACC = 80; P3_BR = 100; P3_BD = 104; P3_T = 112
def p3_b_setup(A):
    T = P3_T
    A(f'v_lshrrev_b32 {v(T)}, 3, v0'); A(f'v_and_b32 {v(T+1)}, 7, v0'); A(f'v_lshrrev_b32 {v(T+2)}, 4, v0')
    A(f'v_lshrrev_b32 {v(T+3)}, 1, {v(T+1)}')
    A(f'v_xor_b32 {v(T+3)}, {v(T+3)}, {v(T+2)}')
    A(f'v_lshlrev_b32 {v(T+3)}, 5, {v(T+3)}')
    A(f'v_and_b32 {v(T+4)}, 1, v0')
    A(f'v_lshl_add_u32 {v(T+3)}, {v(T+4)}, 4, {v(T+3)}')
    A(f'v_lshl_add_u32 {v(T+3)}, {v(T)}, 10, {v(T+3)}')
    A(f's_lshl_b32 s{S_A}, s{S_N3}, 7'); A(f's_lshl_b32 s{S_B}, s6, 13'); A(f's_add_u32 s{S_A}, s{S_A}, s{S_B}')
    A(f'v_add_u32 {v(P3_BD)}, s{S_A}, {v(T+3)}')
    A(f'v_and_b32 {v(T+4)}, 15, v0')
    A(f'v_lshrrev_b32 {v(T+5)}, 2, {v(T+4)}')
    A(f'v_lshl_add_u32 {v(T+5)}, {v(T+2)}, 2, {v(T+5)}')
    A(f'v_lshrrev_b32 {v(T+6)}, 1, {v(T+5)}'); A(f'v_and_b32 {v(T+6)}, 3, {v(T+6)}')
    A(f'v_and_b32 {v(T+4)}, 3, {v(T+4)}'); A(f'v_lshlrev_b32 {v(T+4)}, 3, {v(T+4)}')
    A(f'v_lshl_add_u32 {v(T+4)}, {v(T+5)}, 7, {v(T+4)}')
    for b in range(4):
        A(f'v_xor_b32 {v(T+7)}, {b}, {v(T+6)}')
        A(f'v_lshl_add_u32 {v(P3_BR+b)}, {v(T+7)}, 5, {v(T+4)}')
def p3_b_list(A, m0_, m1_, vm=None):
    out = []
    for m in range(m0_, m1_):
        def f(m=m):
            def body():
                A(f's_add_u32 m0, s{S_LW1}, {m*8192}')
                if m < 8:
                    A(f's_mov_b32 s{S_SOFF}, {m*65536}')
                    A(f'buffer_load_dwordx4 {v(P3_BD)}, {SR(SRD_X)}, s{S_SOFF} offen {CFG["b3f"]} lds')
                else:
                    A(f's_mov_b32 s{S_SOFF}, {(m-8)*65536}')
                    A(f'buffer_load_dwordx4 {v(P3_BD)}, {SR(SRD_WB)}, s{S_SOFF} offen {CFG["b3f"]} lds')
            if m == 18: if_s(A, ('lt', 's6', 6), body)
            else: body()
            if vm is not None and m != 18: vm.issue(('b', m))
        out.append(f)
    return out

def p2_finish(A, nf):
    T = P2_T
    A('s_barrier')
    n1 = CFG['fin1']
    for f in p3_b_list(A, 8, 8 + n1): f()
    A(f's_waitcnt vmcnt({n1})')
    A('s_barrier')
    def sig():
        A(f's_lshl_b32 s{S_A}, s9, 8'); A(f's_add_u32 s{S_A}, s{S_A}, {cnt(C_U)}')
        signal(A, S_A, T+8)
    if_s(A, ('eq', 's6', 0), sig)
    stamp(A, 'p2sig')

def emit_p2(A):
    p2_decode(A)
    if_s(A, ('eq', 's10', 7), lambda: p2_ojob(A), 'oj')
    stamp(A, 'p2o')
    p2_z_addr(A)
    srd(A, SRD_X, P_WO, 512*1024)
    srd(A, SRD_WB, P_WOUT, 688*1024)
    srd(A, SRD_M, P_BSP, 4096)
    p3_b_setup(A)
    def pl():
        A(f's_lshl_b32 s{S_A}, s10, 8'); A(f's_add_u32 s{S_A}, s{S_A}, {cnt(C_WIN)}')
        pollN(A, [(f's{S_A}', 16)], P2_T+6, 'pz2')
    if_s(A, ('eq', 's6', 0), pl)
    A('s_barrier')
    stamp(A, 'p2go')
    LL = A.label('p2left'); LE = A.label('p2end')
    A('s_cmp_eq_u32 s10, 7'); A(f's_cbranch_scc1 {LL}')
    for nf in (6, 1):
        if nf == 1: A(f'{LL}:')
        vm = VM()
        for st in range(2):
            for f in p2_z_issue_list(A, vm, st, nf): f()
        def h11():
            p2_job_scalars(A, 0, nf); p2_epi_loads(A, vm, 0, JA, nf)
            if nf == 6:
                p2_job_scalars(A, 1, nf); p2_epi_loads(A, vm, 1, JB, nf)
            if CFG['b3touch'] == 1: b3_touch(A, vm)
        hooks = {5: lambda: z1dep_issue(A, vm), 10: lambda: z1dep_check(A), 11: h11}
        extras = {13: p3_b_list(A, 0, 3, vm), 14: p3_b_list(A, 3, 6, vm), 15: p3_b_list(A, 6, 8, vm)}
        blocks = p2_main(A, vm, nf, hooks, extras)
        if CFG['prof']:
            for st in (0, 7, 15): blocks[st]['post'] = (lambda st=st: stamp(A, f'p2s{st}'))
        pipeline(A, blocks)
        p2_epilogue(A, nf)
        stamp(A, 'p2epi')
        p2_finish(A, nf)
        if nf == 6: A(f's_branch {LE}')
    A(f'{LE}:')

def p3_steps(kh, phase):
    if phase == 'o': return [('o', hp, 32*hp) for hp in range(8*kh, 8*kh + 8)]
    us = [('u', p, 512 + 16 + 32*p) for p in range(21)] + [('u0', 0, 512)]
    return us[:11] if kh == 0 else us[11:]

def p3_phase(A, phase, areg0, first, more=None):
    LF = CFG['lf']
    T = P3_T
    LK = A.label('p3k1'); LJ = A.label('p3join')
    A('s_cmp_lg_u32 s8, 0'); A(f's_cbranch_scc1 {LK}')
    for kh in range(2):
        if kh == 1: A(f'{LK}:')
        steps = p3_steps(kh, phase)
        vm = VM()
        def aload(i):
            kind, idx, row0 = steps[i]
            r = areg0 + 4*i
            if kind == 'o':
                A(f's_add_u32 s{S_D}, s{S_K1}, {idx*1024}')
                A(f'buffer_load_dwordx4 {v(r,4)}, {v(T)}, {SR(SRD_WS)}, s{S_D} offen {LF}')
            elif kind == 'u':
                A(f's_add_u32 s{S_D}, s{S_K2}, {idx*1024}')
                A(f'buffer_load_dwordx4 {v(r,4)}, {v(T)}, {SR(SRD_WS)}, s{S_D} offen {LF}')
            else:
                A(f'buffer_load_dwordx2 {v(r,2)}, {v(T+1)}, {SR(SRD_WS)}, s{S_K3} offen {LF}')
            vm.issue(i)
        NA = min(CFG['p3pro'] if phase == 'u' else 8, len(steps))
        for i in range(NA): aload(i)
        blocks = []
        nxt = NA
        mlist = more(vm) if more else []
        for i, (kind, idx, row0) in enumerate(steps):
            blk = dict(reads=[], mfmas=[], extra=[])
            base = row0 * 128
            par = i % 2
            hi = base + 16*128 + 512 > 65535
            def pre(i=i, base=base, hi=hi, par=par):
                if hi:
                    for b in range(4): A(f'v_add_u32 {v(T+2+par*4+b)}, {base}, {v(P3_BR+b)}')
            blk['pre'] = pre
            for _ in range(CFG['p3per']):
                if nxt < len(steps):
                    blk['extra'].append(lambda n=nxt: aload(n)); nxt += 1
            if mlist: blk['extra'].append(mlist.pop(0))
            for b in range(4):
                ad = (T+2+par*4+b, 0) if hi else (P3_BR+b, base)
                d = par*16 + b*4
                blk['reads'].append(f'ds_read_b64_tr_b16 {a(d,2)}, {v(ad[0])} offset:{ad[1]}')
                if kind != 'u0':
                    blk['reads'].append(f'ds_read_b64_tr_b16 {a(d+2,2)}, {v(ad[0])} offset:{ad[1] + 16*128}')
            for b in range(4):
                acc = P3_ACC + 4*b
                cin = '0' if (first and i == 0) else v(acc,4)
                d = par*16 + b*4
                r = areg0 + 4*i
                if kind == 'u0':
                    blk['mfmas'].append(f'v_mfma_f32_16x16x16_bf16 {v(acc,4)}, {a(d,2)}, {v(r,2)}, {cin}')
                else:
                    blk['mfmas'].append(f'v_mfma_f32_16x16x32_bf16 {v(acc,4)}, {a(d,4)}, {v(r,4)}, {cin}')
            blk['start'] = (lambda i=i: A(f's_waitcnt vmcnt({vm.wait_n(i)}) lgkmcnt(0)'))
            blocks.append(blk)
        pipeline(A, blocks)
        if kh == 0: A(f's_branch {LJ}')
    A(f'{LJ}:')

def emit_p3(A):
    T = P3_T
    A(f's_mov_b32 s9, s{S_T3}'); A(f's_mov_b32 s10, s{S_N3}')
    A(f'v_lshlrev_b32 {v(T)}, 4, v0'); A(f'v_lshlrev_b32 {v(T+1)}, 3, v0')
    A(f's_lshl_b32 s11, s9, 2'); A(f's_add_u32 s11, s11, s7')
    A(f's_lshl_b32 s{S_K1}, s11, 14'); A(f's_add_u32 s{S_K1}, s{S_K1}, {OO}')
    A(f's_mul_i32 s{S_K2}, s11, {21*1024}'); A(f's_add_u32 s{S_K2}, s{S_K2}, {UO}')
    A(f's_lshl_b32 s{S_K3}, s11, 9'); A(f's_add_u32 s{S_K3}, s{S_K3}, {U0}')
    def plo():
        A(f's_lshr_b32 s{S_B}, s9, 4'); A(f's_lshl_b32 s{S_B}, s{S_B}, 2'); A(f's_and_b32 s{S_C}, s9, 3'); A(f's_add_u32 s{S_B}, s{S_B}, s{S_C}')
        A(f's_lshl_b32 s{S_B}, s{S_B}, 8'); A(f's_add_u32 s{S_B}, s{S_B}, {cnt(C_O)}')
        pollN(A, [(f's{S_B}', 16)], T+10, 'po')
    if_s(A, ('eq', 's6', 0), plo)
    A('s_barrier')
    stamp(A, 'p3o')
    A(f'v_and_b32 {v(T+10)}, 15, v0'); A(f'v_lshlrev_b32 {v(T+10)}, 2, {v(T+10)}')
    A(f's_lshl_b32 s{S_A}, s11, 6'); A(f's_add_u32 s{S_A}, s{S_A}, {GATE}')
    A(f'buffer_load_dword {v(T+12)}, {v(T+10)}, {SR(SRD_WS)}, s{S_A} offen {CFG["lf"]}')
    p3_phase(A, 'o', P3_A, True, more=lambda vm: p3_b_list(A, 8 + CFG['fin1'], 19, vm))
    A(f'v_mov_b32 {v(T+13)}, {v(T+12)}')
    for i in range(8):
        A(f'v_pk_mul_f32 {v(P3_ACC+2*i,2)}, {v(P3_ACC+2*i,2)}, {v(T+12,2)}')
    stamp(A, 'p3omain')
    def plu():
        A(f's_lshl_b32 s{S_A}, s9, 8'); A(f's_add_u32 s{S_A}, s{S_A}, {cnt(C_U)}')
        pollN(A, [(f's{S_A}', 8)], T+10, 'pu')
    if_s(A, ('eq', 's6', 0), plu)
    A('s_waitcnt vmcnt(0)')
    A('s_barrier')
    stamp(A, 'p3go')
    p3_phase(A, 'u', P3_A + 32, False)
    stamp(A, 'p3main')
    A('s_barrier')
    A(f's_lshl_b32 s{S_A}, s7, 12'); A(f's_lshl_b32 s{S_B}, s8, 11'); A(f's_add_u32 s{S_A}, s{S_A}, s{S_B}')
    A(f'v_add_u32 {v(T+2)}, s{S_A}, {v(T)}')
    A(f's_xor_b32 s{S_B}, s{S_A}, 2048')
    A(f'v_add_u32 {v(T+3)}, s{S_B}, {v(T)}')
    LA = A.label('r0'); LB = A.label('r1')
    A('s_cmp_lg_u32 s8, 0'); A(f's_cbranch_scc1 {LA}')
    for b in (2, 3): A(f'ds_write_b128 {v(T+2)}, {v(P3_ACC+4*b,4)} offset:{(b-2)*1024}')
    A(f's_branch {LB}')
    A(f'{LA}:')
    for b in (0, 1): A(f'ds_write_b128 {v(T+2)}, {v(P3_ACC+4*b,4)} offset:{b*1024}')
    for b in (0, 1):
        for r in range(4): A(f'v_mov_b32 {v(P3_ACC+4*b+r)}, {v(P3_ACC+8+4*b+r)}')
    A(f'{LB}:')
    srd(A, SRD_M, P_OUT, 2048*1024)
    A(f'v_and_b32 {v(T+4)}, 15, v0'); A(f'v_lshlrev_b32 {v(T+4)}, 10, {v(T+4)}')
    A(f'v_lshrrev_b32 {v(T+5)}, 4, v0'); A(f'v_lshl_add_u32 {v(T+4)}, {v(T+5)}, 3, {v(T+4)}')
    A(f's_lshl_b32 s{S_A}, s11, 14'); A(f's_lshl_b32 s{S_B}, s10, 7'); A(f's_add_u32 s{S_A}, s{S_A}, s{S_B}')
    A(f's_lshl_b32 s{S_B}, s8, 6'); A(f's_add_u32 s{S_A}, s{S_A}, s{S_B}')
    A('s_waitcnt lgkmcnt(0)')
    A('s_barrier')
    R = P3_A
    for b in range(2): A(f'ds_read_b128 {v(R+4*b,4)}, {v(T+3)} offset:{b*1024}')
    A('s_waitcnt lgkmcnt(0)')
    for b in range(2):
        for h in range(2):
            A(f'v_pk_add_f32 {v(P3_ACC+4*b+2*h,2)}, {v(P3_ACC+4*b+2*h,2)}, {v(R+4*b+2*h,2)}')
    for b in range(2):
        for h in range(2):
            A(f'v_cvt_pk_bf16_f32 {v(R+8+2*b+h)}, {v(P3_ACC+4*b+2*h)}, {v(P3_ACC+4*b+2*h+1)}')
    for b in range(2):
        A(f'buffer_store_dwordx2 {v(R+8+2*b,2)}, {v(T+4)}, {SR(SRD_M)}, s{S_A} offen offset:{b*32}')
    stamp(A, 'p3end')
    stamp(A, 'rt1')

def wg0w0(A, body):
    L = A.label('init')
    A('s_cmp_lg_u32 s2, 0'); A(f's_cbranch_scc1 {L}')
    A('s_cmp_lg_u32 s6, 0'); A(f's_cbranch_scc1 {L}')
    body()
    A(f'{L}:')
def emit_init(A):
    def body():
        A('v_lshlrev_b32 v2, 8, v0'); A('v_mov_b32 v3, 0')
        A(f's_mov_b32 s{S_A}, {CNT}')
        A(f'buffer_store_dword v3, v2, {SR(SRD_WS)}, s{S_A} offen sc1')
        A(f's_add_u32 s{S_A}, s{S_A}, {64*256}')
        A(f'buffer_store_dword v3, v2, {SR(SRD_WS)}, s{S_A} offen sc1')
    wg0w0(A, body)
def emit_init_flag(A):
    def body():
        A('s_memrealtime s[62:63]'); A('s_waitcnt lgkmcnt(0)'); A('s_or_b32 s62, s62, 1')
        A('v_mov_b32 v2, 0'); A('v_mov_b32 v3, s62')
        A('s_mov_b64 exec, 1')
        A(f'buffer_store_dword v3, v2, {SR(SRD_DBG)}, 0 offen sc1')
        A('s_mov_b64 exec, -1')
    wg0w0(A, body)

def late_setup(A):
    srd(A, SRD_WS, P_WS, WS_USED)
    srd(A, SRD_DBG, P_DBG, 256)
    srd(A, SRD_WSP, P_WSP, 2048*4096)
    emit_init(A)
    def z():
        A(f'v_mov_b32 v2, {LCNT}'); A('v_mov_b32 v3, 0'); A('ds_write_b32 v2, v3'); A('ds_write_b32 v2, v3 offset:4')
    if_s(A, ('eq', 's6', 0), z)
    A('s_and_b32 s60, s2, 7'); A('s_lshr_b32 s61, s2, 3')
    if CFG['p2map'] == 0:
        A('s_lshr_b32 s62, s60, 1'); A('s_lshl_b32 s62, s62, 3'); A('s_and_b32 s63, s61, 7'); A(f's_add_u32 s{S_T2}, s62, s63')
    else:
        A('s_lshl_b32 s62, s60, 2'); A('s_and_b32 s63, s61, 3'); A(f's_add_u32 s{S_T2}, s62, s63')
    A('s_lshl_b32 s62, s60, 2'); A('s_and_b32 s63, s61, 3'); A(f's_add_u32 s{S_T3}, s62, s63')
    A(f's_lshr_b32 s{S_N3}, s61, 2')
    A(f's_lshr_b32 s63, s61, {3 if CFG["p2map"] == 0 else 2}'); (A(f's_add_u32 s62, s{S_T2}, s63') if CFG['r0t'] else A('s_mov_b32 s62, s63')); A(f's_and_b32 s{S_R0}, s62, {CFG["rot2"]-1}')

def build():
    A = Asm()
    hdr = open('gated_mix__linear_attn_block__mixer_gmlp__prompt.s.ref').read().split('; Override launch geometry')[0]
    A(hdr.rstrip())
    A(f'; @launch grid=(256,1,1) block=(512,1,1) lds={LDS_BYTES}')
    A('.amdgcn_target "amdgcn-amd-amdhsa--gfx950"')
    A('.text')
    kernel_header(A, KNAME)
    A('s_cmp_ge_u32 s2, 256')
    A(f's_cbranch_scc1 k_exit')
    A('s_load_dwordx16 s[16:31], s[0:1], 0')
    A('s_load_dwordx8 s[32:39], s[0:1], 64')
    A('v_lshrrev_b32 v1, 6, v0')
    A('v_and_b32 v0, 63, v0')
    A('v_readfirstlane_b32 s6, v1')
    A('s_and_b32 s7, s6, 3'); A('s_lshr_b32 s8, s6, 2')
    A(f's_lshl_b32 s{S_LW}, s6, 11'); A(f's_lshl_b32 s{S_LW1}, s6, 10')
    p1_decode(A)
    p1_x_addr(A)
    A('s_waitcnt lgkmcnt(0)')
    stamp(A, 'start')
    stamp(A, 'rt0')
    srd(A, SRD_X, P_X, 2048*1024)
    A(f's_lshl_b32 s{S_XO}, s{S_C0}, 7')
    for f in p1_issue_list(A, 'qkv', VM2(), 0, p1_units()): f()
    if CFG.get('delay'):
        A('s_memtime s[60:61]'); A('s_waitcnt lgkmcnt(0)')
        A('dly_l:'); A('s_memtime s[62:63]'); A('s_waitcnt lgkmcnt(0)'); A('s_sub_u32 s64, s62, s60'); A(f's_cmp_lt_u32 s64, {CFG["delay"]}'); A('s_cbranch_scc1 dly_l')
    emit_p1(A)
    emit_p2(A)
    emit_p3(A)
    stamp_flush(A)
    A('k_exit:')
    A('s_endpgm')
    A('.section .rodata,"a"')
    A('.p2align 6')
    A(kernel_desc(KNAME, 256, accum=128))
    return A

if __name__ == '__main__':
    out = sys.argv[1]
    for a_ in sys.argv[2:]:
        k_, v_ = a_.split('=')
        CFG[k_] = int(v_) if v_.lstrip('-').isdigit() else v_.replace('_', ' ')
    A = build()
    t = A.text()
    open(out, 'w').write(t)
    if CFG['prof']: open(out + '.names', 'w').write(' '.join(_stamps))
    print('lines', t.count(chr(10)), 'nops inserted', A.nops_inserted)
```
